```python
import torch

def _softmax(x, axis=-1):
    return torch.softmax(x, dim=axis)
def _gelu(x):
    return torch.nn.functional.gelu(x, approximate="tanh")
def _silu(x):
    return torch.nn.functional.silu(x)
def _sigmoid(x):
    return torch.sigmoid(x)
def _layernorm(x, axis=-1, eps=1e-5):
    m = x.mean(dim=axis, keepdim=True)
    v = x.var(dim=axis, keepdim=True, unbiased=False)
    return (x - m) / torch.sqrt(v + eps)
def _scatter_add(tgt, idx, src, axis=0):
    return tgt.clone().index_add_(axis, idx, src)
def _segment_sum(src, seg, n):
    out = torch.zeros((n,) + src.shape[1:], dtype=src.dtype)
    return out.index_add_(0, seg, src)
def _pad(x, pw):
    flat = tuple(v for pair in reversed(pw) for v in pair)
    return torch.nn.functional.pad(x, flat)

kernel_name = 'sequential_preLN__linear_attn_block__glu_gated_bilinear__prompt'

def setup_inputs():

    _w = (lambda a: (lambda t: t.to(torch.bfloat16) if t.is_floating_point() else t)(torch.as_tensor(a)))
    def _A_setup():
        B, S, D = 1, 2048, 448
        return {
            "x": _w((lambda *s: torch.randn(*s, dtype=torch.bfloat16) * 0.05)(B, S, D)),
            "wqkv": _w((lambda *s: torch.randn(*s, dtype=torch.bfloat16) * 0.1)(D, 3 * D)),
            "wo": _w((lambda *s: torch.randn(*s, dtype=torch.bfloat16) * 0.05)(D, D)),
        }
    _A_in = _A_setup()

    def _B_setup():
        B, S, D, F = 1, 2048, 448, 1792
        return {
            "x": _w((lambda *s: torch.randn(*s, dtype=torch.bfloat16) * 0.05)(B, S, D)),
            "w_gate": _w((lambda *s: torch.randn(*s, dtype=torch.bfloat16) * 0.4)(D, F) * (D ** -0.5)),
            "w_up": _w((lambda *s: torch.randn(*s, dtype=torch.bfloat16) * 0.4)(D, F) * (D ** -0.5)),
            "w_down": _w((lambda *s: torch.randn(*s, dtype=torch.bfloat16) * 0.4)(F, D) * (F ** -0.5)),
        }
    _B_in = _B_setup()

    return {
        "A_x": _A_in["x"],
        "A_wqkv": _A_in["wqkv"],
        "A_wo": _A_in["wo"],
        "B_x": _B_in["x"],
        "B_w_gate": _B_in["w_gate"],
        "B_w_up": _B_in["w_up"],
        "B_w_down": _B_in["w_down"],
    }

def reference(A_x, A_wqkv, A_wo, B_x, B_w_gate, B_w_up, B_w_down):
    def _A_ref(x, wqkv, wo):
        B, S, D = x.shape
        H = 16; Dh = D // H
        qkv = (lambda x, *d: x.permute(*d))((x @ wqkv).reshape(B, S, 3, H, Dh), 2, 0, 3, 1, 4)
        q, k, v = qkv[0], qkv[1], qkv[2]
        phi = lambda t: torch.where(t > 0, t + 1, torch.exp(t)) + 1e-6
        pq, pk = phi(q), phi(k)
        kv = torch.einsum("bhsd,bhse->bhde", pk, v)
        z = torch.einsum("bhsd->bhd", pk)
        num = torch.einsum("bhqd,bhde->bhqe", pq, kv)
        den = torch.einsum("bhqd,bhd->bhq", pq, z)[..., None] + 1e-6
        o = num / den
        return (lambda x, *d: x.permute(*d))(o, 0, 2, 1, 3).reshape(B, S, D) @ wo

    def _B_ref(x, w_gate, w_up, w_down):
        g = torch.einsum("bsd,df->bsf", x, w_gate)
        u = torch.einsum("bsd,df->bsf", x, w_up)
        h = g * u
        return torch.einsum("bsf,fd->bsd", h, w_down)

    x = A_x
    h = x + _A_ref(_layernorm(x, axis=-1), A_wqkv, A_wo)
    h2 = h + _B_ref(_layernorm(h, axis=-1), B_w_gate, B_w_up, B_w_down)
    return h2
```

```python
import re

def v(i, n=1): return f"v{i}" if n == 1 else f"v[{i}:{i+n-1}]"
def a(i, n=1): return f"a{i}" if n == 1 else f"a[{i}:{i+n-1}]"
def s(i, n=1): return f"s{i}" if n == 1 else f"s[{i}:{i+n-1}]"

_reg = re.compile(r"^(-?\|?)([vas])(\d+)\|?$")
_rng = re.compile(r"^(-?)([vas])\[(\d+):(\d+)\]$")
def regs_of(op):
    op = op.strip()
    m = _reg.match(op)
    if m: return {(m.group(2), int(m.group(3)))}
    m = _rng.match(op)
    if m: return {(m.group(2), i) for i in range(int(m.group(3)), int(m.group(4)) + 1)}
    if op in ("vcc", "vcc_lo", "vcc_hi"): return {("s", 106), ("s", 107)}
    if op in ("exec", "exec_lo", "exec_hi"): return {("s", 126), ("s", 127)}
    if op == "m0": return {("s", 124)}
    return set()

TRANS = ("v_exp_", "v_log_", "v_rcp_", "v_rsq_", "v_sqrt_", "v_sin_", "v_cos_")
class Ins:
    def __init__(self, text):
        self.text = text
        t = text.split(";")[0].strip()
        self.label = t.endswith(":")
        self.maybe = False
        self.defs, self.uses = set(), set()
        self.kind = "other"
        self.srcc = set(); self.passes = 0
        self.states = 1
        if self.label or not t:
            self.kind = "label"; self.states = 0; self.mn = ""; return
        parts = t.split(None, 1)
        mn = parts[0]; self.mn = mn
        rest = parts[1] if len(parts) > 1 else ""
        toks = [x for x in re.split(r",\s*|\s+", rest) if x]
        ops = [regs_of(x) for x in toks]
        self.toks = toks
        allr = set().union(*ops) if ops else set()
        if mn == "s_nop":
            self.kind = "nop"; self.states = int(toks[0], 0) + 1
        elif mn == "s_waitcnt": self.kind = "wait"
        elif mn.startswith("buffer_load") or mn.startswith("global_load"):
            self.kind = "vmem"
            if "lds" in toks: self.uses = allr | {("s", 124)}; self.dma = True
            else: self.defs = ops[0]; self.uses = set().union(*ops[1:])
        elif mn.startswith("buffer_store") or mn.startswith("global_store"):
            self.kind = "vmem"; self.uses = allr
            if mn.endswith("x3") or mn.endswith("x4"):
                self.wide = ops[0] if mn.startswith("buffer") else ops[1]
        elif mn.startswith("buffer_atomic") or mn.startswith("global_atomic"):
            self.kind = "vmem"; self.uses = allr
            if "sc0" in toks: self.defs = ops[0]
        elif mn.startswith("ds_read") or mn.startswith("ds_bpermute") or mn.startswith("ds_swizzle"):
            self.kind = "ds"; self.defs = ops[0]; self.uses = set().union(*ops[1:])
        elif mn.startswith("ds_"):
            self.kind = "ds"; self.uses = allr
        elif mn.startswith("v_mfma"):
            self.kind = "mfma"; self.defs = ops[0]; self.uses = ops[1] | ops[2] | ops[3]
            self.srcab = ops[1] | ops[2]; self.srcc = ops[3]
            self.passes = 8 if "32x32" in mn else 4
        elif mn.startswith("v_"):
            self.kind = "valu"
            if "permlane" in mn and "swap" in mn:
                self.defs = allr; self.uses = allr
            else:
                self.defs = set(ops[0]); self.uses = set().union(*ops[1:]) if len(ops) > 1 else set()
                if mn.startswith(("v_fmac", "v_mac", "v_dot2c", "v_writelane")): self.uses |= ops[0]
                if mn.startswith("v_cndmask") and len(toks) == 3: self.uses |= regs_of("vcc")
                if mn.startswith("v_cmpx"): self.defs |= regs_of("exec")
                if "_co_" in mn: self.defs |= ops[1]
        elif mn.startswith("s_load") or mn.startswith("s_memtime") or mn.startswith("s_memrealtime"):
            self.kind = "smem"; self.defs = ops[0]; self.uses = set().union(*ops[1:]) if len(ops) > 1 else set()
        elif mn.startswith("s_"):
            self.kind = "salu"
            if mn.startswith(("s_cmp", "s_cbranch", "s_branch", "s_barrier", "s_endpgm", "s_setprio", "s_sleep", "s_bitcmp")):
                self.uses = allr
            else:
                self.defs = set(ops[0]) if ops else set(); self.uses = set().union(*ops[1:]) if len(ops) > 1 else set()
                if "saveexec" in mn: self.defs |= regs_of("exec")
        self.dpp = ("dpp" in mn) or any(x.startswith(("row_", "quad_perm", "wave_")) for x in toks)

def need(p, c):
    n = 0
    vdef = {r for r in p.defs if r[0] in "va"}
    sdef = {r for r in p.defs if r[0] == "s"}
    if p.kind == "valu":
        isdot = p.mn.startswith("v_dot")
        if c.kind == "mfma" and vdef & c.uses: n = max(n, 3 if isdot else 2)
        if c.kind == "valu":
            if vdef & c.uses:
                if "permlane" in c.mn or c.dpp: n = max(n, 2)
                if c.mn.startswith(("v_readlane", "v_readfirstlane")): n = max(n, 1)
                if p.mn.startswith(TRANS): n = max(n, 1)
                if "op_sel" in p.text or "sdwa" in p.mn: n = max(n, 1)
            if sdef & c.uses: n = max(n, 4 if c.mn.startswith(("v_readlane", "v_writelane")) else 2)
            if regs_of("exec") & p.defs:
                if c.dpp: n = max(n, 5)
                if "permlane" in c.mn or c.mn.startswith(("v_readlane", "v_readfirstlane", "v_writelane")): n = max(n, 4)
        if isdot and c.kind in ("valu", "vmem", "ds") and vdef & (c.uses | c.defs):
            same_c = (c.mn == p.mn and not (vdef & (regs_of(c.toks[1]) | regs_of(c.toks[2]))))
            if not same_c: n = max(n, 3)
        if c.kind == "vmem" and sdef & c.uses: n = max(n, 5)
        if c.kind == "mfma" and regs_of("exec") & p.defs: n = max(n, 4)
    if p.kind == "salu" and ("s", 124) in p.defs and getattr(c, "dma", False): n = max(n, 1)
    if getattr(p, "wide", None) and p.wide & c.defs: n = max(n, 2)
    if p.kind == "mfma":
        big = 12 if p.passes == 8 else 8
        if c.kind == "mfma":
            if p.defs & c.srcab: n = max(n, big)
            if p.defs & c.srcc and not (p.defs == c.srcc and p.passes == c.passes): n = max(n, big - 2)
            if p.defs & c.defs and not p.defs & c.srcc: n = max(n, big)
        elif c.kind in ("valu", "vmem", "ds") and p.defs & (c.uses | c.defs): n = max(n, big)
        if c.kind == "valu" and p.srcc & c.defs: n = max(n, 7 if p.passes == 8 else 3)
    return n

class K:
    def __init__(self): self.items = []
    def __call__(self, text):
        for ln in text.split("\n"):
            ln = ln.strip()
            if ln: self.items.append(ln)
    def cond_begin(self): self.items.append("@cond_begin")
    def cond_end(self): self.items.append("@cond_end")
    def finalize(self):
        out = []; vm = []; lg = []; smem = []
        cond_stack = []
        def emit(i):
            best = 0; dist = 0
            for p in reversed(out):
                if dist >= 20: break
                if p.kind not in ("label",):
                    req = need(p, i) - dist
                    if req > best: best = req
                if not p.maybe: dist += p.states
            if best > 0: out.append(Ins(f"s_nop {best-1}"))
            out.append(i)
        for it in self.items:
            if it == "@cond_begin": cond_stack.append(len(out)); continue
            if it == "@cond_end":
                st = cond_stack.pop()
                for p in out[st:]: p.maybe = True
                continue
            i = Ins(it)
            if i.kind == "wait":
                m = re.search(r"vmcnt\((\d+)\)", it)
                if m and not cond_stack:
                    n = int(m.group(1)); keep = []; cnt = 0
                    for p in reversed(vm):
                        if cnt < n: keep.append(p)
                        else: break
                        if not p.maybe: cnt += 1
                    vm[:] = list(reversed(keep))
                m = re.search(r"lgkmcnt\((\d+)\)", it)
                if m and not cond_stack:
                    n = int(m.group(1))
                    if n == 0: lg.clear(); smem.clear()
                    elif not smem:
                        keep = []; cnt = 0
                        for p in reversed(lg):
                            if cnt < n: keep.append(p)
                            else: break
                            if not p.maybe: cnt += 1
                        lg[:] = list(reversed(keep))
                emit(i); continue
            touch = i.uses | i.defs
            w = []
            for q, name, mx in ((vm, "vmcnt", 63), (lg, "lgkmcnt", 15)):
                idx = -1
                for j, p in enumerate(q):
                    if p.defs & touch: idx = j
                if idx >= 0:
                    n = sum(1 for p in q[idx+1:] if not p.maybe)
                    if name == "lgkmcnt" and smem: n = 0
                    n = min(n, mx)
                    w.append(f"{name}({n})")
                    if not cond_stack:
                        del q[:idx+1]
                        if name == "lgkmcnt" and n == 0: q.clear(); smem.clear()
            for p in smem:
                if p.defs & touch:
                    raise Exception("smem result used without wait: " + it)
            if w: emit(Ins("s_waitcnt " + " ".join(w)))
            emit(i)
            if i.kind == "vmem": vm.append(i)
            elif i.kind == "ds": lg.append(i)
            elif i.kind == "smem": smem.append(i)
        return [p.text for p in out]

def kernel(name, lines, vgprs=256, agprs=0):
    acc = (vgprs + 3) // 4 * 4
    nf = acc + agprs if agprs else vgprs
    body = "\n".join(("" if x.endswith(":") else "  ") + x for x in lines)
    return f""".text
.globl {name}
.p2align 8
.type {name},@function
{name}:
{body}
  s_endpgm
.section .rodata,"a"
.p2align 6
.amdhsa_kernel {name}
  .amdhsa_next_free_vgpr {max(nf, acc)}
  .amdhsa_next_free_sgpr 102
  .amdhsa_accum_offset {acc}
  .amdhsa_group_segment_fixed_size 0
  .amdhsa_kernarg_size 80
  .amdhsa_user_sgpr_count 2
  .amdhsa_user_sgpr_kernarg_segment_ptr 1
  .amdhsa_system_sgpr_workgroup_id_x 1
.end_amdhsa_kernel
"""
```

```python
import sys
sys.path.insert(0, "dev")
from asmlib import *

NAME = "sequential_preLN__linear_attn_block__glu_gated_bilinear__prompt"
WS_KV, WS_PQ, WS_H, WS_ST, WS_HH = 0x0, 0x100000, 0x400000, 0x600000, 0x800000
ONES = 0x3f803f80
EPS6 = "0x358637bd"
EPS5 = "0x3727c5ac"
INVD = "0x3b124925"
LOG2E = "0x3fb8aa3b"
MF32 = "v_mfma_f32_32x32x16_bf16"
MF16 = "v_mfma_f32_16x16x32_bf16"

def srd(k, sr, karg_off):
    k(f"s_load_dwordx2 {s(sr,2)}, s[0:1], {karg_off}")
def srd_fin(k, sr, size):
    k(f"s_mov_b32 {s(sr+2)}, {size}")
    k(f"s_mov_b32 {s(sr+3)}, 0x00020000")

SX, SW, SWS, SD, SW2 = 4, 8, 12, 16, 20
SWV = 24

def common_head(k, tag, nwg_per_xcd):
    k(f"s_cmp_ge_u32 s2, {nwg_per_xcd*8}")
    k(f"s_cbranch_scc1 L_end_{tag}")

def phase1():
    k = K()
    common_head(k, "p1", 32)
    srd(k, SX, 0); srd(k, SW, 8); srd(k, SWS, 72); srd(k, SD, 64)
    KS = 3584; L_CS = 28*KS; L_KV = L_CS + 1024; L_ST = L_KV + 4096
    LANE, T0, T1, T2, T3 = 1, 2, 3, 4, 5
    VXA, VWA = 6, 7
    AQ, AK = 8, 12
    Q, KK, VV = 16, 32, 48
    G0, G1, CS, SEL = 64, 68, 72, 76
    WF, X = 96, 144
    sTB, sHD = 25, 26
    k(f"v_and_b32 v{LANE}, 63, v0")
    k(f"v_lshrrev_b32 v{T0}, 6, v0")
    k(f"v_readfirstlane_b32 s{SWV}, v{T0}")
    k("s_and_b32 s3, s2, 7")
    k("s_lshr_b32 s27, s2, 3")
    k(f"s_and_b32 s{sTB}, s3, 3"); k(f"s_lshl_b32 s{sTB}, s{sTB}, 2")
    k("s_and_b32 s28, s27, 3"); k(f"s_add_u32 s{sTB}, s{sTB}, s28")
    k(f"s_lshr_b32 s{sHD}, s3, 2"); k(f"s_lshl_b32 s{sHD}, s{sHD}, 3")
    k("s_lshr_b32 s28, s27, 2"); k(f"s_add_u32 s{sHD}, s{sHD}, s28")
    k(f"v_and_b32 v{T1}, 15, v{LANE}")
    k(f"v_mul_u32_u24 v{VXA}, 896, v{T1}")
    k(f"v_lshrrev_b32 v{T1}, 4, v{LANE}")
    k(f"v_xor_b32 v{T2}, v{T1}, v{T0}")
    k(f"v_and_b32 v{T2}, 1, v{T2}")
    k(f"v_lshl_add_u32 v{VXA}, v{T2}, 5, v{VXA}")
    k(f"v_lshrrev_b32 v{T2}, 5, v{LANE}")
    k(f"v_lshl_add_u32 v{VXA}, v{T2}, 4, v{VXA}")
    k(f"v_lshrrev_b32 v{T2}, 2, v{LANE}")
    k(f"v_mul_u32_u24 v{VWA}, 2688, v{T2}")
    k(f"v_and_b32 v{T2}, 3, v{LANE}")
    k(f"v_lshl_add_u32 v{VWA}, v{T2}, 4, v{VWA}")
    k(f"s_lshl_b32 s28, s{sTB}, 2"); k(f"s_add_u32 s28, s28, s{SWV}")
    k("s_mul_i32 s29, s28, 28672")
    k(f"s_lshr_b32 s34, s{SWV}, 1"); k("s_lshl_b32 s34, s34, 6")
    k("s_add_u32 s30, s29, s34"); k("s_add_u32 s31, s30, 14336")
    k("s_xor_b32 s34, s34, 64")
    k("s_add_u32 s32, s29, s34"); k("s_add_u32 s33, s32, 14336")
    k(f"s_mul_i32 s35, s{SWV}, {16*2688}"); k(f"s_mul_i32 s34, s{sHD}, 56"); k("s_add_u32 s35, s35, s34")
    k(f"s_mul_i32 s36, s{SWV}, {KS}")
    k("s_waitcnt lgkmcnt(0)")
    srd_fin(k, SX, 2048*896); srd_fin(k, SW, 448*2688); srd_fin(k, SWS, 268435456); srd_fin(k, SD, 256)
    for i in range(4): k(f"v_mov_b32 v{G0+i}, 0")
    k(f"v_lshlrev_b32 v{T3}, 4, v0")
    k(f"s_lshl_b32 s37, s{sHD}, 12")
    k(f"s_cmp_lg_u32 s{sTB}, 0"); k("s_cbranch_scc1 L_p1_nz")
    k.cond_begin()
    k(f"buffer_store_dwordx4 {v(G0,4)}, v{T3}, {s(SWS,4)}, s37 offen sc1")
    k.cond_end()
    k("L_p1_nz:")
    for c in range(7):
        for m in range(3):
            k(f"s_add_u32 m0, s36, {c*4*KS + m*1024 - m*896}")
            k(f"buffer_load_dwordx4 v{VWA}, {s(SW,4)}, s35 offen offset:{m*896} lds")
        k(f"s_add_u32 s35, s35, {64*2688}")
        for P in range(2):
            for R in range(2):
                k(f"buffer_load_dwordx4 {v(X+16*c+8*P+4*R,4)}, v{VXA}, {s(SX,4)}, s{30+2*P+R} offen offset:{c*128}")
    for i in range(4): k(f"v_mov_b32 v{G1+i}, {ONES}")
    k(f"ds_write_b128 v{T3}, {v(G0,4)} offset:0") if False else None
    k(f"v_add_u32 v{T2}, {L_KV}, v{T3}")
    k(f"ds_write_b128 v{T2}, {v(G0,4)}")
    k(f"v_lshlrev_b32 v{T2}, 2, v0"); k(f"v_add_u32 v{T2}, {L_CS}, v{T2}")
    k(f"ds_write_b32 v{T2}, v{G0}")
    k(f"v_lshrrev_b32 v{T2}, 5, v0"); k(f"v_mul_u32_u24 v{T2}, {KS}, v{T2}")
    k(f"v_and_b32 v{T3}, 31, v0"); k(f"v_lshl_add_u32 v{T2}, v{T3}, 4, v{T2}")
    k(f"ds_write_b128 v{T2}, {v(G1,4)} offset:3072")
    k(f"ds_write_b128 v{T2}, {v(G1,4)} offset:{3072+8*KS}")
    k(f"ds_write_b128 v{T2}, {v(G1,4)} offset:{3072+16*KS}") if 3072+16*KS < 65536 else None
    k(f"v_add_u32 v{T2}, {20*KS}, v{T2}")
    k(f"ds_write_b128 v{T2}, {v(G1,4)} offset:3072")
    k(f"v_lshrrev_b32 v{T1}, 5, v{LANE}"); k(f"v_lshlrev_b32 v{T1}, 9, v{T1}")
    k(f"v_bfe_u32 v{T2}, v{LANE}, 2, 2"); k(f"v_lshlrev_b32 v{T2}, 6, v{T2}")
    k(f"v_bfe_u32 v{T3}, v{LANE}, 4, 1"); k(f"v_lshl_add_u32 v{T2}, v{T3}, 5, v{T2}")
    k(f"v_and_b32 v{T3}, 3, v{LANE}"); k(f"v_lshl_add_u32 v{T2}, v{T3}, 3, v{T2}")
    k(f"v_and_b32 v{T3}, 19, v{LANE}"); k(f"v_cmp_eq_u32 vcc, 19, v{T3}")
    k(f"v_mov_b32 v{T3}, 3072")
    k(f"v_cndmask_b32 v{T3}, v{T1}, v{T3}")
    k(f"v_add_u32 v{T1}, v{T1}, v{T2}")
    k(f"v_add_u32 v{T3}, v{T3}, v{T2}")
    for i in range(4):
        k(f"s_xor_b32 s34, s{SWV}, {i}"); k(f"s_mul_i32 s34, s34, {KS}")
        k(f"v_add_u32 v{AQ+i}, s34, v{T3}"); k(f"v_add_u32 v{AK+i}, s34, v{T1}")
    k(f"v_and_b32 v{T1}, 15, v{LANE}"); k(f"v_bfe_u32 v{T2}, v{LANE}, 4, 1"); k(f"v_sub_u32 v{T1}, v{T1}, v{T2}")
    for m in range(3):
        k(f"v_cmp_eq_u32 vcc, {2*m}, v{T1}")
        for i in range(4): k(f"v_cndmask_b32 v{SEL+4*m+i}, v{G0}, v{G1}")
    def rd(c, i):
        cc = c if c < 4 else c - 4
        for m in range(3):
            ar = (AQ if m == 0 else AK) + i
            for hh in range(2):
                k(f"ds_read_b64_tr_b16 {v(WF+12*i+4*m+2*hh,2)}, v{ar} offset:{cc*4*KS + m*1024 + hh*256}")
    for c in range(7):
        if c == 4:
            for i in range(8): k(f"v_add_u32 v{AQ+i}, {16*KS}, v{AQ+i}")
        k(f"s_waitcnt vmcnt({7*(6-c)+4}) lgkmcnt(0)")
        k("s_barrier")
        if c == 0:
            k(f"s_or_b32 s34, s{sTB}, s{SWV}"); k("s_cmp_lg_u32 s34, 0"); k("s_cbranch_scc1 L_p1_nf")
            k.cond_begin()
            k("s_mov_b64 exec, 1")
            k(f"s_lshl_b32 s34, s{sHD}, 2")
            k(f"buffer_store_dword v{G1}, off, {s(SD,4)}, s34 sc1")
            k("s_mov_b64 exec, -1")
            k.cond_end()
            k("L_p1_nf:")
        rd(c, 0); rd(c, 1)
        xb = X + 16*c
        z = (c == 0)
        for P in range(2):
            r0, r1 = xb + 8*P, xb + 8*P + 4
            zz = z and P == 0
            k(f"{MF16} {v(G0,4)}, {v(r0,4)}, {v(r0,4)}, {'0' if zz else v(G0,4)}")
            k(f"{MF16} {v(G1,4)}, {v(r1,4)}, {v(r1,4)}, {'0' if zz else v(G1,4)}")
            for i in range(4): k(f"v_permlane16_swap_b32 v{r0+i}, v{r1+i}")
        for i in range(4):
            if i < 2: rd(c, i+2)
            zz = z and i == 0
            xf = v(xb+4*i,4); wf = WF + 12*i
            k(f"{MF32} {v(KK,16)}, {xf}, {v(wf+4,4)}, {'0' if zz else v(KK,16)}")
            k(f"{MF32} {v(VV,16)}, {xf}, {v(wf+8,4)}, {'0' if zz else v(VV,16)}")
            k(f"{MF32} {v(Q,16)}, {v(wf,4)}, {xf}, {'0' if zz else v(Q,16)}")
            if i == 0:
                for m in range(3):
                    k(f"{MF16} {v(CS,4)}, {v(SEL+4*m,4)}, {v(wf+4*m,4)}, {'0' if (z and m == 0) else v(CS,4)}")
    FL = 95
    k(f"s_lshl_b32 s38, s{sHD}, 2")
    k(f"buffer_load_dword v{FL}, off, {s(SD,4)}, s38 sc1")
    k(f"v_lshrrev_b32 v{T1}, 4, v{LANE}"); k(f"v_lshlrev_b32 v{T1}, 8, v{T1}")
    k(f"v_and_b32 v{T2}, 15, v{LANE}"); k(f"v_lshl_add_u32 v{T1}, v{T2}, 2, v{T1}")
    k(f"v_add_u32 v{T1}, {L_CS}, v{T1}")
    for r in range(4): k(f"ds_add_f32 v{T1}, v{CS+r} offset:{r*64}")
    k("s_mov_b32 s40, 0x22222222"); k("s_mov_b32 s41, s40")
    k("s_mov_b32 s42, 0x44444444"); k("s_mov_b32 s43, s42")
    k("s_mov_b32 s44, 0x88888888"); k("s_mov_b32 s45, s44")
    for G in (G0, G1):
        for r in range(1, 4): k(f"v_cndmask_b32 v{G}, v{G}, v{G+r}, {s(38+2*r,2)}")
    k(f"s_lshl_b32 s34, s{SWV}, 9"); k(f"s_add_u32 s34, s34, {L_ST}")
    k(f"v_lshl_add_u32 v{T2}, v{T2}, 2, s34")
    k("s_mov_b32 exec_lo, 0x00f0000f"); k("s_mov_b32 exec_hi, 0xf0000f00")
    k(f"ds_write_b32 v{T2}, v{G0}"); k(f"ds_write_b32 v{T2}, v{G1} offset:64")
    k("s_mov_b64 exec, -1")
    k("s_waitcnt lgkmcnt(0)"); k("s_barrier")
    SXX, CK, CV, MEAN, RSTD = 64, 65, 66, 67, 68
    CQ, MR, RR = 96, 112, 128
    k(f"v_and_b32 v{T1}, 31, v{LANE}"); k(f"v_lshlrev_b32 v{T1}, 2, v{T1}")
    k(f"v_add_u32 v{T2}, s34, v{T1}")
    k(f"ds_read_b32 v{SXX}, v{T2}")
    k(f"v_add_u32 v{T1}, {L_CS}, v{T1}")
    k(f"ds_read_b32 v{CK}, v{T1} offset:128"); k(f"ds_read_b32 v{CV}, v{T1} offset:256")
    k(f"v_lshrrev_b32 v{T3}, 5, v{LANE}"); k(f"v_lshlrev_b32 v{T3}, 4, v{T3}")
    k(f"v_add_u32 v{T1}, {L_CS}, v{T3}")
    for q in range(4): k(f"ds_read_b128 {v(CQ+4*q,4)}, v{T1} offset:{q*32}")
    k(f"v_mov_b32 v{MEAN}, v{Q+12}"); k(f"v_mov_b32 v{RSTD}, v{Q+12}")
    k(f"v_permlane32_swap_b32 v{RSTD}, v{MEAN}")
    k(f"v_mul_f32 v{MEAN}, {INVD}, v{MEAN}")
    k(f"v_mul_f32 v{RSTD}, v{MEAN}, v{MEAN}")
    k(f"v_fma_f32 v{RSTD}, v{SXX}, s46, -v{RSTD}") if False else None
    k(f"v_mul_f32 v{SXX}, {INVD}, v{SXX}")
    k(f"v_sub_f32 v{RSTD}, v{SXX}, v{RSTD}")
    k(f"v_max_f32 v{RSTD}, 0, v{RSTD}")
    k(f"v_add_f32 v{RSTD}, {EPS5}, v{RSTD}")
    k(f"v_rsq_f32 v{RSTD}, v{RSTD}")
    k("s_mov_b32 s40, 0"); k("s_mov_b32 s41, -1")
    k(f"v_cndmask_b32 v{SXX}, v{MEAN}, v{RSTD}, s[40:41]")
    k(f"v_lshl_add_u32 v{T2}, v{LANE}, 2, s34")
    k(f"ds_write_b32 v{T2}, v{SXX} offset:128")
    k(f"v_add_u32 v{T3}, s34, v{T3}")
    for q in range(4): k(f"ds_read_b128 {v(MR+4*q,4)}, v{T3} offset:{128+q*32}")
    for q in range(4): k(f"ds_read_b128 {v(RR+4*q,4)}, v{T3} offset:{256+q*32}")
    k(f"v_mov_b32 v{SEL}, {EPS6}")
    TM = 144
    def phi(acc, mean, cs, rstd, tmp):
        k(f"v_fma_f32 v{acc}, -v{mean}, v{cs}, v{acc}")
        k(f"v_fma_f32 v{acc}, v{acc}, v{rstd}, v{SEL}")
        k(f"v_mul_f32 v{tmp}, {LOG2E}, v{acc}")
        k(f"v_exp_f32_e64 v{tmp}, v{tmp} clamp")
        k(f"v_max_f32 v{acc}, v{acc}, v{SEL}")
    PK, PV, PQ = 160, 168, 176
    for r in range(16): phi(KK+r, MR+r, CK, RR+r, TM+r)
    for r in range(16): k(f"v_add_f32 v{KK+r}, v{KK+r}, v{TM+r}")
    for r in range(8): k(f"v_cvt_pk_bf16_f32 v{PK+r}, v{KK+2*r}, v{KK+2*r+1}")
    for r in range(16):
        k(f"v_fma_f32 v{VV+r}, -v{MR+r}, v{CV}, v{VV+r}")
        k(f"v_mul_f32 v{VV+r}, v{VV+r}, v{RR+r}")
    for r in range(8): k(f"v_cvt_pk_bf16_f32 v{PV+r}, v{VV+2*r}, v{VV+2*r+1}")
    k("s_mov_b32 exec_lo, 0x30000000"); k("s_mov_b32 exec_hi, 0x30000000")
    for r in range(8): k(f"v_mov_b32 v{PV+r}, {ONES}")
    k("s_mov_b64 exec, -1")
    k(f"{MF32} {v(KK,16)}, {v(PK,4)}, {v(PV,4)}, 0")
    k(f"{MF32} {v(KK,16)}, {v(PK+4,4)}, {v(PV+4,4)}, {v(KK,16)}")
    k(f"v_and_b32 v{T1}, 31, v{LANE}")
    k(f"v_subrev_u32 v{T2}, 24, v{T1}"); k(f"v_lshlrev_b32 v{T2}, 2, v{T2}")
    k(f"v_mov_b32 v{T3}, 0x62735410")
    k(f"v_lshrrev_b32 v{T3}, v{T2}, v{T3}"); k(f"v_and_b32 v{T3}, 7, v{T3}"); k(f"v_add_u32 v{T3}, 24, v{T3}")
    k(f"v_cmp_le_u32 vcc, 24, v{T1}")
    k(f"v_cndmask_b32 v{T1}, v{T1}, v{T3}")
    k(f"v_and_b32 v{T2}, 32, v{LANE}"); k(f"v_add_u32 v{T1}, v{T1}, v{T2}")
    k(f"v_lshlrev_b32 v{T1}, 4, v{T1}"); k(f"v_add_u32 v{T1}, {L_KV}, v{T1}")
    for r in range(16): phi(Q+r, MEAN, CQ+r, RSTD, TM+r)
    for r in range(16): k(f"ds_add_f32 v{T1}, v{KK+r} offset:{(r>>2)*1024 + (r&3)*4}")
    for r in range(16): k(f"v_add_f32 v{Q+r}, v{Q+r}, v{TM+r}")
    for r in range(8): k(f"v_cvt_pk_bf16_f32 v{PQ+r}, v{Q+2*r}, v{Q+2*r+1}")
    k("s_mov_b32 exec_lo, 0")
    k(f"v_mov_b32 v{PQ+6}, 0"); k(f"v_mov_b32 v{PQ+7}, 0")
    k("s_mov_b64 exec, -1")
    k(f"s_lshl_b32 s39, s28, 4"); k(f"s_add_u32 s39, s39, s{sHD}"); k("s_lshl_b32 s39, s39, 11")
    k(f"s_add_u32 s39, s39, {WS_PQ}")
    k(f"v_lshlrev_b32 v{T2}, 4, v{LANE}")
    k(f"buffer_store_dwordx4 {v(PQ,4)}, v{T2}, {s(SWS,4)}, s39 offen sc1")
    k(f"buffer_store_dwordx4 {v(PQ+4,4)}, v{T2}, {s(SWS,4)}, s39 offen offset:1024 sc1")
    k("s_waitcnt lgkmcnt(0)"); k("s_barrier")
    k(f"s_lshl_b32 s34, s{SWV}, 10")
    k(f"v_lshl_add_u32 v{T2}, v{LANE}, 2, s34")
    k(f"v_add_u32 v{T3}, {L_KV}, v{T2}")
    for i in range(4): k(f"ds_read_b32 v{TM+i}, v{T3} offset:{i*256}")
    k("s_mov_b32 s40, 0x100000")
    k("L_p1_poll:")
    k("s_waitcnt vmcnt(0)")
    k(f"v_readfirstlane_b32 s41, v{FL}")
    k("s_cmp_lg_u32 s41, 0"); k("s_cbranch_scc1 L_p1_go")
    k(f"buffer_load_dword v{FL}, off, {s(SD,4)}, s38 sc1")
    k("s_sub_u32 s40, s40, 1"); k("s_cmp_lg_u32 s40, 0"); k("s_cbranch_scc1 L_p1_poll")
    k("L_p1_go:")
    k("s_waitcnt vmcnt(0)")
    for i in range(4): k(f"buffer_atomic_add_f32 v{TM+i}, v{T2}, {s(SWS,4)}, s37 offen offset:{i*256} sc1")
    k("L_end_p1:")
    return k.finalize(), L_ST + 2048

def tile24(k):
    k("s_and_b32 s3, s2, 7"); k("s_lshr_b32 s27, s2, 3")
    k("s_lshl_b32 s25, s3, 2"); k("s_and_b32 s28, s27, 3"); k("s_add_u32 s25, s25, s28")
    k("s_lshr_b32 s26, s27, 2")

def wrow_dma_addr(k, dst, LANE, T1, T2, rowbytes):
    k(f"v_lshrrev_b32 v{T1}, 3, v{LANE}"); k(f"v_mul_u32_u24 v{dst}, {rowbytes}, v{T1}")
    k(f"v_bfe_u32 v{T1}, v{LANE}, 4, 1"); k(f"v_lshlrev_b32 v{T1}, 2, v{T1}")
    k(f"v_and_b32 v{T2}, 7, v{LANE}"); k(f"v_xor_b32 v{T1}, v{T1}, v{T2}")
    k(f"v_lshl_add_u32 v{dst}, v{T1}, 4, v{dst}")

def exchange_and_own(k, ACC, LANE, T1, L_EX, TMP):
    k(f"v_lshlrev_b32 v{T1}, 4, v{LANE}")
    for i in range(1, 4):
        k(f"s_xor_b32 s34, s{SWV}, {i}"); k("s_mul_i32 s34, s34, 12288"); k(f"s_add_u32 s34, s34, {L_EX + (i-1)*4096}")
        k(f"v_add_u32 v{TMP+i}, s34, v{T1}")
        for q in range(4): k(f"ds_write_b128 v{TMP+i}, {v(ACC+16*i+4*q,4)} offset:{q*1024}")
    k(f"s_mul_i32 s34, s{SWV}, 12288"); k(f"s_add_u32 s34, s34, {L_EX}")
    k(f"v_add_u32 v{T1}, s34, v{T1}")
    k("s_waitcnt lgkmcnt(0)"); k("s_barrier")
    for i in range(1, 4):
        for q in range(4): k(f"ds_read_b128 {v(ACC+16*i+4*q,4)}, v{T1} offset:{(i-1)*4096+q*1024}")
    for i in range(1, 4):
        for r in range(0, 16, 2):
            k(f"v_pk_add_f32 {v(ACC+r,2)}, {v(ACC+r,2)}, {v(ACC+16*i+r,2)}")

def add_packed(k, ACC, RES, T1):
    for r in range(8):
        k(f"v_lshlrev_b32 v{T1}, 16, v{RES+r}"); k(f"v_add_f32 v{ACC+2*r}, v{ACC+2*r}, v{T1}")
        k(f"v_and_b32 v{T1}, 0xffff0000, v{RES+r}"); k(f"v_add_f32 v{ACC+2*r+1}, v{ACC+2*r+1}, v{T1}")

def phase2():
    k = K()
    common_head(k, "p2", 28)
    srd(k, SX, 0); srd(k, SW, 16); srd(k, SWS, 72)
    LANE, T0, T1, T2, T3 = 1, 2, 3, 4, 5
    VWA, VL16, A0, A1, A2, A3 = 6, 7, 8, 9, 10, 11
    XR, ACC, KVF, PQ, KVB, WF, OD, OP = 16, 24, 88, 152, 216, 88, 120, 136
    L_EX = 57344
    k(f"v_and_b32 v{LANE}, 63, v0"); k(f"v_lshrrev_b32 v{T0}, 6, v0")
    k(f"v_readfirstlane_b32 s{SWV}, v{T0}")
    tile24(k)
    wrow_dma_addr(k, VWA, LANE, T1, T2, 896)
    k(f"v_lshlrev_b32 v{VL16}, 4, v{LANE}")
    k(f"s_mul_i32 s35, s{SWV}, {112*896}"); k("s_lshl_b32 s34, s26, 7"); k("s_add_u32 s35, s35, s34")
    k(f"s_mul_i32 s36, s{SWV}, 14336")
    k(f"s_lshl_b32 s30, s{SWV}, 14")
    k(f"s_lshr_b32 s34, s{SWV}, 1"); k("s_lshl_b32 s29, s25, 1"); k("s_add_u32 s29, s29, s34")
    k(f"s_lshl_b32 s33, s{SWV}, 13"); k(f"s_add_u32 s33, s33, {WS_PQ}")
    k("s_lshl_b32 s31, s29, 15"); k("s_add_u32 s31, s31, s33")
    k("s_xor_b32 s32, s29, 1"); k("s_lshl_b32 s32, s32, 15"); k("s_add_u32 s32, s32, s33")
    k("s_waitcnt lgkmcnt(0)")
    srd_fin(k, SX, 2048*896); srd_fin(k, SW, 448*896); srd_fin(k, SWS, 268435456)
    for hd in range(4):
        for q in range(4):
            k(f"buffer_load_dwordx4 {v(KVF+16*hd+4*q,4)}, v{VL16}, {s(SWS,4)}, s30 offen offset:{q*1024}")
        k("s_add_u32 s30, s30, 4096")
        for t in range(2):
            for ks in range(2):
                k(f"buffer_load_dwordx4 {v(PQ+16*hd+8*t+4*ks,4)}, v{VL16}, {s(SWS,4)}, s{31+t} offen offset:{(hd&1)*2048+ks*1024}")
        if hd == 1: k("s_add_u32 s31, s31, 4096"); k("s_add_u32 s32, s32, 4096")
    for i in range(14):
        k(f"s_add_u32 m0, s36, {i*1024}")
        k(f"buffer_load_dwordx4 v{VWA}, {s(SW,4)}, s35 offen lds")
        k(f"s_add_u32 s35, s35, {8*896}")
    k(f"v_and_b32 v{T1}, 31, v{LANE}"); k(f"v_mul_u32_u24 v{T1}, 896, v{T1}")
    k(f"v_lshrrev_b32 v{T2}, 5, v{LANE}"); k(f"v_lshl_add_u32 v{T1}, v{T2}, 4, v{T1}")
    k("s_mul_i32 s37, s29, 28672"); k("s_lshl_b32 s34, s26, 7"); k("s_add_u32 s37, s37, s34")
    k(f"s_and_b32 s38, s{SWV}, 1"); k("s_lshl_b32 s34, s38, 6"); k("s_add_u32 s37, s37, s34")
    k(f"buffer_load_dwordx4 {v(XR,4)}, v{T1}, {s(SX,4)}, s37 offen")
    k(f"buffer_load_dwordx4 {v(XR+4,4)}, v{T1}, {s(SX,4)}, s37 offen offset:32")
    k(f"v_bfe_u32 v{T1}, v{LANE}, 4, 1"); k(f"v_lshlrev_b32 v{T1}, 5, v{T1}")
    k(f"v_and_b32 v{T2}, 1, v{LANE}"); k(f"v_lshl_add_u32 v{T1}, v{T2}, 4, v{T1}")
    k(f"v_bfe_u32 v{T2}, v{LANE}, 1, 1"); k(f"v_lshl_add_u32 v{T1}, v{T2}, 3, v{T1}")
    k(f"v_add_u32 v{T1}, s36, v{T1}")
    k(f"v_bfe_u32 v{T2}, v{LANE}, 2, 2"); k(f"v_lshrrev_b32 v{T3}, 5, v{LANE}")
    k(f"v_lshl_add_u32 v{A0}, v{T3}, 2, v{T2}"); k(f"v_lshl_add_u32 v{A0}, v{A0}, 7, v{T1}")
    k(f"v_bfe_u32 v{T2}, v{LANE}, 3, 1"); k(f"v_xor_b32 v{T2}, s38, v{T2}")
    k(f"v_lshl_add_u32 v{A0}, v{T2}, 6, v{A0}")
    k(f"v_xor_b32 v{A1}, 64, v{A0}")
    k(f"v_bfe_u32 v{T2}, v{LANE}, 2, 1"); k(f"v_lshl_add_u32 v{A2}, v{T3}, 1, v{T2}")
    k(f"v_lshl_add_u32 v{A2}, v{A2}, 7, v{T1}")
    k(f"v_xor_b32 v{T2}, s38, v{T3}"); k(f"v_lshl_add_u32 v{A2}, v{T2}, 6, v{A2}")
    k(f"v_xor_b32 v{A3}, 64, v{A2}")
    for hd in range(4):
        for r in range(8): k(f"v_cvt_pk_bf16_f32 v{KVB+8*hd+r}, v{KVF+16*hd+2*r}, v{KVF+16*hd+2*r+1}")
    k("s_waitcnt vmcnt(2)")
    k(f"v_mov_b32 v{OP+7}, 0"); k(f"v_mov_b32 v{OP+15}, 0")
    for hd in range(4):
        wf = WF + 16*(hd & 1)
        for cg in range(2):
            ar, al = (A0, A2) if cg == 0 else (A1, A3)
            b = hd*3584
            k(f"ds_read_b64_tr_b16 {v(wf+8*cg,2)}, v{ar} offset:{b}")
            k(f"ds_read_b64_tr_b16 {v(wf+8*cg+2,2)}, v{ar} offset:{b+1024}")
            k(f"ds_read_b64_tr_b16 {v(wf+8*cg+4,2)}, v{ar} offset:{b+2048}")
            k(f"ds_read_b64_tr_b16 {v(wf+8*cg+6,2)}, v{al} offset:{b+3072}")
        for t in range(2):
            k(f"{MF32} {v(OD,16)}, {v(KVB+8*hd,4)}, {v(PQ+16*hd+8*t,4)}, 0")
            k(f"{MF32} {v(OD,16)}, {v(KVB+8*hd+4,4)}, {v(PQ+16*hd+8*t+4,4)}, {v(OD,16)}")
            k(f"v_add_f32 v{T1}, {EPS6}, v{OD+15}")
            k(f"v_rcp_f32 v{T1}, v{T1}")
            for r in range(14): k(f"v_mul_f32 v{OD+r}, v{OD+r}, v{T1}")
            op = OP + 8*t
            for r in range(7): k(f"v_cvt_pk_bf16_f32 v{op+r}, v{OD+2*r}, v{OD+2*r+1}")
            for cg in range(2):
                acc = v(ACC+16*(2*t+cg),16)
                k(f"{MF32} {acc}, {v(wf+8*cg,4)}, {v(op,4)}, {'0' if hd == 0 else acc}")
                k(f"{MF32} {acc}, {v(wf+8*cg+4,4)}, {v(op+4,4)}, {acc}")
    exchange_and_own(k, ACC, LANE, T1, L_EX, 11)
    add_packed(k, ACC, XR, T1)
    HP = ACC + 16
    for r in range(8): k(f"v_cvt_pk_bf16_f32 v{HP+r}, v{ACC+2*r}, v{ACC+2*r+1}")
    k("s_mul_i32 s39, s29, 28"); k("s_lshl_b32 s34, s26, 2"); k("s_add_u32 s39, s39, s34")
    k("s_lshl_b32 s34, s38, 1"); k("s_add_u32 s39, s39, s34"); k("s_lshl_b32 s39, s39, 10")
    k(f"s_add_u32 s39, s39, {WS_H}")
    k(f"buffer_store_dwordx4 {v(HP,4)}, v{VL16}, {s(SWS,4)}, s39 offen sc1")
    k(f"buffer_store_dwordx4 {v(HP+4,4)}, v{VL16}, {s(SWS,4)}, s39 offen offset:1024 sc1")
    S1, S2 = 12, 13
    k(f"s_mov_b32 s40, {ONES}")
    k(f"v_mov_b32 v{S1}, 0"); k(f"v_mov_b32 v{S2}, 0")
    for r in range(8):
        k(f"v_dot2c_f32_bf16 v{S1}, s40, v{HP+r}"); k(f"v_dot2c_f32_bf16 v{S2}, v{HP+r}, v{HP+r}")
    k(f"v_mov_b32 v14, v{S1}"); k(f"v_mov_b32 v15, v{S2}")
    k(f"v_permlane32_swap_b32 v{S1}, v14"); k(f"v_permlane32_swap_b32 v{S2}, v15")
    k(f"v_add_f32 v{S1}, v{S1}, v14"); k(f"v_add_f32 v{S2}, v{S2}, v15")
    k("s_mul_i32 s39, s29, 14"); k("s_lshl_b32 s34, s26, 1"); k("s_add_u32 s39, s39, s34"); k("s_add_u32 s39, s39, s38")
    k("s_lshl_b32 s39, s39, 8"); k(f"s_add_u32 s39, s39, {WS_ST}")
    k(f"v_lshlrev_b32 v{T1}, 3, v{LANE}")
    k("s_mov_b32 exec_hi, 0")
    k(f"buffer_store_dwordx2 {v(S1,2)}, v{T1}, {s(SWS,4)}, s39 offen sc1")
    k("L_end_p2:")
    return k.finalize(), L_EX + 49152

def phase3():
    k = K()
    common_head(k, "p3", 28)
    srd(k, SW, 32); srd(k, SW2, 40); srd(k, SWS, 72)
    LANE, T0, T1, T2, T3 = 1, 2, 3, 4, 5
    VG, VU, VL16 = 6, 7, 8
    AD = 16
    SEL, CS, STT = 32, 48, 52
    WF, ACC = 80, 128
    L_CS = 114688
    k(f"v_and_b32 v{LANE}, 63, v0"); k(f"v_lshrrev_b32 v{T0}, 6, v0")
    k(f"v_readfirstlane_b32 s{SWV}, v{T0}")
    k("s_and_b32 s3, s2, 7"); k("s_lshr_b32 s27, s2, 3")
    k("s_and_b32 s25, s3, 1"); k("s_lshl_b32 s25, s25, 2"); k("s_and_b32 s28, s27, 3"); k("s_add_u32 s25, s25, s28")
    k("s_lshr_b32 s26, s3, 1"); k("s_mul_i32 s26, s26, 7"); k("s_lshr_b32 s28, s27, 2"); k("s_add_u32 s26, s26, s28")
    k(f"v_lshrrev_b32 v{T1}, 3, v{LANE}"); k(f"v_mul_u32_u24 v{VG}, 3584, v{T1}")
    k(f"v_bfe_u32 v{T1}, v{LANE}, 4, 1"); k(f"v_lshlrev_b32 v{T1}, 1, v{T1}")
    k(f"v_and_b32 v{T2}, 7, v{LANE}"); k(f"v_xor_b32 v{T1}, v{T1}, v{T2}")
    k(f"v_xor_b32 v{T2}, 4, v{T1}")
    k(f"v_lshl_add_u32 v{VU}, v{T2}, 4, v{VG}"); k(f"v_lshl_add_u32 v{VG}, v{T1}, 4, v{VG}")
    k(f"v_lshlrev_b32 v{VL16}, 4, v{LANE}")
    k(f"s_mul_i32 s35, s{SWV}, {16*3584}"); k("s_lshl_b32 s34, s26, 7"); k("s_add_u32 s35, s35, s34")
    k(f"s_add_u32 s37, s35, {8*3584}")
    k(f"s_lshl_b32 s36, s{SWV}, 11")
    k("s_lshl_b32 s29, s25, 3"); k(f"s_lshl_b32 s34, s{SWV}, 1"); k("s_add_u32 s29, s29, s34")
    k("s_mul_i32 s30, s29, 28672"); k(f"s_add_u32 s30, s30, {WS_H}")
    for i in range(4):
        k(f"s_xor_b32 s34, s{SWV}, {i}"); k("s_lshl_b32 s34, s34, 10")
        k(f"s_add_u32 s{40+i}, s30, s34"); k(f"s_add_u32 s{44+i}, s{40+i}, 28672")
    k("s_waitcnt lgkmcnt(0)")
    srd_fin(k, SW, 448*3584); srd_fin(k, SW2, 448*3584); srd_fin(k, SWS, 268435456)
    def issue(c):
        for m in range(2):
            for j in range(2):
                k(f"s_add_u32 m0, s36, {m*57344 + c*8192 + j*1024}")
                k(f"buffer_load_dwordx4 v{VU if m else VG}, {s(SW2 if m else SW,4)}, s{37 if j else 35} offen lds")
        k(f"s_add_u32 s35, s35, {64*3584}"); k(f"s_add_u32 s37, s37, {64*3584}")
        for i in range(4):
            for t in range(2):
                k(f"buffer_load_dwordx4 {a(32*c+8*i+4*t,4)}, v{VL16}, {s(SWS,4)}, s{40+4*t+i} offen")
        for i in range(8): k(f"s_add_u32 s{40+i}, s{40+i}, 4096")
    for c in range(4): issue(c)
    k(f"v_mov_b32 v{T3}, 0"); k(f"v_lshlrev_b32 v{T2}, 2, v0"); k(f"v_add_u32 v{T2}, {L_CS}, v{T2}")
    k(f"ds_write_b32 v{T2}, v{T3}")
    k(f"v_bfe_u32 v{T1}, v{LANE}, 4, 1"); k(f"v_mul_u32_u24 v{T0}, 57344, v{T1}")
    k(f"v_lshrrev_b32 v{T2}, 5, v{LANE}"); k(f"v_lshl_add_u32 v{T0}, v{T2}, 10, v{T0}")
    k(f"v_bfe_u32 v{T2}, v{LANE}, 2, 2"); k(f"v_lshl_add_u32 v{T0}, v{T2}, 7, v{T0}")
    k(f"v_and_b32 v{T2}, 1, v{LANE}"); k(f"v_lshl_add_u32 v{T0}, v{T2}, 4, v{T0}")
    k(f"v_bfe_u32 v{T2}, v{LANE}, 1, 1"); k(f"v_lshl_add_u32 v{T0}, v{T2}, 3, v{T0}")
    k(f"v_bfe_u32 v{T2}, v{LANE}, 3, 2"); k(f"v_lshl_add_u32 v{T0}, v{T2}, 5, v{T0}")
    for i in range(4):
        k(f"s_xor_b32 s34, s{SWV}, {i}"); k("s_lshl_b32 s34, s34, 11")
        for b in range(4):
            k(f"v_xor_b32 v{AD+4*i+b}, {b*32}, v{T0}"); k(f"v_add_u32 v{AD+4*i+b}, s34, v{AD+4*i+b}")
    k(f"v_and_b32 v{T1}, 15, v{LANE}"); k(f"v_bfe_u32 v{T2}, v{LANE}, 4, 1"); k(f"v_sub_u32 v{T1}, v{T1}, v{T2}")
    k(f"v_mov_b32 v{T2}, {ONES}")
    for b in range(4):
        k(f"v_cmp_eq_u32 vcc, {2*b}, v{T1}")
        for i in range(4): k(f"v_cndmask_b32 v{SEL+4*b+i}, v{T3}, v{T2}")
    def rd(c, i):
        for b in range(4):
            for hh in range(2):
                k(f"ds_read_b64_tr_b16 {v(WF+16*(i%3)+4*b+2*hh,2)}, v{AD+4*(i&3)+b} offset:{c*8192 + hh*512}")
    nis = 4
    it = 0
    for c in range(7):
        after = 12*(nis-1-c) + 8
        k(f"s_waitcnt vmcnt({after}) lgkmcnt(0)")
        k("s_barrier")
        rd_ = lambda i: [k(f"ds_read_b64_tr_b16 {v(WF+16*((it+i)%3)+4*b+2*hh,2)}, v{AD+4*i+b} offset:{c*8192 + hh*512}") for b in range(4) for hh in range(2)]
        rd_(0)
        if nis < 7: issue(nis); nis += 1
        if c == 3:
            k("s_mul_i32 s39, s29, 3584"); k(f"s_add_u32 s39, s39, {WS_ST}")
            k(f"v_and_b32 v{T1}, 31, v{LANE}"); k(f"v_lshlrev_b32 v{T1}, 3, v{T1}")
            k(f"v_lshrrev_b32 v{T2}, 5, v{LANE}"); k(f"v_mul_u32_u24 v{T2}, 1792, v{T2}"); k(f"v_add_u32 v{T1}, v{T1}, v{T2}")
        for i in range(4):
            if i < 3: rd_(i+1)
            wf = WF + 16*((it+i)%3)
            for b in range(4):
                for t in range(2):
                    acc = v(ACC+64*t+16*b,16)
                    k(f"{MF32} {acc}, {v(wf+4*b,4)}, {a(32*c+8*i+4*t,4)}, {'0' if (c == 0 and i == 0) else acc}")
            if i == 0:
                for b in range(4):
                    k(f"{MF16} {v(CS,4)}, {v(SEL+4*b,4)}, {v(wf+4*b,4)}, {'0' if (c == 0 and b == 0) else v(CS,4)}")
        it += 4
    for t in range(2):
        for p in range(7):
            k(f"buffer_load_dwordx2 {v(STT+14*t+2*p,2)}, v{T1}, {s(SWS,4)}, s39 offen offset:{p*256}")
        k("s_add_u32 s39, s39, 3584")
    k(f"v_lshrrev_b32 v{T2}, 4, v{LANE}"); k(f"v_lshlrev_b32 v{T2}, 8, v{T2}")
    k(f"v_and_b32 v{T3}, 15, v{LANE}"); k(f"v_lshl_add_u32 v{T2}, v{T3}, 2, v{T2}")
    k(f"v_add_u32 v{T2}, {L_CS}, v{T2}")
    for r in range(4): k(f"ds_add_f32 v{T2}, v{CS+r} offset:{r*64}")
    k("s_waitcnt lgkmcnt(0)"); k("s_barrier")
    k(f"v_lshrrev_b32 v{T3}, 5, v{LANE}"); k(f"v_lshlrev_b32 v{T3}, 4, v{T3}"); k(f"v_add_u32 v{T3}, {L_CS}, v{T3}")
    CQ = [16, 32, 80, 96]
    for b in range(4):
        for q in range(4): k(f"ds_read_b128 {v(CQ[b]+4*q,4)}, v{T3} offset:{b*128+q*32}")
    MN, R2 = 10, 12
    for t in range(2):
        sb = STT + 14*t
        for p in range(1, 7): k(f"v_pk_add_f32 {v(sb,2)}, {v(sb,2)}, {v(sb+2*p,2)}")
        k(f"v_mov_b32 v{sb+2}, v{sb}"); k(f"v_mov_b32 v{sb+3}, v{sb+1}")
        k(f"v_permlane32_swap_b32 v{sb}, v{sb+2}"); k(f"v_permlane32_swap_b32 v{sb+1}, v{sb+3}")
        k(f"v_add_f32 v{sb}, v{sb}, v{sb+2}"); k(f"v_add_f32 v{sb+1}, v{sb+1}, v{sb+3}")
        k(f"v_mul_f32 v{MN+t}, {INVD}, v{sb}"); k(f"v_mul_f32 v{sb+1}, {INVD}, v{sb+1}")
        k(f"v_fma_f32 v{sb+1}, -v{MN+t}, v{MN+t}, v{sb+1}")
        k(f"v_max_f32 v{sb+1}, 0, v{sb+1}")
        k(f"v_add_f32 v{sb+1}, {EPS5}, v{sb+1}")
        k(f"v_rcp_f32 v{R2+t}, v{sb+1}")
    k("s_mul_i32 s39, s29, 112"); k("s_lshl_b32 s34, s26, 2"); k("s_add_u32 s39, s39, s34"); k("s_lshl_b32 s39, s39, 10")
    k(f"s_add_u32 s39, s39, {WS_HH}"); k(f"s_add_u32 s38, s39, {112*1024}")
    for t in range(2):
        for b in range(4):
            ac = ACC + 64*t + 16*b
            for r in range(16): k(f"v_fma_f32 v{ac+r}, -v{MN+t}, v{CQ[b]+r}, v{ac+r}")
            for r in range(8): k(f"v_mul_f32 v{ac+r}, v{ac+r}, v{R2+t}")
            for r in range(8): k(f"v_mul_f32 v{ac+r}, v{ac+r}, v{ac+8+r}")
            for r in range(4): k(f"v_cvt_pk_bf16_f32 v{ac+8+r}, v{ac+2*r}, v{ac+2*r+1}")
            k(f"buffer_store_dwordx4 {v(ac+8,4)}, v{VL16}, {s(SWS,4)}, s{39-t} offen offset:{b*1024} sc1")
    k("L_end_p3:")
    return k.finalize(), L_CS + 1024

def phase4():
    k = K()
    common_head(k, "p4", 28)
    srd(k, SD, 56); srd(k, SW, 48); srd(k, SWS, 72)
    LANE, T0, T1, T2, T3 = 1, 2, 3, 4, 5
    VWA, VL16, A0, A1 = 6, 7, 8, 9
    XR, ACC, WF = 16, 24, 88
    L_EX = 114688
    k(f"v_and_b32 v{LANE}, 63, v0"); k(f"v_lshrrev_b32 v{T0}, 6, v0")
    k(f"v_readfirstlane_b32 s{SWV}, v{T0}")
    tile24(k)
    wrow_dma_addr(k, VWA, LANE, T1, T2, 896)
    k(f"v_lshlrev_b32 v{VL16}, 4, v{LANE}")
    k(f"s_mul_i32 s35, s{SWV}, {448*896}"); k("s_lshl_b32 s34, s26, 7"); k("s_add_u32 s35, s35, s34")
    k(f"s_mul_i32 s36, s{SWV}, 28672")
    k(f"s_lshr_b32 s34, s{SWV}, 1"); k("s_lshl_b32 s29, s25, 1"); k("s_add_u32 s29, s29, s34")
    k(f"s_mul_i32 s33, s{SWV}, 28672"); k(f"s_add_u32 s33, s33, {WS_HH}")
    k(f"s_mul_i32 s31, s29, {112*1024}"); k("s_add_u32 s31, s31, s33")
    k("s_xor_b32 s32, s29, 1"); k(f"s_mul_i32 s32, s32, {112*1024}"); k("s_add_u32 s32, s32, s33")
    k(f"s_and_b32 s38, s{SWV}, 1")
    k("s_waitcnt lgkmcnt(0)")
    srd_fin(k, SD, 2048*896); srd_fin(k, SW, 1792*896); srd_fin(k, SWS, 268435456)
    def dma_half():
        for i in range(28):
            k(f"s_add_u32 m0, s36, {i*1024}")
            k(f"buffer_load_dwordx4 v{VWA}, {s(SW,4)}, s35 offen lds")
            k(f"s_add_u32 s35, s35, {8*896}")
    def hh_loads(k0, k1):
        for ks in range(k0, k1):
            for t in range(2):
                k(f"buffer_load_dwordx4 {a(8*ks+4*t,4)}, v{VL16}, {s(SWS,4)}, s{31+t} offen offset:{(ks&3)*1024}")
            if (ks & 3) == 3: k("s_add_u32 s31, s31, 4096"); k("s_add_u32 s32, s32, 4096")
    dma_half()
    hh_loads(0, 14)
    k(f"v_bfe_u32 v{T1}, v{LANE}, 4, 1"); k(f"v_lshlrev_b32 v{T1}, 5, v{T1}")
    k(f"v_and_b32 v{T2}, 1, v{LANE}"); k(f"v_lshl_add_u32 v{T1}, v{T2}, 4, v{T1}")
    k(f"v_bfe_u32 v{T2}, v{LANE}, 1, 1"); k(f"v_lshl_add_u32 v{T1}, v{T2}, 3, v{T1}")
    k(f"v_add_u32 v{T1}, s36, v{T1}")
    k(f"v_bfe_u32 v{T2}, v{LANE}, 2, 2"); k(f"v_lshrrev_b32 v{T3}, 5, v{LANE}")
    k(f"v_lshl_add_u32 v{A0}, v{T3}, 3, v{T2}"); k(f"v_lshl_add_u32 v{A0}, v{A0}, 7, v{T1}")
    k(f"v_bfe_u32 v{T2}, v{LANE}, 3, 1"); k(f"v_xor_b32 v{T2}, s38, v{T2}")
    k(f"v_lshl_add_u32 v{A0}, v{T2}, 6, v{A0}")
    k(f"v_xor_b32 v{A1}, 64, v{A0}")
    def rd_all():
        for ks in range(14):
            for cg in range(2):
                for hh in range(2):
                    k(f"ds_read_b64_tr_b16 {v(WF+8*ks+4*cg+2*hh,2)}, v{A1 if cg else A0} offset:{ks*2048+hh*512}")
    def mm(h):
        for ks in range(14):
            for t in range(2):
                for cg in range(2):
                    acc = v(ACC+16*(2*t+cg),16)
                    k(f"{MF32} {acc}, {v(WF+8*ks+4*cg,4)}, {a(8*(14*h+ks)+4*t,4)}, {'0' if (h == 0 and ks == 0) else acc}")
    k("s_waitcnt vmcnt(28)")
    rd_all()
    k("s_waitcnt lgkmcnt(0)")
    dma_half()
    mm(0)
    hh_loads(14, 28)
    k("s_mul_i32 s39, s29, 28"); k("s_lshl_b32 s34, s26, 2"); k("s_add_u32 s39, s39, s34")
    k("s_lshl_b32 s34, s38, 1"); k("s_add_u32 s39, s39, s34"); k("s_lshl_b32 s39, s39, 10")
    k(f"s_add_u32 s39, s39, {WS_H}")
    k(f"buffer_load_dwordx4 {v(XR,4)}, v{VL16}, {s(SWS,4)}, s39 offen")
    k(f"buffer_load_dwordx4 {v(XR+4,4)}, v{VL16}, {s(SWS,4)}, s39 offen offset:1024")
    k("s_waitcnt vmcnt(30)")
    rd_all()
    mm(1)
    exchange_and_own(k, ACC, LANE, T1, L_EX, 11)
    add_packed(k, ACC, XR, T1)
    HP = ACC + 16
    for r in range(8): k(f"v_cvt_pk_bf16_f32 v{HP+r}, v{ACC+2*r}, v{ACC+2*r+1}")
    k(f"v_and_b32 v{T1}, 31, v{LANE}"); k(f"v_mul_u32_u24 v{T1}, 896, v{T1}")
    k(f"v_lshrrev_b32 v{T2}, 5, v{LANE}"); k(f"v_lshl_add_u32 v{T1}, v{T2}, 4, v{T1}")
    k("s_mul_i32 s37, s29, 28672"); k("s_lshl_b32 s34, s26, 7"); k("s_add_u32 s37, s37, s34")
    k("s_lshl_b32 s34, s38, 6"); k("s_add_u32 s37, s37, s34")
    k(f"buffer_store_dwordx4 {v(HP,4)}, v{T1}, {s(SD,4)}, s37 offen")
    k(f"buffer_store_dwordx4 {v(HP+4,4)}, v{T1}, {s(SD,4)}, s37 offen offset:32")
    k("L_end_p4:")
    return k.finalize(), L_EX + 49152

def build(path):
    hdr = open("cdna_kernels/" + NAME + ".s.ref").read().split("; Override")[0]
    ks = [("p1_kernel", phase1(), 0), ("p2_kernel", phase2(), 0), ("p3_kernel", phase3(), 224), ("p4_kernel", phase4(), 224)]
    out = hdr
    for n, (lines, lds), ag in ks:
        g = 256 if n == "p1_kernel" else 224
        out += f"; @launch kernel={n} grid=({g},1,1) block=(256,1,1) lds={lds}\n"
    out += '.amdgcn_target "amdgcn-amd-amdhsa--gfx950"\n'
    for n, (lines, lds), ag in ks:
        out += kernel(n, lines, 256, ag)
    open(path, "w").write(out)

if __name__ == "__main__":
    build(sys.argv[1] if len(sys.argv) > 1 else "cdna_kernels/" + NAME + ".s")
```

```python
import sys
sys.path.insert(0, "dev")
from asmlib import *

NAME = "sequential_preLN__linear_attn_block__glu_gated_bilinear__prompt"
WS_KV, WS_FL, WS_PQ, WS_H, WS_ST, WS_HH = 0x0, 0x10000, 0x100000, 0x400000, 0x600000, 0x800000
FL1, FL2, FL3 = WS_FL, WS_FL + 0x1000, WS_FL + 0x2000
ONES = 0x3f803f80
EPS6 = "0x358637bd"; EPS5 = "0x3727c5ac"; INVD = "0x3b124925"; LOG2E = "0x3fb8aa3b"
MF32 = "v_mfma_f32_32x32x16_bf16"
MF16 = "v_mfma_f32_16x16x32_bf16"
SX, SW1, SWS, SD, SWO, SG, SU, SDN, SO = 4, 8, 12, 16, 20, 24, 28, 32, 36
sWV, sTB, sHD, sTT, sCT, sTB3, sPN, sJ = 40, 41, 42, 43, 44, 45, 46, 47
LANE, VL16 = 1, 2
T0, T1, T2, T3, T4 = 3, 4, 5, 6, 7
POLLMAX = 0x40000
OPT = dict(gu=(3, 2, 2), kc=3, stop=9)

STAMP = False
WS_TS = 0x2000000
def stamp(k, i):
    if STAMP: k(f"s_memrealtime {s(60+2*i,2)}")
def stamp_out(k, n):
    if not STAMP: return
    k("s_waitcnt vmcnt(0) lgkmcnt(0)")
    stamp(k, n)
    k("s_waitcnt lgkmcnt(0)")
    k("s_mov_b64 exec, 1")
    k(f"s_lshl_b32 s58, s2, 2"); k(f"s_add_u32 s58, s58, s{sWV}"); k("s_lshl_b32 s58, s58, 7")
    k(f"s_add_u32 s58, s58, {WS_TS}")
    for i in range(n+1):
        k(f"v_mov_b32 v1, s{60+2*i}")
        k(f"buffer_store_dword v1, off, {s(SWS,4)}, s58 offset:{4*i}")

def mix(k, mf, fill, per=None, lead=0):
    fill = list(fill); n = len(mf)
    for _ in range(lead):
        if fill: k(fill.pop(0))
    for i, m in enumerate(mf):
        k(m)
        cnt = per if per is not None else -(-len(fill) // (n - i))
        for _ in range(cnt):
            if fill: k(fill.pop(0))
    for f in fill: k(f)

def poll(k, tag, vdst, vaddr, soff, cmp_val, mask_lo, first=True):
    k(f"s_mov_b32 s48, {POLLMAX}")
    k(f"L_poll_{tag}:")
    k(f"buffer_load_dword v{vdst}, v{vaddr}, {s(SWS,4)}, {soff} offen sc1")
    k("s_sub_u32 s48, s48, 1")
    k("s_waitcnt vmcnt(0)")
    k(f"v_cmp_eq_u32 vcc, {cmp_val}, v{vdst}")
    k(f"s_cbranch_scc1 L_pollx_{tag}")
    k(f"s_andn2_b32 s49, {mask_lo}, vcc_lo")
    k(f"s_cbranch_scc1 L_poll_{tag}")
    k(f"L_pollx_{tag}:")

def setup(k):
    k("s_cmp_ge_u32 s2, 256"); k("s_cbranch_scc1 L_end")
    stamp(k, 0)
    for sr, off in ((SX, 0), (SW1, 8), (SWS, 72), (SD, 64), (SWO, 16), (SG, 32), (SU, 40), (SDN, 48), (SO, 56)):
        k(f"s_load_dwordx2 {s(sr,2)}, s[0:1], {off}")
    k(f"v_and_b32 v{LANE}, 63, v0"); k(f"v_lshrrev_b32 v{T0}, 6, v0")
    k(f"v_readfirstlane_b32 s{sWV}, v{T0}")
    k(f"v_lshlrev_b32 v{VL16}, 4, v{LANE}")
    k("s_and_b32 s3, s2, 7"); k(f"s_lshr_b32 s{sJ}, s2, 3")
    k(f"s_and_b32 s48, s{sJ}, 3"); k(f"s_lshr_b32 s49, s{sJ}, 2")
    k(f"s_and_b32 s{sTB}, s3, 3"); k(f"s_lshl_b32 s{sTB}, s{sTB}, 2"); k(f"s_add_u32 s{sTB}, s{sTB}, s48")
    k(f"s_lshr_b32 s{sHD}, s3, 2"); k(f"s_lshl_b32 s{sHD}, s{sHD}, 3"); k(f"s_add_u32 s{sHD}, s{sHD}, s49")
    k(f"s_lshl_b32 s{sTT}, s3, 2"); k(f"s_add_u32 s{sTT}, s{sTT}, s48")
    k(f"s_min_u32 s{sCT}, s49, 6")
    k(f"s_and_b32 s{sTB3}, s3, 1"); k(f"s_lshl_b32 s{sTB3}, s{sTB3}, 2"); k(f"s_add_u32 s{sTB3}, s{sTB3}, s48")
    k(f"s_lshr_b32 s{sPN}, s3, 1"); k(f"s_mul_i32 s{sPN}, s{sPN}, 7"); k(f"s_add_u32 s{sPN}, s{sPN}, s{sCT}")
    for sr, size in ((SX, 2048*896), (SW1, 448*2688), (SWS, 268435456), (SD, 256), (SWO, 448*896), (SG, 448*3584),
                     (SU, 448*3584), (SDN, 1792*896), (SO, 2048*896)):
        k(f"s_mov_b32 {s(sr+2)}, {size}"); k(f"s_mov_b32 {s(sr+3)}, 0x00020000")

L_W, L_ONE, L_CS, L_ST, L_RING = 1024, 87040, 87552, 91648, 98304
def phase1(k):
    VX, VW, VWO, QINC, FL = 8, 12, 13, 14, 15
    AQ, AK, AXL, AX = 16, 20, 24, 28
    Q, KK, VV, G, CS, SEL, WF, XF = 32, 48, 64, 80, 96, 100, 112, 160
    sG, sXB, sWB, sLW, sRB, sDX, sRX, sIT, sA, sB, sWOo, sWOl = 50, 51, 52, 53, 54, 55, 56, 57, 58, 59, 100, 101
    k(f"v_lshrrev_b32 v{T1}, 2, v{LANE}"); k(f"v_mul_u32_u24 v{VW}, 2688, v{T1}")
    k(f"v_and_b32 v{T1}, 3, v{LANE}"); k(f"v_lshl_add_u32 v{VW}, v{T1}, 4, v{VW}")
    k(f"v_lshrrev_b32 v{T1}, 3, v{LANE}"); k(f"v_mul_u32_u24 v{T2}, 896, v{T1}")
    k(f"v_and_b32 v{T3}, 7, v{LANE}"); k(f"v_xor_b32 v{T3}, v{T3}, v{T1}")
    k(f"v_lshl_add_u32 v{VX}, v{T3}, 4, v{T2}")
    k(f"v_xor_b32 v{VX+1}, 16, v{VX}"); k(f"v_add_u32 v{VX+1}, 6144, v{VX+1}")
    k(f"v_add_u32 v{VX+2}, 12288, v{VX}"); k(f"v_add_u32 v{VX+3}, 12288, v{VX+1}")
    k(f"s_lshl_b32 s{sG}, s48, 1"); k(f"s_add_u32 s{sG}, s{sG}, s49")
    k(f"s_sub_u32 s{sA}, s{sG}, 7"); k(f"s_cselect_b32 s{sG}, s{sG}, s{sA}")
    k(f"s_lshl_b32 s{sXB}, s{sTB}, 2"); k(f"s_add_u32 s{sXB}, s{sXB}, s{sWV}"); k(f"s_mul_i32 s{sXB}, s{sXB}, 28672")
    k(f"s_mul_i32 s{sWB}, s{sWV}, {16*2688}"); k(f"s_mul_i32 s{sA}, s{sHD}, 56"); k(f"s_add_u32 s{sWB}, s{sWB}, s{sA}")
    k(f"s_lshl_b32 s{sLW}, s{sWV}, 10"); k(f"s_add_u32 s{sLW}, s{sLW}, {L_W}")
    k(f"s_lshl_b32 s{sRB}, s{sWV}, 14"); k(f"s_add_u32 s{sRB}, s{sRB}, {L_RING}")
    k(f"s_mov_b32 s{sDX}, 0")
    for i in range(4): k(f"v_mov_b32 v{CS+i}, 0")
    k("s_waitcnt lgkmcnt(0)")
    stamp(k, 1)
    k(f"s_cmp_lg_u32 s{sTB}, 0"); k("s_cbranch_scc1 L_p1_nz")
    k.cond_begin()
    k(f"v_lshlrev_b32 v{T3}, 4, v0"); k(f"s_lshl_b32 s{sA}, s{sHD}, 12")
    k(f"buffer_store_dwordx4 {v(CS,4)}, v{T3}, {s(SWS,4)}, s{sA} offen sc1")
    k(f"v_lshlrev_b32 v{T3}, 2, v0"); k(f"s_lshl_b32 s{sA}, s{sHD}, 10"); k(f"s_add_u32 s{sA}, s{sA}, {WS_FL}")
    k(f"buffer_store_dword v{CS}, v{T3}, {s(SWS,4)}, s{sA} offen sc1")
    k.cond_end()
    k("L_p1_nz:")
    def issue():
        k(f"s_mul_i32 s{sB}, s{sG}, {64*2688}"); k(f"s_add_u32 s{sB}, s{sB}, s{sWB}")
        k(f"s_lshl_b32 s{sA}, s{sG}, 7"); k(f"s_add_u32 s{sA}, s{sA}, s{sXB}")
        for m in range(3):
            k(f"s_add_u32 m0, s{sLW}, {m*4096 - m*896}")
            k(f"buffer_load_dwordx4 v{VW}, {s(SW1,4)}, s{sB} offen offset:{m*896} lds")
        k(f"s_add_u32 m0, s{sRB}, s{sDX}")
        k(f"s_add_u32 s{sG}, s{sG}, 1")
        for r in range(4):
            k(f"buffer_load_dwordx4 v{VX+r}, {s(SX,4)}, s{sA} offen offset:{r*1024} lds")
        k(f"s_cmp_eq_u32 s{sG}, 7"); k(f"s_cselect_b32 s{sG}, 0, s{sG}")
        k(f"s_add_u32 s{sLW}, s{sLW}, 12288")
        k(f"s_add_u32 s{sDX}, s{sDX}, 4096"); k(f"s_and_b32 s{sDX}, s{sDX}, 0x3fff")
    for c in range(3): issue()
    stamp(k, 2)
    k(f"v_mov_b32 v{T1}, {ONES}"); k(f"v_lshlrev_b32 v{T2}, 2, v{LANE}"); k(f"v_add_u32 v{T2}, {L_ONE}, v{T2}")
    k(f"ds_write2st64_b32 v{T2}, v{T1}, v{T1} offset0:0 offset1:1")
    k(f"v_lshrrev_b32 v{T0}, 5, v{LANE}"); k(f"v_lshlrev_b32 v{T0}, 9, v{T0}")
    k(f"v_bfe_u32 v{T2}, v{LANE}, 2, 2"); k(f"v_lshlrev_b32 v{T2}, 6, v{T2}")
    k(f"v_bfe_u32 v{T3}, v{LANE}, 4, 1"); k(f"v_lshl_add_u32 v{T2}, v{T3}, 5, v{T2}")
    k(f"v_and_b32 v{T3}, 3, v{LANE}"); k(f"v_lshl_add_u32 v{T2}, v{T3}, 3, v{T2}")
    k(f"v_add_u32 v{T0}, v{T0}, v{T2}"); k(f"v_add_u32 v{T2}, {L_ONE}, v{T2}")
    k(f"v_and_b32 v{T3}, 19, v{LANE}"); k(f"v_cmp_eq_u32 vcc, 19, v{T3}")
    k(f"v_mov_b32 v{QINC}, 12288"); k(f"v_cndmask_b32 v{QINC}, v{QINC}, v{CS}")
    k(f"v_and_b32 v{T3}, 31, v{LANE}"); k(f"v_lshlrev_b32 v{T4}, 7, v{T3}")
    k(f"v_bfe_u32 v{T3}, v{LANE}, 3, 1"); k(f"v_lshrrev_b32 v{AX}, 5, v{LANE}"); k(f"v_xor_b32 v{T3}, v{T3}, v{AX}")
    k(f"v_and_b32 v{AX}, 7, v{LANE}"); k(f"v_xor_b32 v{T3}, v{T3}, v{AX}")
    k(f"v_lshl_add_u32 v{T4}, v{T3}, 4, v{T4}")
    for i in range(4):
        k(f"s_xor_b32 s{sA}, s{sWV}, {i}"); k(f"s_lshl_b32 s{sB}, s{sA}, 5"); k(f"s_lshl_b32 s{sA}, s{sA}, 10")
        k(f"s_add_u32 s{sA}, s{sA}, {L_W}")
        k(f"v_add_u32 v{AK+i}, s{sA}, v{T0}"); k(f"v_cndmask_b32 v{AQ+i}, v{AK+i}, v{T2}")
        k(f"v_xor_b32 v{AXL+i}, s{sB}, v{T4}"); k(f"v_add_u32 v{AX+i}, s{sRB}, v{AXL+i}")
    k(f"v_and_b32 v{T2}, 15, v{LANE}"); k(f"v_bfe_u32 v{T3}, v{LANE}, 4, 1"); k(f"v_sub_u32 v{T2}, v{T2}, v{T3}")
    for m in range(3):
        k(f"v_cmp_eq_u32 vcc, {2*m}, v{T2}")
        for i in range(4): k(f"v_cndmask_b32 v{SEL+4*m+i}, v{CS}, v{T1}")
    for i in range(64): k(f"v_mov_b32 v{Q+i}, 0")
    k(f"v_lshrrev_b32 v{T1}, 3, v{LANE}"); k(f"v_mul_u32_u24 v{VWO}, 896, v{T1}")
    k(f"v_bfe_u32 v{T1}, v{LANE}, 4, 1"); k(f"v_lshlrev_b32 v{T1}, 2, v{T1}")
    k(f"v_and_b32 v{T2}, 7, v{LANE}"); k(f"v_xor_b32 v{T1}, v{T1}, v{T2}")
    k(f"v_lshl_add_u32 v{VWO}, v{T1}, 4, v{VWO}")
    k(f"s_mul_i32 s{sWOo}, s{sWV}, {112*896}"); k(f"s_lshl_b32 s{sA}, s{sCT}, 7"); k(f"s_add_u32 s{sWOo}, s{sWOo}, s{sA}")
    k(f"s_mul_i32 s{sWOl}, s{sWV}, 14336")
    k(f"s_mov_b32 s{sRX}, 0"); k(f"s_mov_b32 s{sIT}, 0")
    k("s_waitcnt vmcnt(14) lgkmcnt(0)"); k("s_barrier")
    stamp(k, 3)
    k(f"s_or_b32 s{sA}, s{sTB}, s{sWV}"); k("s_cbranch_scc1 L_p1_nf")
    k.cond_begin()
    k("s_mov_b64 exec, 1"); k(f"s_lshl_b32 s{sA}, s{sHD}, 2")
    k(f"buffer_store_dword v{QINC}, off, {s(SD,4)}, s{sA} sc1")
    k("s_mov_b64 exec, -1")
    k.cond_end()
    k("L_p1_nf:")
    if STAMP: k("s_waitcnt lgkmcnt(0)")
    def rdw(i, m):
        ar = (AQ if m == 0 else AK) + i
        return [f"ds_read_b64_tr_b16 {v(WF+12*i+4*m+2*hh,2)}, v{ar} offset:{m*4096+hh*256}" for hh in range(2)]
    def rdx(i): return [f"ds_read_b128 {v(XF+4*i,4)}, v{AX+i}"]
    def adv(i): return [f"v_add_u32 v{AQ+i}, v{QINC}, v{AQ+i}", f"v_add_u32 v{AK+i}, 12288, v{AK+i}", f"v_add_u32 v{AX+i}, s{sRX+0}, v{AXL+i}"]
    def nextrx():
        k(f"s_add_u32 s{sRX}, s{sRX}, 4096"); k(f"s_and_b32 s{sRX}, s{sRX}, 0x3fff"); k(f"s_or_b32 s{sRX}, s{sRX}, s{sRB}")
    mK = lambda i: f"{MF32} {v(KK,16)}, {v(XF+4*i,4)}, {v(WF+12*i+4,4)}, {v(KK,16)}"
    mV = lambda i: f"{MF32} {v(VV,16)}, {v(XF+4*i,4)}, {v(WF+12*i+8,4)}, {v(VV,16)}"
    mQ = lambda i: f"{MF32} {v(Q,16)}, {v(WF+12*i,4)}, {v(XF+4*i,4)}, {v(Q,16)}"
    mG = lambda i: f"{MF32} {v(G,16)}, {v(XF+4*i,4)}, {v(XF+4*i,4)}, {v(G,16)}"
    mC = lambda m: f"{MF16} {v(CS,4)}, {v(SEL+4*m,4)}, {v(WF+4*m,4)}, {v(CS,4)}"
    nextrx()
    for i in range(4):
        for x in rdw(i, 1) + rdw(i, 2) + rdw(i, 0) + rdx(i) + adv(i): k(x)
    k("L_p1_loop:")
    k("s_waitcnt vmcnt(7)"); k("s_barrier")
    k(f"s_cmp_ge_u32 s{sIT}, 4"); k("s_cbranch_scc1 L_p1_wo")
    k.cond_begin()
    issue()
    k.cond_end()
    k("L_p1_body:")
    nextrx()
    k(f"s_add_u32 s{sIT}, s{sIT}, 1")
    for m in range(3): k(mC(m))
    for i in range(4):
        k(mK(i)); [k(x) for x in rdw(i, 1)]
        k(mV(i)); [k(x) for x in rdw(i, 2)]
        k(mQ(i)); [k(x) for x in rdw(i, 0)]
        k(mG(i)); [k(x) for x in rdx(i) + adv(i)]
    k(f"s_cmp_lt_u32 s{sIT}, 6"); k("s_cbranch_scc1 L_p1_loop")
    stamp(k, 4)
    CK, CV, CQL, MEAN, RSTD, SXX = 176, 180, 184, 188, 190, 192
    CQ, MR, RR, TM = 112, 128, 144, 160
    for m in range(3): k(mC(m))
    k(mG(0)); k(f"v_lshrrev_b32 v{T1}, 4, v{LANE}"); k(f"v_lshlrev_b32 v{T1}, 6, v{T1}"); k(f"v_and_b32 v{T2}, 15, v{LANE}")
    k(mQ(0)); k(f"v_add_u32 v{T1}, v{T1}, v{T2}"); k(f"s_lshl_b32 s{sA}, s{sWV}, 2"); k(f"s_add_u32 s{sA}, s{sA}, {L_CS}")
    k(f"v_lshl_add_u32 v{T1}, v{T1}, 4, s{sA}")
    k(mG(1))
    for r in range(4): k(f"ds_write_b32 v{T1}, v{CS+r} offset:{r*256}")
    k(mQ(1))
    k(f"v_and_b32 v{T2}, 31, v{LANE}"); k(f"v_lshlrev_b32 v{T3}, 4, v{T2}"); k(f"v_add_u32 v{T3}, {L_CS}, v{T3}")
    k(f"s_lshl_b32 s{sB}, s{sWV}, 9"); k(f"s_add_u32 s{sB}, s{sB}, {L_ST}")
    k(mG(2)); k(mQ(2))
    k("s_waitcnt lgkmcnt(0)"); k("s_barrier")
    k(f"ds_read_b128 {v(CQL,4)}, v{T3}"); k(f"ds_read_b128 {v(CK,4)}, v{T3} offset:512"); k(f"ds_read_b128 {v(CV,4)}, v{T3} offset:1024")
    k(mG(3)); k(mQ(3))
    k(f"v_lshl_add_u32 v{T2}, v{T2}, 2, s{sB}")
    k(f"v_lshl_add_u32 v{T4}, v{LANE}, 2, s{sB}")
    k(f"v_lshrrev_b32 v{T3}, 5, v{LANE}"); k(f"v_lshl_add_u32 v{T3}, v{T3}, 4, s{sB}")
    k(mK(0))
    for x in (CQL, CK, CV):
        k(f"v_add_f32 v{x}, v{x}, v{x+1}"); k(f"v_add_f32 v{x+2}, v{x+2}, v{x+3}"); k(f"v_add_f32 v{x}, v{x}, v{x+2}")
        if x == CQL: k(f"ds_write_b32 v{T2}, v{CQL}"); k(mV(0))
    sel = []
    for lvl, (msk, stp) in enumerate(((0xaaaaaaaa, 1), (0xcccccccc, 2), (0xff00ff00, 4), (0xffff0000, 8))):
        sel.append(f"s_mov_b32 vcc_lo, {msk:#x}"); sel.append(f"s_mov_b32 vcc_hi, {msk:#x}")
        for r in range(0, 16, 2*stp): sel.append(f"v_cndmask_b32 v{G+r}, v{G+r}, v{G+r+stp}")
    mix(k, [mK(1), mV(1), mK(2)], sel)
    st = [f"v_mov_b32 v{G+1}, v{G}", f"v_mov_b32 v{MEAN}, v{Q+12}", f"v_mov_b32 v{RSTD}, v{Q+12}",
          "s_mov_b32 vcc_lo, 0xf0f0f0f0", "s_mov_b32 vcc_hi, 0xf0f0f0f0",
          f"v_permlane32_swap_b32 v{G}, v{G+1}", f"v_permlane32_swap_b32 v{RSTD}, v{MEAN}",
          f"v_cndmask_b32 v{SXX}, v{G}, v{G+1}",
          f"v_mul_f32 v{MEAN}, 0xbb124925, v{MEAN}",
          f"v_mul_f32 v{SXX}, {INVD}, v{SXX}",
          f"v_fma_f32 v{RSTD}, -v{MEAN}, v{MEAN}, v{SXX}",
          f"v_max_f32 v{RSTD}, 0, v{RSTD}", f"v_add_f32 v{RSTD}, {EPS5}, v{RSTD}", f"v_rsq_f32 v{RSTD}, v{RSTD}",
          "s_mov_b32 vcc_lo, 0", "s_mov_b32 vcc_hi, -1",
          f"v_cndmask_b32 v{SXX}, v{MEAN}, v{RSTD}",
          f"ds_write_b32 v{T4}, v{SXX} offset:128"]
    mix(k, [mV(2), mK(3), mV(3)], st)
    for q in range(4): k(f"ds_read_b128 {v(MR+4*q,4)}, v{T3} offset:{128+q*32}"); k(f"ds_read_b128 {v(RR+4*q,4)}, v{T3} offset:{256+q*32}")
    for q in range(4): k(f"ds_read_b128 {v(CQ+4*q,4)}, v{T3} offset:{q*32}")
    stamp(k, 5)
    EP, LG = 194, 196
    k(f"v_mov_b32 v{EP}, {EPS6}"); k(f"v_mov_b32 v{LG}, {LOG2E}")
    PK, PV, PQ = 200, 208, 216
    def phi(acc, dst, mean, cs, rstd, bt):
        o = []
        for r in range(0, 16, 2):
            A = v(acc+r,2)
            if bt:
                o.append(f"v_pk_fma_f32 {A}, {v(mean,2)}, {v(cs+r,2)}, {A} op_sel_hi:[0,1,1]")
                o.append(f"v_pk_fma_f32 {A}, {A}, {v(rstd,2)}, {v(EP,2)} op_sel_hi:[1,0,0]")
            else:
                o.append(f"v_pk_fma_f32 {A}, {v(mean+r,2)}, {v(cs,2)}, {A} op_sel_hi:[1,0,1]")
                o.append(f"v_pk_fma_f32 {A}, {A}, {v(rstd+r,2)}, {v(EP,2)} op_sel_hi:[1,1,0]")
        for r in range(0, 16, 2): o.append(f"v_pk_mul_f32 {v(TM+r,2)}, {v(acc+r,2)}, {v(LG,2)} op_sel_hi:[1,0]")
        for r in range(16):
            o.append(f"v_exp_f32_e64 v{TM+r}, v{TM+r} clamp"); o.append(f"v_max_f32 v{acc+r}, v{acc+r}, v{EP}")
        for r in range(0, 16, 2): o.append(f"v_pk_add_f32 {v(acc+r,2)}, {v(acc+r,2)}, {v(TM+r,2)}")
        for r in range(8): o.append(f"v_cvt_pk_bf16_f32 v{dst+r}, v{acc+2*r}, v{acc+2*r+1}")
        return o
    for x in phi(KK, PK, MR, CK, RR, False): k(x)
    for r in range(0, 16, 2): k(f"v_pk_fma_f32 {v(VV+r,2)}, {v(MR+r,2)}, {v(CV,2)}, {v(VV+r,2)} op_sel_hi:[1,0,1]")
    for r in range(0, 16, 2): k(f"v_pk_mul_f32 {v(VV+r,2)}, {v(VV+r,2)}, {v(RR+r,2)}")
    k("s_mov_b32 vcc_lo, 0x30000000"); k("s_mov_b32 vcc_hi, 0x30000000"); k(f"v_mov_b32 v{T0}, {ONES}")
    for r in range(8): k(f"v_cvt_pk_bf16_f32 v{PV+r}, v{VV+2*r}, v{VV+2*r+1}")
    for r in range(8): k(f"v_cndmask_b32 v{PV+r}, v{PV+r}, v{T0}")
    k(f"{MF32} {v(KK,16)}, {v(PK,4)}, {v(PV,4)}, 0")
    k(f"{MF32} {v(KK,16)}, {v(PK+4,4)}, {v(PV+4,4)}, {v(KK,16)}")
    k(f"v_and_b32 v{T1}, 31, v{LANE}")
    k(f"v_subrev_u32 v{T2}, 24, v{T1}"); k(f"v_lshlrev_b32 v{T2}, 2, v{T2}")
    k(f"v_mov_b32 v{T3}, 0x62735410")
    k(f"v_lshrrev_b32 v{T3}, v{T2}, v{T3}"); k(f"v_and_b32 v{T3}, 7, v{T3}"); k(f"v_add_u32 v{T3}, 24, v{T3}")
    k(f"v_cmp_le_u32 vcc, 24, v{T1}")
    k(f"v_cndmask_b32 v{T1}, v{T1}, v{T3}")
    k(f"v_and_b32 v{T2}, 32, v{LANE}"); k(f"v_add_u32 v{T1}, v{T1}, v{T2}")
    k(f"v_lshl_add_u32 v{T1}, v{T1}, 4, s{sRB}")
    qp = phi(Q, PQ, MEAN, CQ, RSTD, True)
    for x in qp[:8]: k(x)
    for q in range(4): k(f"ds_write_b128 v{T1}, {v(KK+4*q,4)} offset:{q*1024}")
    k(f"s_lshl_b32 s{sA}, s{sWV}, 10")
    k(f"v_lshl_add_u32 v{T2}, v{LANE}, 2, s{sA}"); k(f"v_add_u32 v{T3}, {L_RING}, v{T2}")
    for x in qp[8:24]: k(x)
    k("s_waitcnt lgkmcnt(0)"); k("s_barrier")
    for i in range(4):
        k(f"ds_read2st64_b32 {v(VV+4*i,2)}, v{T3} offset0:{i} offset1:{64+i}")
        k(f"ds_read2st64_b32 {v(VV+4*i+2,2)}, v{T3} offset0:{128+i} offset1:{192+i}")
    for x in qp[24:40]: k(x)
    k(f"s_mov_b32 s48, {POLLMAX}")
    k("s_waitcnt vmcnt(7)")
    k("L_p1_poll:")
    k(f"v_cmp_ne_u32 vcc, 0, v{FL}")
    k("s_sub_u32 s48, s48, 1"); k("s_cbranch_scc1 L_p1_go")
    k("s_andn2_b32 s49, 0xffff, vcc_lo"); k("s_cbranch_scc0 L_p1_go")
    k(f"v_lshlrev_b32 v{T0}, 2, v{LANE}")
    k(f"buffer_load_dword v{FL}, v{T0}, {s(SD,4)}, 0 offen sc1")
    k("s_waitcnt vmcnt(0)")
    k("s_branch L_p1_poll")
    k("L_p1_go:")
    k(f"s_lshl_b32 s{sA}, s{sHD}, 12")
    for i in range(4):
        k(f"v_pk_add_f32 {v(VV+4*i,2)}, {v(VV+4*i,2)}, {v(VV+4*i+2,2)}")
        k(f"v_add_f32 v{VV+4*i}, v{VV+4*i}, v{VV+4*i+1}")
    for i in range(4): k(f"buffer_atomic_add_f32 v{VV+4*i}, v{T2}, {s(SWS,4)}, s{sA} offen offset:{i*256} sc1")
    for x in qp[40:]: k(x)
    k("s_mov_b32 exec_lo, 0"); k(f"v_mov_b32 v{PQ+6}, 0"); k(f"v_mov_b32 v{PQ+7}, 0"); k("s_mov_b64 exec, -1")
    k(f"s_lshl_b32 s{sA}, s{sTB}, 2"); k(f"s_add_u32 s{sA}, s{sA}, s{sWV}"); k(f"s_lshl_b32 s{sA}, s{sA}, 4")
    k(f"s_add_u32 s{sA}, s{sA}, s{sHD}"); k(f"s_lshl_b32 s{sA}, s{sA}, 11"); k(f"s_add_u32 s{sA}, s{sA}, {WS_PQ}")
    k(f"buffer_store_dwordx4 {v(PQ,4)}, v{VL16}, {s(SWS,4)}, s{sA} offen sc1")
    k(f"buffer_store_dwordx4 {v(PQ+4,4)}, v{VL16}, {s(SWS,4)}, s{sA} offen offset:1024 sc1")
    stamp(k, 6)
    A0, A1, A2, A3 = 8, 9, 10, 11
    k(f"s_mul_i32 s{sA}, s{sWV}, 14336"); k(f"s_and_b32 s{sB}, s{sWV}, 1")
    k(f"v_bfe_u32 v{T1}, v{LANE}, 4, 1"); k(f"v_lshlrev_b32 v{T1}, 5, v{T1}")
    k(f"v_and_b32 v{T2}, 1, v{LANE}"); k(f"v_lshl_add_u32 v{T1}, v{T2}, 4, v{T1}")
    k(f"v_bfe_u32 v{T2}, v{LANE}, 1, 1"); k(f"v_lshl_add_u32 v{T1}, v{T2}, 3, v{T1}")
    k(f"v_add_u32 v{T1}, s{sA}, v{T1}")
    k(f"v_bfe_u32 v{T2}, v{LANE}, 2, 2"); k(f"v_lshrrev_b32 v{T3}, 5, v{LANE}")
    k(f"v_lshl_add_u32 v{A0}, v{T3}, 2, v{T2}"); k(f"v_lshl_add_u32 v{A0}, v{A0}, 7, v{T1}")
    k(f"v_bfe_u32 v{T2}, v{LANE}, 3, 1"); k(f"v_xor_b32 v{T2}, s{sB}, v{T2}")
    k(f"v_lshl_add_u32 v{A0}, v{T2}, 6, v{A0}"); k(f"v_xor_b32 v{A1}, 64, v{A0}")
    k(f"v_bfe_u32 v{T2}, v{LANE}, 2, 1"); k(f"v_lshl_add_u32 v{A2}, v{T3}, 1, v{T2}")
    k(f"v_lshl_add_u32 v{A2}, v{A2}, 7, v{T1}")
    k(f"v_xor_b32 v{T2}, s{sB}, v{T3}"); k(f"v_lshl_add_u32 v{A2}, v{T2}, 6, v{A2}")
    k(f"v_xor_b32 v{A3}, 64, v{A2}")
    k("s_waitcnt vmcnt(6)")
    for hd in range(4):
        for cg in range(2):
            ar, al = (A0, A2) if cg == 0 else (A1, A3)
            b = hd*3584; wf = 16*hd + 8*cg
            for j in range(3): k(f"ds_read_b64_tr_b16 {a(wf+2*j,2)}, v{ar} offset:{b+1024*j}")
            k(f"ds_read_b64_tr_b16 {a(wf+6,2)}, v{al} offset:{b+3072}")
    k("s_waitcnt vmcnt(0) lgkmcnt(0)"); k("s_barrier")
    k(f"s_cmp_lg_u32 s{sWV}, 0"); k("s_cbranch_scc1 L_p1_nc")
    k.cond_begin()
    k("s_mov_b64 exec, 1"); k(f"v_mov_b32 v{T0}, 1")
    k(f"s_lshl_b32 s{sA}, s{sHD}, 7"); k(f"s_add_u32 s{sA}, s{sA}, {FL1}")
    k(f"buffer_atomic_add v{T0}, off, {s(SWS,4)}, s{sA} sc1")
    k("s_mov_b64 exec, -1")
    k.cond_end()
    k("L_p1_nc:")
    stamp(k, 7)
    k(f"s_cmp_ge_u32 s{sJ}, 28"); k("s_cbranch_scc1 L_fin")
    def tail(k):
        k("L_p1_wo:")
        k(f"v_lshlrev_b32 v{T0}, 2, v{LANE}")
        k(f"buffer_load_dword v{FL}, v{T0}, {s(SD,4)}, 0 offen sc1")
        for i in range(7):
            k(f"s_add_u32 m0, s{sWOl}, {i*1024}")
            k(f"buffer_load_dwordx4 v{VWO}, {s(SWO,4)}, s{sWOo} offen lds")
            k(f"s_add_u32 s{sWOo}, s{sWOo}, {8*896}")
        k(f"s_add_u32 s{sWOl}, s{sWOl}, 7168")
        k("s_branch L_p1_body")
    return tail

VG, VU = 12, 13
def gu_setup(k):
    k(f"v_lshrrev_b32 v{T1}, 3, v{LANE}"); k(f"v_mul_u32_u24 v{VG}, 3584, v{T1}")
    k(f"v_bfe_u32 v{T1}, v{LANE}, 4, 1"); k(f"v_lshlrev_b32 v{T1}, 1, v{T1}")
    k(f"v_and_b32 v{T2}, 7, v{LANE}"); k(f"v_xor_b32 v{T1}, v{T1}, v{T2}")
    k(f"v_xor_b32 v{T2}, 4, v{T1}")
    k(f"v_lshl_add_u32 v{VU}, v{T2}, 4, v{VG}"); k(f"v_lshl_add_u32 v{VG}, v{T1}, 4, v{VG}")
    k(f"s_and_b32 s50, s{sJ}, 3"); k("s_lshl_b32 s50, s50, 1")
    k(f"s_mul_i32 s51, s{sWV}, {16*3584}"); k(f"s_lshl_b32 s52, s{sPN}, 7"); k("s_add_u32 s51, s51, s52")
    k(f"s_lshl_b32 s52, s{sWV}, 11")
def gu_issue(k, n):
    for _ in range(n):
        k(f"s_mul_i32 s53, s50, {64*3584}"); k("s_add_u32 s53, s53, s51"); k(f"s_add_u32 s54, s53, {8*3584}")
        k("s_lshl_b32 s55, s50, 13"); k("s_add_u32 s55, s55, s52")
        for m in range(2):
            for j in range(2):
                k(f"s_add_u32 m0, s55, {m*57344 + j*1024}")
                k(f"buffer_load_dwordx4 v{VU if m else VG}, {s(SU if m else SG,4)}, s{54 if j else 53} offen lds")
        k("s_add_u32 s50, s50, 1"); k("s_cmp_eq_u32 s50, 7"); k("s_cselect_b32 s50, 0, s50")

L_EX = 114688
def exchange(k, ACC, TMP):
    for i in range(1, 4):
        k(f"s_xor_b32 s48, s{sWV}, {i}"); k("s_mul_i32 s48, s48, 12288"); k(f"s_add_u32 s48, s48, {L_EX + (i-1)*4096}")
        k(f"v_add_u32 v{TMP+i}, s48, v{VL16}")
    k(f"s_mul_i32 s48, s{sWV}, 12288"); k(f"s_add_u32 s48, s48, {L_EX}")
    k(f"v_add_u32 v{TMP}, s48, v{VL16}")
def exchange_w(ACC, TMP, i):
    return [f"ds_write_b128 v{TMP+i}, {v(ACC+16*i+4*q,4)} offset:{q*1024}" for q in range(4)]
def exchange_r(k, ACC, TMP):
    k("s_waitcnt lgkmcnt(0)"); k("s_barrier")
    for i in range(1, 4):
        for q in range(4): k(f"ds_read_b128 {v(ACC+16*i+4*q,4)}, v{TMP} offset:{(i-1)*4096+q*1024}")
def add_packed(ACC, RES, TT):
    o = []
    for r in range(8):
        o += [f"v_lshlrev_b32 v{TT}, 16, v{RES+r}", f"v_and_b32 v{TT+1}, 0xffff0000, v{RES+r}",
              f"v_pk_add_f32 {v(ACC+2*r,2)}, {v(ACC+2*r,2)}, {v(TT,2)}"]
    return o
def sum_parts(k, ACC):
    for i in range(1, 4):
        for r in range(0, 16, 2): k(f"v_pk_add_f32 {v(ACC+r,2)}, {v(ACC+r,2)}, {v(ACC+16*i+r,2)}")
def flag_store(k, soff_reg):
    k("s_mov_b64 exec, 1"); k(f"v_mov_b32 v{T0}, 1")
    k(f"buffer_store_dword v{T0}, off, {s(SWS,4)}, s{soff_reg} sc1")
    k("s_mov_b64 exec, -1")

HR = 16
sTG = 100
def phase2(k):
    ACC, KVF, KVB, OD, OP, EXA = 24, 88, 152, 184, 216, 232
    PQ = 64
    gu_setup(k)
    k(f"s_lshr_b32 s48, s{sWV}, 1"); k(f"s_lshl_b32 s{sTG}, s{sTT}, 1"); k(f"s_add_u32 s{sTG}, s{sTG}, s48")
    k(f"v_and_b32 v{T1}, 31, v{LANE}"); k(f"v_mul_u32_u24 v{T1}, 896, v{T1}")
    k(f"v_lshrrev_b32 v{T2}, 5, v{LANE}"); k(f"v_lshl_add_u32 v14, v{T2}, 4, v{T1}")
    k(f"s_mul_i32 s101, s{sTG}, 28672"); k(f"s_lshl_b32 s48, s{sCT}, 7"); k("s_add_u32 s101, s101, s48")
    k(f"s_and_b32 s48, s{sWV}, 1"); k("s_lshl_b32 s48, s48, 6"); k("s_add_u32 s101, s101, s48")
    k(f"buffer_load_dwordx4 {v(HR,4)}, v14, {s(SX,4)}, s101 offen")
    k(f"buffer_load_dwordx4 {v(HR+4,4)}, v14, {s(SX,4)}, s101 offen offset:32")
    gu_issue(k, OPT["gu"][0])
    exchange(k, ACC, EXA)
    k(f"v_mov_b32 v{OP+7}, 0"); k(f"v_mov_b32 v{OP+15}, 0")
    k(f"s_lshl_b32 s56, s{sWV}, 14")
    k(f"s_lshl_b32 s59, s{sWV}, 13"); k(f"s_add_u32 s59, s59, {WS_PQ}")
    k(f"s_lshl_b32 s57, s{sTG}, 15"); k("s_add_u32 s57, s57, s59")
    k(f"s_xor_b32 s58, s{sTG}, 1"); k("s_lshl_b32 s58, s58, 15"); k("s_add_u32 s58, s58, s59")
    k(f"v_and_b32 v{T1}, 3, v{LANE}"); k(f"v_lshlrev_b32 v{T1}, 7, v{T1}")
    k(f"s_lshl_b32 s59, s{sWV}, 9"); k(f"s_add_u32 s59, s59, {FL1}")
    poll(k, "p2", T2, T1, "s59", 16, "15")
    stamp(k, 8)
    for hd in range(4):
        for q in range(4):
            k(f"buffer_load_dwordx4 {v(KVF+16*hd+4*q,4)}, v{VL16}, {s(SWS,4)}, s56 offen offset:{q*1024} sc1")
        k("s_add_u32 s56, s56, 4096")
        for t in range(2):
            for ks in range(2):
                k(f"buffer_load_dwordx4 {a(PQ+16*hd+8*t+4*ks,4)}, v{VL16}, {s(SWS,4)}, s{57+t} offen offset:{(hd&1)*2048+ks*1024} sc1")
        if hd == 1: k("s_add_u32 s57, s57, 4096"); k("s_add_u32 s58, s58, 4096")
    gu_issue(k, OPT["gu"][1])
    def cvt(hd): return [f"v_cvt_pk_bf16_f32 v{KVB+8*hd+r}, v{KVF+16*hd+2*r}, v{KVF+16*hd+2*r+1}" for r in range(8)]
    def mo(u):
        hd, t = u >> 1, u & 1; od = v(OD+16*(u&1),16)
        return [f"{MF32} {od}, {v(KVB+8*hd,4)}, {a(PQ+16*hd+8*t,4)}, 0", f"{MF32} {od}, {v(KVB+8*hd+4,4)}, {a(PQ+16*hd+8*t+4,4)}, {od}"]
    def vo(u):
        od = OD+16*(u&1); op = OP + 8*(u&1)
        o = [f"v_add_f32 v{T1}, {EPS6}, v{od+15}", f"v_rcp_f32 v{T1}, v{T1}"]
        for r in range(7):
            o += [f"v_mul_f32 v{od+2*r}, v{od+2*r}, v{T1}", f"v_mul_f32 v{od+2*r+1}, v{od+2*r+1}, v{T1}"]
        for r in range(7): o.append(f"v_cvt_pk_bf16_f32 v{op+r}, v{od+2*r}, v{od+2*r+1}")
        return o
    def mw(u):
        hd, t = u >> 1, u & 1; op = OP + 8*(u&1); o = []
        for ks in range(2):
            for cg in range(2):
                acc = v(ACC+16*(2*t+cg),16)
                o.append(f"{MF32} {acc}, {a(16*hd+8*cg+4*ks,4)}, {v(op+4*ks,4)}, {'0' if (hd == 0 and ks == 0) else acc}")
        return o
    for x in cvt(0): k(x)
    for x in mo(0) + mo(1): k(x)
    for x in cvt(1): k(x)
    for x in vo(0): k(x)
    for u in range(8):
        mf = mw(u) + (mo(u+2) if u + 2 < 8 else [])
        fl = (vo(u+1) if u + 1 < 8 else [])
        if u in (1, 3): fl = cvt((u+3)//2) + fl
        if u == 7: fl = exchange_w(ACC, EXA, 1) + add_packed(ACC, HR, 8)
        mix(k, mf, fl)
    stamp(k, 9)
    for x in exchange_w(ACC, EXA, 2) + exchange_w(ACC, EXA, 3): k(x)
    exchange_r(k, ACC, EXA)
    k(f"s_mul_i32 s56, s{sTG}, 28"); k(f"s_lshl_b32 s48, s{sCT}, 2"); k("s_add_u32 s56, s56, s48")
    k(f"s_and_b32 s49, s{sWV}, 1"); k("s_lshl_b32 s48, s49, 1"); k("s_add_u32 s56, s56, s48"); k("s_lshl_b32 s56, s56, 10")
    k(f"s_add_u32 s56, s56, {WS_H}")
    k(f"s_mul_i32 s57, s{sTG}, 14"); k(f"s_lshl_b32 s48, s{sCT}, 1"); k("s_add_u32 s57, s57, s48"); k("s_add_u32 s57, s57, s49")
    k("s_lshl_b32 s57, s57, 8"); k(f"s_add_u32 s57, s57, {WS_ST}")
    k(f"s_lshl_b32 s58, s{sTT}, 5"); k(f"s_lshl_b32 s48, s{sCT}, 2"); k("s_add_u32 s58, s58, s48"); k(f"s_add_u32 s58, s58, s{sWV}")
    k("s_lshl_b32 s58, s58, 2"); k(f"s_add_u32 s58, s58, {FL2}")
    sum_parts(k, ACC)
    for r in range(8): k(f"v_cvt_pk_bf16_f32 v{HR+r}, v{ACC+2*r}, v{ACC+2*r+1}")
    k(f"buffer_store_dwordx4 {v(HR,4)}, v{VL16}, {s(SWS,4)}, s56 offen sc1")
    k(f"buffer_store_dwordx4 {v(HR+4,4)}, v{VL16}, {s(SWS,4)}, s56 offen offset:1024 sc1")
    S1, S2 = 8, 9
    k(f"s_mov_b32 s48, {ONES}")
    k(f"v_mov_b32 v{S1}, 0"); k(f"v_mov_b32 v{S2}, 0")
    for r in range(8):
        k(f"v_dot2c_f32_bf16 v{S1}, s48, v{HR+r}"); k(f"v_dot2c_f32_bf16 v{S2}, v{HR+r}, v{HR+r}")
    k(f"v_mov_b32 v10, v{S1}"); k(f"v_mov_b32 v11, v{S2}")
    k(f"v_permlane32_swap_b32 v{S1}, v10"); k(f"v_permlane32_swap_b32 v{S2}, v11")
    k(f"v_add_f32 v{S1}, v{S1}, v10"); k(f"v_add_f32 v{S2}, v{S2}, v11")
    k(f"v_lshlrev_b32 v{T1}, 3, v{LANE}")
    k("s_mov_b32 exec_hi, 0")
    k(f"buffer_store_dwordx2 {v(S1,2)}, v{T1}, {s(SWS,4)}, s57 offen sc1")
    k("s_mov_b32 exec_hi, -1")
    k("s_waitcnt vmcnt(0)")
    flag_store(k, 58)
    stamp(k, 10)

def phase3(k):
    AD, SEL, CS, STT, MN, R2 = 24, 28, 44, 48, 8, 10
    WF, CQ, ACC = 80, 112, 128
    gu_issue(k, OPT["gu"][2])
    k(f"v_bfe_u32 v{T1}, v{LANE}, 4, 1"); k(f"v_mul_u32_u24 v{T0}, 57344, v{T1}")
    k(f"v_lshrrev_b32 v{T2}, 5, v{LANE}"); k(f"v_lshl_add_u32 v{T0}, v{T2}, 10, v{T0}")
    k(f"v_bfe_u32 v{T2}, v{LANE}, 2, 2"); k(f"v_lshl_add_u32 v{T0}, v{T2}, 7, v{T0}")
    k(f"v_and_b32 v{T2}, 1, v{LANE}"); k(f"v_lshl_add_u32 v{T0}, v{T2}, 4, v{T0}")
    k(f"v_bfe_u32 v{T2}, v{LANE}, 1, 1"); k(f"v_lshl_add_u32 v{T0}, v{T2}, 3, v{T0}")
    k(f"v_bfe_u32 v{T2}, v{LANE}, 3, 2"); k(f"v_lshl_add_u32 v{T0}, v{T2}, 5, v{T0}")
    for b in range(4):
        k(f"v_xor_b32 v{AD+b}, {b*32}, v{T0}"); k(f"v_add_u32 v{STT+b}, s52, v{AD+b}")
    k(f"v_and_b32 v{T1}, 15, v{LANE}"); k(f"v_bfe_u32 v{T2}, v{LANE}, 4, 1"); k(f"v_sub_u32 v{T1}, v{T1}, v{T2}")
    k(f"v_mov_b32 v{T2}, {ONES}"); k(f"v_mov_b32 v{T3}, 0")
    for b in range(4):
        k(f"v_cmp_eq_u32 vcc, {2*b}, v{T1}")
        for i in range(4): k(f"v_cndmask_b32 v{SEL+4*b+i}, v{T3}, v{T2}")
    k(f"s_lshl_b32 s53, s{sTB3}, 2"); k(f"s_add_u32 s53, s53, s{sWV}")
    k(f"s_mul_i32 s54, s53, {2*28672}"); k(f"s_add_u32 s54, s54, {WS_H}"); k("s_add_u32 s55, s54, 28672")
    k(f"s_mul_i32 s56, s53, {2*3584}"); k(f"s_add_u32 s56, s56, {WS_ST}"); k("s_add_u32 s57, s56, 3584")
    k(f"s_mul_i32 s58, s53, {2*112}"); k(f"s_lshl_b32 s48, s{sPN}, 2"); k("s_add_u32 s58, s58, s48"); k("s_lshl_b32 s58, s58, 10")
    k(f"s_add_u32 s58, s58, {WS_HH}"); k(f"s_add_u32 s59, s58, {112*1024}")
    k(f"s_lshl_b32 s51, s53, 7"); k(f"s_add_u32 s50, s51, {FL2}")
    k(f"s_lshl_b32 s48, s{sPN}, 2"); k("s_add_u32 s51, s51, s48"); k(f"s_add_u32 s51, s51, {FL3}")
    k("s_waitcnt vmcnt(0)")
    def cr(c): return [f"ds_read_b64_tr_b16 {v(ACC+16*c+4*b+2*hh,2)}, v{STT+b} offset:{c*8192+hh*512}" for b in range(4) for hh in range(2)]
    for x in cr(0): k(x)
    for c in range(7):
        for x in (cr(c+1) if c < 6 else []): k(x)
        for b in range(4): k(f"{MF16} {v(CS,4)}, {v(SEL+4*b,4)}, {v(ACC+16*c+4*b,4)}, {'0' if (c == 0 and b == 0) else v(CS,4)}")
    k(f"s_mul_i32 s48, s{sWV}, 12288"); k(f"s_add_u32 s48, s48, {L_EX}")
    k(f"v_lshrrev_b32 v{T2}, 4, v{LANE}"); k(f"v_lshlrev_b32 v{T2}, 8, v{T2}")
    k(f"v_and_b32 v{T3}, 15, v{LANE}"); k(f"v_lshl_add_u32 v{T2}, v{T3}, 2, v{T2}"); k(f"v_add_u32 v{T2}, s48, v{T2}")
    for r in range(4): k(f"ds_write_b32 v{T2}, v{CS+r} offset:{r*64}")
    k(f"v_lshlrev_b32 v{T3}, 3, v{LANE}"); k(f"v_add_u32 v{T2}, {L_EX}, v{T3}"); k(f"v_add_u32 v{T3}, s48, v{T3}")
    k("s_waitcnt lgkmcnt(0)"); k("s_barrier")
    for p in range(4): k(f"ds_read_b64 {v(SEL+2*p,2)}, v{T2} offset:{p*12288}")
    for p in range(1, 4): k(f"v_pk_add_f32 {v(SEL,2)}, {v(SEL,2)}, {v(SEL+2*p,2)}")
    k(f"ds_write_b64 v{T3}, {v(SEL,2)} offset:1024")
    ACQ = 15
    k(f"v_lshrrev_b32 v{T3}, 5, v{LANE}"); k(f"v_lshl_add_u32 v{ACQ}, v{T3}, 4, s48")
    VST = T4
    k(f"v_and_b32 v{T1}, 31, v{LANE}"); k(f"v_lshlrev_b32 v{VST}, 3, v{T1}")
    k(f"v_mul_u32_u24 v{T3}, 1792, v{T3}"); k(f"v_add_u32 v{VST}, v{VST}, v{T3}")
    k(f"v_lshlrev_b32 v{T1}, 2, v{T1}")
    kc = OPT["kc"]
    steps = [(ks, b) for ks in range(4*kc) for b in range(4)] + [(ks, b) for b in range(4) for ks in range(4*kc, 28)]
    RD = 8; AH = 6
    def rw(n):
        ks, b = steps[n]
        return [f"ds_read_b64_tr_b16 {v(WF+4*(n%RD)+2*hh,2)}, v{AD+b} offset:{ks*2048+hh*512}" for hh in range(2)]
    for n in range(AH):
        for x in rw(n): k(x)
    stamp(k, 11)
    poll(k, "p3", T2, T1, "s50", 1, "0x0fffffff")
    stamp(k, 12)
    if STAMP: k("s_waitcnt lgkmcnt(0)")
    loads = []
    for ks in range(28):
        for t in range(2):
            loads.append(f"buffer_load_dwordx4 {a(8*ks+4*t,4)}, v{VL16}, {s(SWS,4)}, s{54+t} offen offset:{(ks&3)*1024} sc1")
        if (ks & 3) == 3: loads[-1] += "\ns_add_u32 s54, s54, 4096\ns_add_u32 s55, s55, 4096"
    stl = [f"buffer_load_dwordx2 {v(STT+14*t+2*p,2)}, v{VST}, {s(SWS,4)}, s{56+t} offen offset:{p*256} sc1" for t in range(2) for p in range(7)]
    loads = loads + stl
    NI = 12
    for x in loads[:NI]: k(x)
    loads = loads[NI:]
    def stats():
        o = []
        for t in range(2):
            sb = STT + 14*t
            for p in range(1, 7): o += [f"v_add_f32 v{sb}, v{sb}, v{sb+2*p}", f"v_add_f32 v{sb+1}, v{sb+1}, v{sb+2*p+1}"]
            o += [f"v_mov_b32 v{sb+2}, v{sb}", f"v_mov_b32 v{sb+3}, v{sb+1}",
                  f"v_permlane32_swap_b32 v{sb}, v{sb+2}", f"v_permlane32_swap_b32 v{sb+1}, v{sb+3}",
                  f"v_add_f32 v{sb}, v{sb}, v{sb+2}", f"v_add_f32 v{sb+1}, v{sb+1}, v{sb+3}",
                  f"v_mul_f32 v{MN+t}, 0xbb124925, v{sb}", f"v_mul_f32 v{sb+1}, {INVD}, v{sb+1}",
                  f"v_fma_f32 v{sb+1}, -v{MN+t}, v{MN+t}, v{sb+1}", f"v_max_f32 v{sb+1}, 0, v{sb+1}",
                  f"v_add_f32 v{sb+1}, {EPS5}, v{sb+1}", f"v_rcp_f32 v{R2+2*t}, v{sb+1}"]
        return o
    def cqr(b): return [f"ds_read_b128 {v(CQ+4*q,4)}, v{ACQ} offset:{1024+b*128+q*32}" for q in range(4)]
    def corr(b): return [f"v_fmac_f32 v{ACC+64*t+16*b+r}, v{MN+t}, v{CQ+r}" for t in range(2) for r in range(16)]
    def fin(b, pk):
        o = []
        for t in range(2):
            ac = ACC + 64*t + 16*b
            if pk:
                for r in range(0, 8, 2): o.append(f"v_pk_mul_f32 {v(ac+r,2)}, {v(ac+r,2)}, {v(ac+8+r,2)}")
                for r in range(0, 8, 2): o.append(f"v_pk_mul_f32 {v(ac+r,2)}, {v(ac+r,2)}, {v(R2+2*t,2)} op_sel_hi:[1,0]")
            else:
                for r in range(8): o.append(f"v_mul_f32 v{ac+r}, v{ac+r}, v{ac+8+r}")
                for r in range(8): o.append(f"v_mul_f32 v{ac+r}, v{ac+r}, v{R2+2*t}")
            for r in range(4): o.append(f"v_cvt_pk_bf16_f32 v{ac+8+r}, v{ac+2*r}, v{ac+2*r+1}")
            o.append(f"buffer_store_dwordx4 {v(ac+8,4)}, v{VL16}, {s(SWS,4)}, s{58+t} offen offset:{b*1024} sc1")
        return o
    nk = 16*kc; per = 28 - 4*kc
    extra = {}
    extra[nk] = cqr(3) + stats() + corr(3)
    for b in range(1, 4): extra[nk + b*per] = cqr(b-1) + ["", "", "", ""] + corr(b-1) + fin(b-1, False)
    cur = []
    seen = set()
    for n, (ks, b) in enumerate(steps):
        if n in extra:
            assert not cur, "filler overflow"
            cur = list(extra[n])
        rd = rw(n+AH) if n + AH < len(steps) else []
        for t in range(2):
            acc = v(ACC+64*t+16*b,16)
            k(f"{MF32} {acc}, {v(WF+4*(n%RD),4)}, {a(8*ks+4*t,4)}, {'0' if (b,t) not in seen else acc}")
            seen.add((b, t))
            if rd: k(rd.pop(0))
            if loads and (t == 0 or n % 2 == 0): k(loads.pop(0))
            for _ in range(4 if not loads else 0):
                if cur:
                    x = cur.pop(0)
                    if x: k(x)
        if n == nk - 1: stamp(k, 13)
    assert not cur and not loads
    stamp(k, 14)
    for x in fin(3, True): k(x)
    k("s_barrier")
    k("s_waitcnt vmcnt(0)")
    flag_store(k, 51)
    stamp(k, 15)

def phase4(k):
    VWA, A0, A1, EXA, ACC, HH = 12, 8, 9, 88, 24, 96
    NS = 40
    k(f"v_lshrrev_b32 v{T1}, 3, v{LANE}"); k(f"v_mul_u32_u24 v{VWA}, 896, v{T1}")
    k(f"v_bfe_u32 v{T1}, v{LANE}, 4, 1"); k(f"v_lshlrev_b32 v{T1}, 2, v{T1}")
    k(f"v_and_b32 v{T2}, 7, v{LANE}"); k(f"v_xor_b32 v{T1}, v{T1}, v{T2}")
    k(f"v_lshl_add_u32 v{VWA}, v{T1}, 4, v{VWA}")
    k(f"s_mul_i32 s50, s{sWV}, {448*896}"); k(f"s_lshl_b32 s48, s{sCT}, 7"); k("s_add_u32 s50, s50, s48")
    k(f"s_mul_i32 s51, s{sWV}, 28672")
    def dma(i0, i1):
        for i in range(i0, i1):
            k(f"s_add_u32 m0, s51, {(i%28)*1024}")
            k(f"buffer_load_dwordx4 v{VWA}, {s(SDN,4)}, s50 offen lds")
            k(f"s_add_u32 s50, s50, {8*896}")
    dma(0, 28)
    k(f"s_and_b32 s49, s{sWV}, 1")
    k(f"v_bfe_u32 v{T1}, v{LANE}, 4, 1"); k(f"v_lshlrev_b32 v{T1}, 5, v{T1}")
    k(f"v_and_b32 v{T2}, 1, v{LANE}"); k(f"v_lshl_add_u32 v{T1}, v{T2}, 4, v{T1}")
    k(f"v_bfe_u32 v{T2}, v{LANE}, 1, 1"); k(f"v_lshl_add_u32 v{T1}, v{T2}, 3, v{T1}")
    k(f"v_add_u32 v{T1}, s51, v{T1}")
    k(f"v_bfe_u32 v{T2}, v{LANE}, 2, 2"); k(f"v_lshrrev_b32 v{T3}, 5, v{LANE}")
    k(f"v_lshl_add_u32 v{A0}, v{T3}, 3, v{T2}"); k(f"v_lshl_add_u32 v{A0}, v{A0}, 7, v{T1}")
    k(f"v_bfe_u32 v{T2}, v{LANE}, 3, 1"); k(f"v_xor_b32 v{T2}, s49, v{T2}")
    k(f"v_lshl_add_u32 v{A0}, v{T2}, 6, v{A0}"); k(f"v_xor_b32 v{A1}, 64, v{A0}")
    exchange(k, ACC, EXA)
    k(f"s_mul_i32 s54, s{sWV}, 28672"); k(f"s_add_u32 s54, s54, {WS_HH}")
    k(f"s_mul_i32 s52, s{sTG}, {112*1024}"); k("s_add_u32 s52, s52, s54")
    k(f"s_xor_b32 s53, s{sTG}, 1"); k(f"s_mul_i32 s53, s53, {112*1024}"); k("s_add_u32 s53, s53, s54")
    k(f"s_lshl_b32 s55, s{sTT}, 7"); k(f"s_mul_i32 s48, s{sWV}, 28"); k("s_add_u32 s55, s55, s48"); k(f"s_add_u32 s55, s55, {FL3}")
    def rd(ks):
        return [f"ds_read_b64_tr_b16 {a(8*ks+4*cg+2*hh,2)}, v{A1 if cg else A0} offset:{(ks%14)*2048+hh*512}" for cg in range(2) for hh in range(2)]
    for g in range(7):
        k(f"s_waitcnt vmcnt(24)")
        for x in rd(2*g) + rd(2*g+1): k(x)
        k("s_waitcnt lgkmcnt(0)")
        dma(28+4*g, 32+4*g)
    k(f"v_and_b32 v{T1}, 7, v{LANE}"); k(f"v_lshlrev_b32 v{T1}, 2, v{T1}")
    stamp(k, 16)
    poll(k, "p4", T2, T1, "s55", 1, "0x7f")
    stamp(k, 17)
    if STAMP: k("s_waitcnt lgkmcnt(0)")
    loads = []
    for ks in range(28):
        for t in range(2):
            f = 2*ks + t
            loads.append(f"buffer_load_dwordx4 {v(HH+4*(f%NS),4)}, v{VL16}, {s(SWS,4)}, s{52+t} offen offset:{(ks&3)*1024} sc1")
        if (ks & 3) == 3: loads[-1] += "\ns_add_u32 s52, s52, 4096\ns_add_u32 s53, s53, 4096"
    NI = 16
    rds = [x for ks in range(14, 28) for x in rd(ks)]
    for i, x in enumerate(loads[:NI]):
        k(x)
    loads = loads[NI:]
    for ks in range(28):
        order = [(1, 1), (1, 0), (0, 1), (0, 0)] if ks == 27 else [(0, 0), (0, 1), (1, 0), (1, 1)]
        for j, (t, cg) in enumerate(order):
            acc = v(ACC+16*(2*t+cg),16)
            k(f"{MF32} {acc}, {a(8*ks+4*cg,4)}, {v(HH+4*((2*ks+t)%NS),4)}, {'0' if ks == 0 else acc}")
            if loads and (j & 1): k(loads.pop(0))
            for _ in range(2):
                if rds: k(rds.pop(0))
    stamp(k, 18)
    for i in (3, 2, 1):
        for x in exchange_w(ACC, EXA, i): k(x)
    for x in add_packed(ACC, HR, 8): k(x)
    exchange_r(k, ACC, EXA)
    sum_parts(k, ACC)
    for r in range(8): k(f"v_cvt_pk_bf16_f32 v{HR+r}, v{ACC+2*r}, v{ACC+2*r+1}")
    k(f"buffer_store_dwordx4 {v(HR,4)}, v14, {s(SO,4)}, s101 offen")
    k(f"buffer_store_dwordx4 {v(HR+4,4)}, v14, {s(SO,4)}, s101 offen offset:32")

def build(path, aslist=False):
    hdr = open("cdna_kernels/" + NAME + ".s.ref").read().split("; Override")[0]
    k = K()
    setup(k)
    tail = phase1(k)
    if OPT["stop"] > 1: phase2(k)
    if OPT["stop"] > 2: phase3(k)
    if OPT["stop"] > 3: phase4(k)
    k("L_fin:")
    stamp_out(k, 19)
    k("L_end:")
    k("s_endpgm")
    tail(k)
    lines = k.finalize()
    out = hdr
    kn = NAME + "_kernel"
    if aslist: out += f"; @launch kernel={kn} grid=(256,1,1) block=(256,1,1) lds=163840\n"
    else: out += f"; @launch grid=(256,1,1) block=(256,1,1) lds=163840\n"
    out += '.amdgcn_target "amdgcn-amd-amdhsa--gfx950"\n'
    out += kernel(kn, lines, 256, 256)
    open(path, "w").write(out)

if __name__ == "__main__":
    args = sys.argv[2:]
    for x in args:
        if x == "stamp": STAMP = True
        elif "=" in x:
            n, val = x.split("="); OPT[n] = eval(val)
    build(sys.argv[1], aslist=("list" in args))
```

```python
import sys
sys.path.insert(0, "dev")
from asmlib import *

NAME = "sequential_preLN__linear_attn_block__glu_gated_bilinear__prompt"
WS_KV, WS_FL, WS_PQ, WS_H, WS_ST, WS_HH = 0x0, 0x10000, 0x100000, 0x400000, 0x600000, 0x800000
FL1, FL2, FL3 = WS_FL, WS_FL + 0x1000, WS_FL + 0x2000
ONES = 0x3f803f80
EPS6 = "0x358637bd"; EPS5 = "0x3727c5ac"; INVD = "0x3b124925"; LOG2E = "0x3fb8aa3b"
MF32 = "v_mfma_f32_32x32x16_bf16"
MF16 = "v_mfma_f32_16x16x32_bf16"
SX, SW1, SWS, SD, SWO, SG, SU, SDN, SO = 4, 8, 12, 16, 20, 24, 28, 32, 36
sWV, sTB, sHD, sTT, sCT, sTB3, sPN, sJ = 40, 41, 42, 43, 44, 45, 46, 47
LANE, VL16 = 1, 2
T0, T1, T2, T3, T4 = 3, 4, 5, 6, 7
POLLMAX = 0x40000
OPT = dict(gu=(3, 2, 2), kc=3, stop=9)

STAMP = False
WS_TS = 0x2000000
def stamp(k, i):
    if STAMP: k(f"s_memrealtime {s(60+2*i,2)}")
def stamp_out(k, n):
    if not STAMP: return
    k("s_waitcnt vmcnt(0) lgkmcnt(0)")
    stamp(k, n)
    k("s_waitcnt lgkmcnt(0)")
    k("s_mov_b64 exec, 1")
    if OPT.get("dbg") is not None:
        k(f"s_lshl_b32 s58, s2, 2"); k(f"s_add_u32 s58, s58, s{sWV}")
        k(f"s_cmp_lg_u32 s58, {OPT['dbg']}"); k("s_cbranch_scc1 L_end")
        for j, i in enumerate([1,2,3,4,6,7,8,9,10,12,14,15,16,17,18,19]):
            k(f"s_sub_u32 s58, s{60+2*i}, s60"); k(f"v_mov_b32 v1, s58")
            k(f"buffer_store_dword v1, off, {s(SD,4)}, 0 offset:{4*j}")
        return
    k(f"s_lshl_b32 s58, s2, 2"); k(f"s_add_u32 s58, s58, s{sWV}"); k("s_lshl_b32 s58, s58, 7")
    k(f"s_add_u32 s58, s58, {WS_TS}")
    for i in range(n+1):
        k(f"v_mov_b32 v1, s{60+2*i}")
        k(f"buffer_store_dword v1, off, {s(SWS,4)}, s58 offset:{4*i}")

def mix(k, mf, fill, per=None, lead=0):
    fill = list(fill); n = len(mf)
    for _ in range(lead):
        if fill: k(fill.pop(0))
    for i, m in enumerate(mf):
        k(m)
        cnt = per if per is not None else -(-len(fill) // (n - i))
        for _ in range(cnt):
            if fill: k(fill.pop(0))
    for f in fill: k(f)

def poll(k, tag, vdst, vaddr, soff, cmp_val, mask_lo, first=True):
    k(f"s_mov_b32 s48, {POLLMAX}")
    k(f"L_poll_{tag}:")
    k(f"buffer_load_dword v{vdst}, v{vaddr}, {s(SWS,4)}, {soff} offen sc1")
    k("s_sub_u32 s48, s48, 1")
    k("s_waitcnt vmcnt(0)")
    k(f"v_cmp_eq_u32 vcc, {cmp_val}, v{vdst}")
    k(f"s_cbranch_scc1 L_pollx_{tag}")
    k(f"s_andn2_b32 s49, {mask_lo}, vcc_lo")
    k(f"s_cbranch_scc1 L_poll_{tag}")
    k(f"L_pollx_{tag}:")

def setup(k):
    k("s_cmp_ge_u32 s2, 256"); k("s_cbranch_scc1 L_end")
    stamp(k, 0)
    for sr, off in ((SX, 0), (SW1, 8), (SWS, 72), (SD, 64), (SWO, 16), (SG, 32), (SU, 40), (SDN, 48), (SO, 56)):
        k(f"s_load_dwordx2 {s(sr,2)}, s[0:1], {off}")
    k(f"v_and_b32 v{LANE}, 63, v0"); k(f"v_lshrrev_b32 v{T0}, 6, v0")
    k(f"v_readfirstlane_b32 s{sWV}, v{T0}")
    k(f"v_lshlrev_b32 v{VL16}, 4, v{LANE}")
    k("s_and_b32 s3, s2, 7"); k(f"s_lshr_b32 s{sJ}, s2, 3")
    k(f"s_and_b32 s48, s{sJ}, 3"); k(f"s_lshr_b32 s49, s{sJ}, 2")
    k(f"s_and_b32 s{sTB}, s3, 3"); k(f"s_lshl_b32 s{sTB}, s{sTB}, 2"); k(f"s_add_u32 s{sTB}, s{sTB}, s48")
    k(f"s_lshr_b32 s{sHD}, s3, 2"); k(f"s_lshl_b32 s{sHD}, s{sHD}, 3"); k(f"s_add_u32 s{sHD}, s{sHD}, s49")
    k(f"s_lshl_b32 s{sTT}, s3, 2"); k(f"s_add_u32 s{sTT}, s{sTT}, s48")
    k(f"s_min_u32 s{sCT}, s49, 6")
    k(f"s_and_b32 s{sTB3}, s3, 1"); k(f"s_lshl_b32 s{sTB3}, s{sTB3}, 2"); k(f"s_add_u32 s{sTB3}, s{sTB3}, s48")
    k(f"s_lshr_b32 s{sPN}, s3, 1"); k(f"s_mul_i32 s{sPN}, s{sPN}, 7"); k(f"s_add_u32 s{sPN}, s{sPN}, s{sCT}")
    for sr, size in ((SX, 2048*896), (SW1, 448*2688), (SWS, 268435456), (SD, 256), (SWO, 448*896), (SG, 448*3584),
                     (SU, 448*3584), (SDN, 1792*896), (SO, 2048*896)):
        k(f"s_mov_b32 {s(sr+2)}, {size}"); k(f"s_mov_b32 {s(sr+3)}, 0x00020000")

L_W, L_ONE, L_CS, L_ST, L_RING = 1024, 87040, 87552, 91648, 98304
def phase1(k):
    VX, VW, VWO, QINC, FL = 8, 12, 13, 14, 15
    AQ, AK, AXL, AX = 16, 20, 24, 28
    Q, KK, VV, G, CS, SEL, WF, XF = 32, 48, 64, 80, 96, 100, 112, 160
    sG, sXB, sWB, sLW, sRB, sDX, sRX, sIT, sA, sB, sWOo, sWOl = 50, 51, 52, 53, 54, 55, 56, 57, 58, 59, 100, 101
    k(f"v_lshrrev_b32 v{T1}, 2, v{LANE}"); k(f"v_mul_u32_u24 v{VW}, 2688, v{T1}")
    k(f"v_and_b32 v{T1}, 3, v{LANE}"); k(f"v_lshl_add_u32 v{VW}, v{T1}, 4, v{VW}")
    k(f"v_lshrrev_b32 v{T1}, 3, v{LANE}"); k(f"v_mul_u32_u24 v{T2}, 896, v{T1}")
    k(f"v_and_b32 v{T3}, 7, v{LANE}"); k(f"v_xor_b32 v{T3}, v{T3}, v{T1}")
    k(f"v_lshl_add_u32 v{VX}, v{T3}, 4, v{T2}")
    k(f"v_xor_b32 v{VX+1}, 16, v{VX}"); k(f"v_add_u32 v{VX+1}, 6144, v{VX+1}")
    k(f"v_add_u32 v{VX+2}, 12288, v{VX}"); k(f"v_add_u32 v{VX+3}, 12288, v{VX+1}")
    k(f"s_lshl_b32 s{sG}, s48, 1"); k(f"s_add_u32 s{sG}, s{sG}, s49")
    k(f"s_sub_u32 s{sA}, s{sG}, 7"); k(f"s_cselect_b32 s{sG}, s{sG}, s{sA}")
    k(f"s_lshl_b32 s{sXB}, s{sTB}, 2"); k(f"s_add_u32 s{sXB}, s{sXB}, s{sWV}"); k(f"s_mul_i32 s{sXB}, s{sXB}, 28672")
    k(f"s_mul_i32 s{sWB}, s{sWV}, {16*2688}"); k(f"s_mul_i32 s{sA}, s{sHD}, 56"); k(f"s_add_u32 s{sWB}, s{sWB}, s{sA}")
    k(f"s_lshl_b32 s{sLW}, s{sWV}, 10"); k(f"s_add_u32 s{sLW}, s{sLW}, {L_W}")
    k(f"s_lshl_b32 s{sRB}, s{sWV}, 14"); k(f"s_add_u32 s{sRB}, s{sRB}, {L_RING}")
    k(f"s_mov_b32 s{sDX}, 0")
    for i in range(4): k(f"v_mov_b32 v{CS+i}, 0")
    k("s_waitcnt lgkmcnt(0)")
    stamp(k, 1)
    k(f"s_cmp_lg_u32 s{sTB}, 0"); k("s_cbranch_scc1 L_p1_nz")
    k.cond_begin()
    k(f"v_lshlrev_b32 v{T3}, 4, v0"); k(f"s_lshl_b32 s{sA}, s{sHD}, 12")
    k(f"buffer_store_dwordx4 {v(CS,4)}, v{T3}, {s(SWS,4)}, s{sA} offen sc1")
    k(f"v_lshlrev_b32 v{T3}, 2, v0"); k(f"s_lshl_b32 s{sA}, s{sHD}, 10"); k(f"s_add_u32 s{sA}, s{sA}, {WS_FL}")
    k(f"buffer_store_dword v{CS}, v{T3}, {s(SWS,4)}, s{sA} offen sc1")
    k.cond_end()
    k("L_p1_nz:")
    def issue():
        k(f"s_mul_i32 s{sB}, s{sG}, {64*2688}"); k(f"s_add_u32 s{sB}, s{sB}, s{sWB}")
        k(f"s_lshl_b32 s{sA}, s{sG}, 7"); k(f"s_add_u32 s{sA}, s{sA}, s{sXB}")
        for m in range(3):
            k(f"s_add_u32 m0, s{sLW}, {m*4096 - m*896}")
            k(f"buffer_load_dwordx4 v{VW}, {s(SW1,4)}, s{sB} offen offset:{m*896} lds")
        k(f"s_add_u32 m0, s{sRB}, s{sDX}")
        k(f"s_add_u32 s{sG}, s{sG}, 1")
        for r in range(4):
            k(f"buffer_load_dwordx4 v{VX+r}, {s(SX,4)}, s{sA} offen offset:{r*1024} lds")
        k(f"s_cmp_eq_u32 s{sG}, 7"); k(f"s_cselect_b32 s{sG}, 0, s{sG}")
        k(f"s_add_u32 s{sLW}, s{sLW}, 12288")
        k(f"s_add_u32 s{sDX}, s{sDX}, 4096"); k(f"s_and_b32 s{sDX}, s{sDX}, 0x3fff")
    for c in range(3): issue()
    stamp(k, 2)
    k(f"v_mov_b32 v{T1}, {ONES}"); k(f"v_lshlrev_b32 v{T2}, 2, v{LANE}"); k(f"v_add_u32 v{T2}, {L_ONE}, v{T2}")
    k(f"ds_write2st64_b32 v{T2}, v{T1}, v{T1} offset0:0 offset1:1")
    k(f"v_lshrrev_b32 v{T0}, 5, v{LANE}"); k(f"v_lshlrev_b32 v{T0}, 9, v{T0}")
    k(f"v_bfe_u32 v{T2}, v{LANE}, 2, 2"); k(f"v_lshlrev_b32 v{T2}, 6, v{T2}")
    k(f"v_bfe_u32 v{T3}, v{LANE}, 4, 1"); k(f"v_lshl_add_u32 v{T2}, v{T3}, 5, v{T2}")
    k(f"v_and_b32 v{T3}, 3, v{LANE}"); k(f"v_lshl_add_u32 v{T2}, v{T3}, 3, v{T2}")
    k(f"v_add_u32 v{T0}, v{T0}, v{T2}"); k(f"v_add_u32 v{T2}, {L_ONE}, v{T2}")
    k(f"v_and_b32 v{T3}, 19, v{LANE}"); k(f"v_cmp_eq_u32 vcc, 19, v{T3}")
    k(f"v_mov_b32 v{QINC}, 12288"); k(f"v_cndmask_b32 v{QINC}, v{QINC}, v{CS}")
    k(f"v_and_b32 v{T3}, 31, v{LANE}"); k(f"v_lshlrev_b32 v{T4}, 7, v{T3}")
    k(f"v_bfe_u32 v{T3}, v{LANE}, 3, 1"); k(f"v_lshrrev_b32 v{AX}, 5, v{LANE}"); k(f"v_xor_b32 v{T3}, v{T3}, v{AX}")
    k(f"v_and_b32 v{AX}, 7, v{LANE}"); k(f"v_xor_b32 v{T3}, v{T3}, v{AX}")
    k(f"v_lshl_add_u32 v{T4}, v{T3}, 4, v{T4}")
    for i in range(4):
        k(f"s_xor_b32 s{sA}, s{sWV}, {i}"); k(f"s_lshl_b32 s{sB}, s{sA}, 5"); k(f"s_lshl_b32 s{sA}, s{sA}, 10")
        k(f"s_add_u32 s{sA}, s{sA}, {L_W}")
        k(f"v_add_u32 v{AK+i}, s{sA}, v{T0}"); k(f"v_cndmask_b32 v{AQ+i}, v{AK+i}, v{T2}")
        k(f"v_xor_b32 v{AXL+i}, s{sB}, v{T4}"); k(f"v_add_u32 v{AX+i}, s{sRB}, v{AXL+i}")
    k(f"v_and_b32 v{T2}, 15, v{LANE}"); k(f"v_bfe_u32 v{T3}, v{LANE}, 4, 1"); k(f"v_sub_u32 v{T2}, v{T2}, v{T3}")
    for m in range(3):
        k(f"v_cmp_eq_u32 vcc, {2*m}, v{T2}")
        for i in range(4): k(f"v_cndmask_b32 v{SEL+4*m+i}, v{CS}, v{T1}")
    for i in range(64): k(f"v_mov_b32 v{Q+i}, 0")
    k(f"v_lshrrev_b32 v{T1}, 3, v{LANE}"); k(f"v_mul_u32_u24 v{VWO}, 896, v{T1}")
    k(f"v_bfe_u32 v{T1}, v{LANE}, 4, 1"); k(f"v_lshlrev_b32 v{T1}, 2, v{T1}")
    k(f"v_and_b32 v{T2}, 7, v{LANE}"); k(f"v_xor_b32 v{T1}, v{T1}, v{T2}")
    k(f"v_lshl_add_u32 v{VWO}, v{T1}, 4, v{VWO}")
    k(f"s_mul_i32 s{sWOo}, s{sWV}, {112*896}"); k(f"s_lshl_b32 s{sA}, s{sCT}, 7"); k(f"s_add_u32 s{sWOo}, s{sWOo}, s{sA}")
    k(f"s_mul_i32 s{sWOl}, s{sWV}, 14336")
    k(f"s_mov_b32 s{sRX}, 0"); k(f"s_mov_b32 s{sIT}, 0")
    k("s_waitcnt vmcnt(14) lgkmcnt(0)"); k("s_barrier")
    stamp(k, 3)
    k(f"s_or_b32 s{sA}, s{sTB}, s{sWV}"); k("s_cbranch_scc1 L_p1_nf")
    k.cond_begin()
    k("s_mov_b64 exec, 1"); k(f"s_lshl_b32 s{sA}, s{sHD}, 2")
    k(f"buffer_store_dword v{QINC}, off, {s(SD,4)}, s{sA} sc1")
    k("s_mov_b64 exec, -1")
    k.cond_end()
    k("L_p1_nf:")
    if STAMP: k("s_waitcnt lgkmcnt(0)")
    def rdw(i, m):
        ar = (AQ if m == 0 else AK) + i
        return [f"ds_read_b64_tr_b16 {v(WF+12*i+4*m+2*hh,2)}, v{ar} offset:{m*4096+hh*256}" for hh in range(2)]
    def rdx(i): return [f"ds_read_b128 {v(XF+4*i,4)}, v{AX+i}"]
    def adv(i): return [f"v_add_u32 v{AQ+i}, v{QINC}, v{AQ+i}", f"v_add_u32 v{AK+i}, 12288, v{AK+i}", f"v_add_u32 v{AX+i}, s{sRX+0}, v{AXL+i}"]
    def nextrx():
        k(f"s_add_u32 s{sRX}, s{sRX}, 4096"); k(f"s_and_b32 s{sRX}, s{sRX}, 0x3fff"); k(f"s_or_b32 s{sRX}, s{sRX}, s{sRB}")
    mK = lambda i: f"{MF32} {v(KK,16)}, {v(XF+4*i,4)}, {v(WF+12*i+4,4)}, {v(KK,16)}"
    mV = lambda i: f"{MF32} {v(VV,16)}, {v(XF+4*i,4)}, {v(WF+12*i+8,4)}, {v(VV,16)}"
    mQ = lambda i: f"{MF32} {v(Q,16)}, {v(WF+12*i,4)}, {v(XF+4*i,4)}, {v(Q,16)}"
    mG = lambda i: f"{MF32} {v(G,16)}, {v(XF+4*i,4)}, {v(XF+4*i,4)}, {v(G,16)}"
    mC = lambda m: f"{MF16} {v(CS,4)}, {v(SEL+4*m,4)}, {v(WF+4*m,4)}, {v(CS,4)}"
    nextrx()
    for i in range(4):
        for x in rdw(i, 1) + rdw(i, 2) + rdw(i, 0) + rdx(i) + adv(i): k(x)
    k("L_p1_loop:")
    k("s_waitcnt vmcnt(7)"); k("s_barrier")
    k(f"s_cmp_ge_u32 s{sIT}, 4"); k("s_cbranch_scc1 L_p1_wo")
    k.cond_begin()
    issue()
    k.cond_end()
    k("L_p1_body:")
    nextrx()
    k(f"s_add_u32 s{sIT}, s{sIT}, 1")
    for m in range(3): k(mC(m))
    for i in range(4):
        k(mK(i)); [k(x) for x in rdw(i, 1)]
        k(mV(i)); [k(x) for x in rdw(i, 2)]
        k(mQ(i)); [k(x) for x in rdw(i, 0)]
        k(mG(i)); [k(x) for x in rdx(i) + adv(i)]
    k(f"s_cmp_lt_u32 s{sIT}, 6"); k("s_cbranch_scc1 L_p1_loop")
    stamp(k, 4)
    CK, CV, CQL, MEAN, RSTD, SXX = 176, 180, 184, 188, 190, 192
    CQ, MR, RR, TM = 112, 128, 144, 160
    for m in range(3): k(mC(m))
    k(mG(0)); k(f"v_lshrrev_b32 v{T1}, 4, v{LANE}"); k(f"v_lshlrev_b32 v{T1}, 6, v{T1}"); k(f"v_and_b32 v{T2}, 15, v{LANE}")
    k(mQ(0)); k(f"v_add_u32 v{T1}, v{T1}, v{T2}"); k(f"s_lshl_b32 s{sA}, s{sWV}, 2"); k(f"s_add_u32 s{sA}, s{sA}, {L_CS}")
    k(f"v_lshl_add_u32 v{T1}, v{T1}, 4, s{sA}")
    k(mG(1))
    for r in range(4): k(f"ds_write_b32 v{T1}, v{CS+r} offset:{r*256}")
    k(mQ(1))
    k(f"v_and_b32 v{T2}, 31, v{LANE}"); k(f"v_lshlrev_b32 v{T3}, 4, v{T2}"); k(f"v_add_u32 v{T3}, {L_CS}, v{T3}")
    k(f"s_lshl_b32 s{sB}, s{sWV}, 9"); k(f"s_add_u32 s{sB}, s{sB}, {L_ST}")
    k(mG(2)); k(mQ(2))
    k("s_waitcnt lgkmcnt(0)"); k("s_barrier")
    k(f"ds_read_b128 {v(CQL,4)}, v{T3}"); k(f"ds_read_b128 {v(CK,4)}, v{T3} offset:512"); k(f"ds_read_b128 {v(CV,4)}, v{T3} offset:1024")
    k(mG(3)); k(mQ(3))
    k(f"v_lshl_add_u32 v{T2}, v{T2}, 2, s{sB}")
    k(f"v_lshl_add_u32 v{T4}, v{LANE}, 2, s{sB}")
    k(f"v_lshrrev_b32 v{T3}, 5, v{LANE}"); k(f"v_lshl_add_u32 v{T3}, v{T3}, 4, s{sB}")
    k(mK(0))
    for x in (CQL, CK, CV):
        k(f"v_add_f32 v{x}, v{x}, v{x+1}"); k(f"v_add_f32 v{x+2}, v{x+2}, v{x+3}"); k(f"v_add_f32 v{x}, v{x}, v{x+2}")
        if x == CQL: k(f"ds_write_b32 v{T2}, v{CQL}"); k(mV(0))
    sel = []
    for lvl, (msk, stp) in enumerate(((0xaaaaaaaa, 1), (0xcccccccc, 2), (0xff00ff00, 4), (0xffff0000, 8))):
        sel.append(f"s_mov_b32 vcc_lo, {msk:#x}"); sel.append(f"s_mov_b32 vcc_hi, {msk:#x}")
        for r in range(0, 16, 2*stp): sel.append(f"v_cndmask_b32 v{G+r}, v{G+r}, v{G+r+stp}")
    mix(k, [mK(1), mV(1), mK(2)], sel)
    st = [f"v_mov_b32 v{G+1}, v{G}", f"v_mov_b32 v{MEAN}, v{Q+12}", f"v_mov_b32 v{RSTD}, v{Q+12}",
          "s_mov_b32 vcc_lo, 0xf0f0f0f0", "s_mov_b32 vcc_hi, 0xf0f0f0f0",
          f"v_permlane32_swap_b32 v{G}, v{G+1}", f"v_permlane32_swap_b32 v{RSTD}, v{MEAN}",
          f"v_cndmask_b32 v{SXX}, v{G}, v{G+1}",
          f"v_mul_f32 v{MEAN}, 0xbb124925, v{MEAN}",
          f"v_mul_f32 v{SXX}, {INVD}, v{SXX}",
          f"v_fma_f32 v{RSTD}, -v{MEAN}, v{MEAN}, v{SXX}",
          f"v_max_f32 v{RSTD}, 0, v{RSTD}", f"v_add_f32 v{RSTD}, {EPS5}, v{RSTD}", f"v_rsq_f32 v{RSTD}, v{RSTD}",
          "s_mov_b32 vcc_lo, 0", "s_mov_b32 vcc_hi, -1",
          f"v_cndmask_b32 v{SXX}, v{MEAN}, v{RSTD}",
          f"ds_write_b32 v{T4}, v{SXX} offset:128"]
    mix(k, [mV(2), mK(3), mV(3)], st)
    for q in range(4): k(f"ds_read_b128 {v(MR+4*q,4)}, v{T3} offset:{128+q*32}"); k(f"ds_read_b128 {v(RR+4*q,4)}, v{T3} offset:{256+q*32}")
    for q in range(4): k(f"ds_read_b128 {v(CQ+4*q,4)}, v{T3} offset:{q*32}")
    stamp(k, 5)
    EP, LG = 194, 196
    k(f"v_mov_b32 v{EP}, {EPS6}"); k(f"v_mov_b32 v{LG}, {LOG2E}")
    PK, PV, PQ = 200, 208, 216
    def phi(acc, dst, mean, cs, rstd, bt):
        o = []
        for r in range(0, 16, 2):
            A = v(acc+r,2)
            if bt:
                o.append(f"v_pk_fma_f32 {A}, {v(mean,2)}, {v(cs+r,2)}, {A} op_sel_hi:[0,1,1]")
                o.append(f"v_pk_fma_f32 {A}, {A}, {v(rstd,2)}, {v(EP,2)} op_sel_hi:[1,0,0]")
            else:
                o.append(f"v_pk_fma_f32 {A}, {v(mean+r,2)}, {v(cs,2)}, {A} op_sel_hi:[1,0,1]")
                o.append(f"v_pk_fma_f32 {A}, {A}, {v(rstd+r,2)}, {v(EP,2)} op_sel_hi:[1,1,0]")
        for r in range(0, 16, 2): o.append(f"v_pk_mul_f32 {v(TM+r,2)}, {v(acc+r,2)}, {v(LG,2)} op_sel_hi:[1,0]")
        for r in range(16):
            o.append(f"v_exp_f32_e64 v{TM+r}, v{TM+r} clamp"); o.append(f"v_max_f32 v{acc+r}, v{acc+r}, v{EP}")
        for r in range(0, 16, 2): o.append(f"v_pk_add_f32 {v(acc+r,2)}, {v(acc+r,2)}, {v(TM+r,2)}")
        for r in range(8): o.append(f"v_cvt_pk_bf16_f32 v{dst+r}, v{acc+2*r}, v{acc+2*r+1}")
        return o
    for x in phi(KK, PK, MR, CK, RR, False): k(x)
    for r in range(0, 16, 2): k(f"v_pk_fma_f32 {v(VV+r,2)}, {v(MR+r,2)}, {v(CV,2)}, {v(VV+r,2)} op_sel_hi:[1,0,1]")
    for r in range(0, 16, 2): k(f"v_pk_mul_f32 {v(VV+r,2)}, {v(VV+r,2)}, {v(RR+r,2)}")
    k("s_mov_b32 vcc_lo, 0x30000000"); k("s_mov_b32 vcc_hi, 0x30000000"); k(f"v_mov_b32 v{T0}, {ONES}")
    for r in range(8): k(f"v_cvt_pk_bf16_f32 v{PV+r}, v{VV+2*r}, v{VV+2*r+1}")
    for r in range(8): k(f"v_cndmask_b32 v{PV+r}, v{PV+r}, v{T0}")
    k(f"{MF32} {v(KK,16)}, {v(PK,4)}, {v(PV,4)}, 0")
    k(f"{MF32} {v(KK,16)}, {v(PK+4,4)}, {v(PV+4,4)}, {v(KK,16)}")
    k(f"v_and_b32 v{T1}, 31, v{LANE}")
    k(f"v_subrev_u32 v{T2}, 24, v{T1}"); k(f"v_lshlrev_b32 v{T2}, 2, v{T2}")
    k(f"v_mov_b32 v{T3}, 0x62735410")
    k(f"v_lshrrev_b32 v{T3}, v{T2}, v{T3}"); k(f"v_and_b32 v{T3}, 7, v{T3}"); k(f"v_add_u32 v{T3}, 24, v{T3}")
    k(f"v_cmp_le_u32 vcc, 24, v{T1}")
    k(f"v_cndmask_b32 v{T1}, v{T1}, v{T3}")
    k(f"v_and_b32 v{T2}, 32, v{LANE}"); k(f"v_add_u32 v{T1}, v{T1}, v{T2}")
    k(f"v_lshl_add_u32 v{T1}, v{T1}, 4, s{sRB}")
    qp = phi(Q, PQ, MEAN, CQ, RSTD, True)
    for x in qp[:8]: k(x)
    for q in range(4): k(f"ds_write_b128 v{T1}, {v(KK+4*q,4)} offset:{q*1024}")
    k(f"s_lshl_b32 s{sA}, s{sWV}, 10")
    k(f"v_lshl_add_u32 v{T2}, v{LANE}, 2, s{sA}"); k(f"v_add_u32 v{T3}, {L_RING}, v{T2}")
    for x in qp[8:24]: k(x)
    k("s_waitcnt lgkmcnt(0)"); k("s_barrier")
    for i in range(4):
        k(f"ds_read2st64_b32 {v(VV+4*i,2)}, v{T3} offset0:{i} offset1:{64+i}")
        k(f"ds_read2st64_b32 {v(VV+4*i+2,2)}, v{T3} offset0:{128+i} offset1:{192+i}")
    for x in qp[24:40]: k(x)
    k(f"s_mov_b32 s48, {POLLMAX}")
    k("s_waitcnt vmcnt(7)")
    k("L_p1_poll:")
    k(f"v_cmp_ne_u32 vcc, 0, v{FL}")
    k("s_sub_u32 s48, s48, 1"); k("s_cbranch_scc1 L_p1_go")
    k("s_andn2_b32 s49, 0xffff, vcc_lo"); k("s_cbranch_scc0 L_p1_go")
    k(f"v_lshlrev_b32 v{T0}, 2, v{LANE}")
    k(f"buffer_load_dword v{FL}, v{T0}, {s(SD,4)}, 0 offen sc1")
    k("s_waitcnt vmcnt(0)")
    k("s_branch L_p1_poll")
    k("L_p1_go:")
    k(f"s_lshl_b32 s{sA}, s{sHD}, 12")
    for i in range(4):
        k(f"v_pk_add_f32 {v(VV+4*i,2)}, {v(VV+4*i,2)}, {v(VV+4*i+2,2)}")
        k(f"v_add_f32 v{VV+4*i}, v{VV+4*i}, v{VV+4*i+1}")
    for i in range(4): k(f"buffer_atomic_add_f32 v{VV+4*i}, v{T2}, {s(SWS,4)}, s{sA} offen offset:{i*256} sc1")
    for x in qp[40:]: k(x)
    k("s_mov_b32 exec_lo, 0"); k(f"v_mov_b32 v{PQ+6}, 0"); k(f"v_mov_b32 v{PQ+7}, 0"); k("s_mov_b64 exec, -1")
    k(f"s_lshl_b32 s{sA}, s{sTB}, 2"); k(f"s_add_u32 s{sA}, s{sA}, s{sWV}"); k(f"s_lshl_b32 s{sA}, s{sA}, 4")
    k(f"s_add_u32 s{sA}, s{sA}, s{sHD}"); k(f"s_lshl_b32 s{sA}, s{sA}, 11"); k(f"s_add_u32 s{sA}, s{sA}, {WS_PQ}")
    k(f"buffer_store_dwordx4 {v(PQ,4)}, v{VL16}, {s(SWS,4)}, s{sA} offen sc1")
    k(f"buffer_store_dwordx4 {v(PQ+4,4)}, v{VL16}, {s(SWS,4)}, s{sA} offen offset:1024 sc1")
    stamp(k, 6)
    A0, A1, A2, A3 = 8, 9, 10, 11
    k(f"s_mul_i32 s{sA}, s{sWV}, 14336"); k(f"s_and_b32 s{sB}, s{sWV}, 1")
    k(f"v_bfe_u32 v{T1}, v{LANE}, 4, 1"); k(f"v_lshlrev_b32 v{T1}, 5, v{T1}")
    k(f"v_and_b32 v{T2}, 1, v{LANE}"); k(f"v_lshl_add_u32 v{T1}, v{T2}, 4, v{T1}")
    k(f"v_bfe_u32 v{T2}, v{LANE}, 1, 1"); k(f"v_lshl_add_u32 v{T1}, v{T2}, 3, v{T1}")
    k(f"v_add_u32 v{T1}, s{sA}, v{T1}")
    k(f"v_bfe_u32 v{T2}, v{LANE}, 2, 2"); k(f"v_lshrrev_b32 v{T3}, 5, v{LANE}")
    k(f"v_lshl_add_u32 v{A0}, v{T3}, 2, v{T2}"); k(f"v_lshl_add_u32 v{A0}, v{A0}, 7, v{T1}")
    k(f"v_bfe_u32 v{T2}, v{LANE}, 3, 1"); k(f"v_xor_b32 v{T2}, s{sB}, v{T2}")
    k(f"v_lshl_add_u32 v{A0}, v{T2}, 6, v{A0}"); k(f"v_xor_b32 v{A1}, 64, v{A0}")
    k(f"v_bfe_u32 v{T2}, v{LANE}, 2, 1"); k(f"v_lshl_add_u32 v{A2}, v{T3}, 1, v{T2}")
    k(f"v_lshl_add_u32 v{A2}, v{A2}, 7, v{T1}")
    k(f"v_xor_b32 v{T2}, s{sB}, v{T3}"); k(f"v_lshl_add_u32 v{A2}, v{T2}, 6, v{A2}")
    k(f"v_xor_b32 v{A3}, 64, v{A2}")
    k("s_waitcnt vmcnt(6)")
    for hd in range(4):
        for cg in range(2):
            ar, al = (A0, A2) if cg == 0 else (A1, A3)
            b = hd*3584; wf = 16*hd + 8*cg
            for j in range(3): k(f"ds_read_b64_tr_b16 {a(wf+2*j,2)}, v{ar} offset:{b+1024*j}")
            k(f"ds_read_b64_tr_b16 {a(wf+6,2)}, v{al} offset:{b+3072}")
    k("s_waitcnt vmcnt(0) lgkmcnt(0)"); k("s_barrier")
    k(f"s_cmp_lg_u32 s{sWV}, 0"); k("s_cbranch_scc1 L_p1_nc")
    k.cond_begin()
    k("s_mov_b64 exec, 1"); k(f"v_mov_b32 v{T0}, 1")
    k(f"s_lshl_b32 s{sA}, s{sHD}, 7"); k(f"s_add_u32 s{sA}, s{sA}, {FL1}")
    k(f"buffer_atomic_add v{T0}, off, {s(SWS,4)}, s{sA} sc1")
    k("s_mov_b64 exec, -1")
    k.cond_end()
    k("L_p1_nc:")
    stamp(k, 7)
    k(f"s_cmp_ge_u32 s{sJ}, 28"); k("s_cbranch_scc1 L_fin")
    def tail(k):
        k("L_p1_wo:")
        k(f"v_lshlrev_b32 v{T0}, 2, v{LANE}")
        k(f"buffer_load_dword v{FL}, v{T0}, {s(SD,4)}, 0 offen sc1")
        for i in range(7):
            k(f"s_add_u32 m0, s{sWOl}, {i*1024}")
            k(f"buffer_load_dwordx4 v{VWO}, {s(SWO,4)}, s{sWOo} offen lds")
            k(f"s_add_u32 s{sWOo}, s{sWOo}, {8*896}")
        k(f"s_add_u32 s{sWOl}, s{sWOl}, 7168")
        k("s_branch L_p1_body")
    return tail

VG, VU = 12, 13
def gu_setup(k):
    k(f"v_lshrrev_b32 v{T1}, 3, v{LANE}"); k(f"v_mul_u32_u24 v{VG}, 3584, v{T1}")
    k(f"v_bfe_u32 v{T1}, v{LANE}, 4, 1"); k(f"v_lshlrev_b32 v{T1}, 1, v{T1}")
    k(f"v_and_b32 v{T2}, 7, v{LANE}"); k(f"v_xor_b32 v{T1}, v{T1}, v{T2}")
    k(f"v_xor_b32 v{T2}, 4, v{T1}")
    k(f"v_lshl_add_u32 v{VU}, v{T2}, 4, v{VG}"); k(f"v_lshl_add_u32 v{VG}, v{T1}, 4, v{VG}")
    k(f"s_and_b32 s50, s{sJ}, 3"); k("s_lshl_b32 s50, s50, 1")
    k(f"s_mul_i32 s51, s{sWV}, {16*3584}"); k(f"s_lshl_b32 s52, s{sPN}, 7"); k("s_add_u32 s51, s51, s52")
    k(f"s_lshl_b32 s52, s{sWV}, 11")
def gu_issue(k, n):
    for _ in range(n):
        k(f"s_mul_i32 s53, s50, {64*3584}"); k("s_add_u32 s53, s53, s51"); k(f"s_add_u32 s54, s53, {8*3584}")
        k("s_lshl_b32 s55, s50, 13"); k("s_add_u32 s55, s55, s52")
        for m in range(2):
            for j in range(2):
                k(f"s_add_u32 m0, s55, {m*57344 + j*1024}")
                k(f"buffer_load_dwordx4 v{VU if m else VG}, {s(SU if m else SG,4)}, s{54 if j else 53} offen lds")
        k("s_add_u32 s50, s50, 1"); k("s_cmp_eq_u32 s50, 7"); k("s_cselect_b32 s50, 0, s50")

L_EX = 114688
def exchange(k, ACC, TMP):
    for i in range(1, 4):
        k(f"s_xor_b32 s48, s{sWV}, {i}"); k("s_mul_i32 s48, s48, 12288"); k(f"s_add_u32 s48, s48, {L_EX + (i-1)*4096}")
        k(f"v_add_u32 v{TMP+i}, s48, v{VL16}")
    k(f"s_mul_i32 s48, s{sWV}, 12288"); k(f"s_add_u32 s48, s48, {L_EX}")
    k(f"v_add_u32 v{TMP}, s48, v{VL16}")
def exchange_w(ACC, TMP, i):
    return [f"ds_write_b128 v{TMP+i}, {v(ACC+16*i+4*q,4)} offset:{q*1024}" for q in range(4)]
def exchange_r(k, ACC, TMP):
    k("s_waitcnt lgkmcnt(0)"); k("s_barrier")
    for i in range(1, 4):
        for q in range(4): k(f"ds_read_b128 {v(ACC+16*i+4*q,4)}, v{TMP} offset:{(i-1)*4096+q*1024}")
def add_packed(ACC, RES, TT):
    o = []
    for r in range(8):
        o += [f"v_lshlrev_b32 v{TT}, 16, v{RES+r}", f"v_and_b32 v{TT+1}, 0xffff0000, v{RES+r}",
              f"v_pk_add_f32 {v(ACC+2*r,2)}, {v(ACC+2*r,2)}, {v(TT,2)}"]
    return o
def sum_parts(k, ACC):
    for i in range(1, 4):
        for r in range(0, 16, 2): k(f"v_pk_add_f32 {v(ACC+r,2)}, {v(ACC+r,2)}, {v(ACC+16*i+r,2)}")
def flag_store(k, soff_reg):
    k("s_mov_b64 exec, 1"); k(f"v_mov_b32 v{T0}, 1")
    k(f"buffer_store_dword v{T0}, off, {s(SWS,4)}, s{soff_reg} sc1")
    k("s_mov_b64 exec, -1")

HR = 16
sTG = 100
def phase2(k):
    ACC, KVF, KVB, OD, OP, EXA = 24, 88, 152, 184, 216, 232
    PQ = 64
    gu_setup(k)
    k(f"s_lshr_b32 s48, s{sWV}, 1"); k(f"s_lshl_b32 s{sTG}, s{sTT}, 1"); k(f"s_add_u32 s{sTG}, s{sTG}, s48")
    k(f"v_and_b32 v{T1}, 31, v{LANE}"); k(f"v_mul_u32_u24 v{T1}, 896, v{T1}")
    k(f"v_lshrrev_b32 v{T2}, 5, v{LANE}"); k(f"v_lshl_add_u32 v14, v{T2}, 4, v{T1}")
    k(f"s_mul_i32 s101, s{sTG}, 28672"); k(f"s_lshl_b32 s48, s{sCT}, 7"); k("s_add_u32 s101, s101, s48")
    k(f"s_and_b32 s48, s{sWV}, 1"); k("s_lshl_b32 s48, s48, 6"); k("s_add_u32 s101, s101, s48")
    k(f"buffer_load_dwordx4 {v(HR,4)}, v14, {s(SX,4)}, s101 offen")
    k(f"buffer_load_dwordx4 {v(HR+4,4)}, v14, {s(SX,4)}, s101 offen offset:32")
    gu_issue(k, OPT["gu"][0])
    exchange(k, ACC, EXA)
    k(f"v_mov_b32 v{OP+7}, 0"); k(f"v_mov_b32 v{OP+15}, 0")
    k(f"s_lshl_b32 s56, s{sWV}, 14")
    k(f"s_lshl_b32 s59, s{sWV}, 13"); k(f"s_add_u32 s59, s59, {WS_PQ}")
    k(f"s_lshl_b32 s57, s{sTG}, 15"); k("s_add_u32 s57, s57, s59")
    k(f"s_xor_b32 s58, s{sTG}, 1"); k("s_lshl_b32 s58, s58, 15"); k("s_add_u32 s58, s58, s59")
    k(f"v_and_b32 v{T1}, 3, v{LANE}"); k(f"v_lshlrev_b32 v{T1}, 7, v{T1}")
    k(f"s_lshl_b32 s59, s{sWV}, 9"); k(f"s_add_u32 s59, s59, {FL1}")
    poll(k, "p2", T2, T1, "s59", 16, "15")
    stamp(k, 8)
    for hd in range(4):
        for q in range(4):
            k(f"buffer_load_dwordx4 {v(KVF+16*hd+4*q,4)}, v{VL16}, {s(SWS,4)}, s56 offen offset:{q*1024} sc1")
        k("s_add_u32 s56, s56, 4096")
        for t in range(2):
            for ks in range(2):
                k(f"buffer_load_dwordx4 {a(PQ+16*hd+8*t+4*ks,4)}, v{VL16}, {s(SWS,4)}, s{57+t} offen offset:{(hd&1)*2048+ks*1024} sc1")
        if hd == 1: k("s_add_u32 s57, s57, 4096"); k("s_add_u32 s58, s58, 4096")
    gu_issue(k, OPT["gu"][1])
    def cvt(hd): return [f"v_cvt_pk_bf16_f32 v{KVB+8*hd+r}, v{KVF+16*hd+2*r}, v{KVF+16*hd+2*r+1}" for r in range(8)]
    def mo(u):
        hd, t = u >> 1, u & 1; od = v(OD+16*(u&1),16)
        return [f"{MF32} {od}, {v(KVB+8*hd,4)}, {a(PQ+16*hd+8*t,4)}, 0", f"{MF32} {od}, {v(KVB+8*hd+4,4)}, {a(PQ+16*hd+8*t+4,4)}, {od}"]
    def vo(u):
        od = OD+16*(u&1); op = OP + 8*(u&1)
        o = [f"v_add_f32 v{T1}, {EPS6}, v{od+15}", f"v_rcp_f32 v{T1}, v{T1}"]
        for r in range(7):
            o += [f"v_mul_f32 v{od+2*r}, v{od+2*r}, v{T1}", f"v_mul_f32 v{od+2*r+1}, v{od+2*r+1}, v{T1}"]
        for r in range(7): o.append(f"v_cvt_pk_bf16_f32 v{op+r}, v{od+2*r}, v{od+2*r+1}")
        return o
    def mw(u):
        hd, t = u >> 1, u & 1; op = OP + 8*(u&1); o = []
        for ks in range(2):
            for cg in range(2):
                acc = v(ACC+16*(2*t+cg),16)
                o.append(f"{MF32} {acc}, {a(16*hd+8*cg+4*ks,4)}, {v(op+4*ks,4)}, {'0' if (hd == 0 and ks == 0) else acc}")
        return o
    for x in cvt(0): k(x)
    for x in mo(0) + mo(1): k(x)
    for x in cvt(1): k(x)
    for x in vo(0): k(x)
    for u in range(8):
        mf = mw(u) + (mo(u+2) if u + 2 < 8 else [])
        fl = (vo(u+1) if u + 1 < 8 else [])
        if u in (1, 3): fl = cvt((u+3)//2) + fl
        if u == 7: fl = exchange_w(ACC, EXA, 1) + add_packed(ACC, HR, 8)
        mix(k, mf, fl)
    stamp(k, 9)
    for x in exchange_w(ACC, EXA, 2) + exchange_w(ACC, EXA, 3): k(x)
    exchange_r(k, ACC, EXA)
    k(f"s_mul_i32 s56, s{sTG}, 28"); k(f"s_lshl_b32 s48, s{sCT}, 2"); k("s_add_u32 s56, s56, s48")
    k(f"s_and_b32 s49, s{sWV}, 1"); k("s_lshl_b32 s48, s49, 1"); k("s_add_u32 s56, s56, s48"); k("s_lshl_b32 s56, s56, 10")
    k(f"s_add_u32 s56, s56, {WS_H}")
    k(f"s_mul_i32 s57, s{sTG}, 14"); k(f"s_lshl_b32 s48, s{sCT}, 1"); k("s_add_u32 s57, s57, s48"); k("s_add_u32 s57, s57, s49")
    k("s_lshl_b32 s57, s57, 8"); k(f"s_add_u32 s57, s57, {WS_ST}")
    k(f"s_lshl_b32 s58, s{sTT}, 5"); k(f"s_lshl_b32 s48, s{sCT}, 2"); k("s_add_u32 s58, s58, s48"); k(f"s_add_u32 s58, s58, s{sWV}")
    k("s_lshl_b32 s58, s58, 2"); k(f"s_add_u32 s58, s58, {FL2}")
    sum_parts(k, ACC)
    for r in range(8): k(f"v_cvt_pk_bf16_f32 v{HR+r}, v{ACC+2*r}, v{ACC+2*r+1}")
    k(f"buffer_store_dwordx4 {v(HR,4)}, v{VL16}, {s(SWS,4)}, s56 offen sc1")
    k(f"buffer_store_dwordx4 {v(HR+4,4)}, v{VL16}, {s(SWS,4)}, s56 offen offset:1024 sc1")
    S1, S2 = 8, 9
    k(f"s_mov_b32 s48, {ONES}")
    k(f"v_mov_b32 v{S1}, 0"); k(f"v_mov_b32 v{S2}, 0")
    for r in range(8):
        k(f"v_dot2c_f32_bf16 v{S1}, s48, v{HR+r}"); k(f"v_dot2c_f32_bf16 v{S2}, v{HR+r}, v{HR+r}")
    k(f"v_mov_b32 v10, v{S1}"); k(f"v_mov_b32 v11, v{S2}")
    k(f"v_permlane32_swap_b32 v{S1}, v10"); k(f"v_permlane32_swap_b32 v{S2}, v11")
    k(f"v_add_f32 v{S1}, v{S1}, v10"); k(f"v_add_f32 v{S2}, v{S2}, v11")
    k(f"v_lshlrev_b32 v{T1}, 3, v{LANE}")
    k("s_mov_b32 exec_hi, 0")
    k(f"buffer_store_dwordx2 {v(S1,2)}, v{T1}, {s(SWS,4)}, s57 offen sc1")
    k("s_mov_b32 exec_hi, -1")
    k("s_waitcnt vmcnt(0)")
    flag_store(k, 58)
    stamp(k, 10)

def phase3(k):
    AD, SEL, CS, STT, MN, R2 = 24, 28, 44, 48, 8, 10
    WF, CQ, ACC = 80, 112, 128
    gu_issue(k, OPT["gu"][2])
    k(f"v_bfe_u32 v{T1}, v{LANE}, 4, 1"); k(f"v_mul_u32_u24 v{T0}, 57344, v{T1}")
    k(f"v_lshrrev_b32 v{T2}, 5, v{LANE}"); k(f"v_lshl_add_u32 v{T0}, v{T2}, 10, v{T0}")
    k(f"v_bfe_u32 v{T2}, v{LANE}, 2, 2"); k(f"v_lshl_add_u32 v{T0}, v{T2}, 7, v{T0}")
    k(f"v_and_b32 v{T2}, 1, v{LANE}"); k(f"v_lshl_add_u32 v{T0}, v{T2}, 4, v{T0}")
    k(f"v_bfe_u32 v{T2}, v{LANE}, 1, 1"); k(f"v_lshl_add_u32 v{T0}, v{T2}, 3, v{T0}")
    k(f"v_bfe_u32 v{T2}, v{LANE}, 3, 2"); k(f"v_lshl_add_u32 v{T0}, v{T2}, 5, v{T0}")
    for b in range(4):
        k(f"v_xor_b32 v{AD+b}, {b*32}, v{T0}"); k(f"v_add_u32 v{STT+b}, s52, v{AD+b}")
    k(f"v_and_b32 v{T1}, 15, v{LANE}"); k(f"v_bfe_u32 v{T2}, v{LANE}, 4, 1"); k(f"v_sub_u32 v{T1}, v{T1}, v{T2}")
    k(f"v_mov_b32 v{T2}, {ONES}"); k(f"v_mov_b32 v{T3}, 0")
    for b in range(4):
        k(f"v_cmp_eq_u32 vcc, {2*b}, v{T1}")
        for i in range(4): k(f"v_cndmask_b32 v{SEL+4*b+i}, v{T3}, v{T2}")
    k(f"s_lshl_b32 s53, s{sTB3}, 2"); k(f"s_add_u32 s53, s53, s{sWV}")
    k(f"s_mul_i32 s54, s53, {2*28672}"); k(f"s_add_u32 s54, s54, {WS_H}"); k("s_add_u32 s55, s54, 28672")
    k(f"s_mul_i32 s56, s53, {2*3584}"); k(f"s_add_u32 s56, s56, {WS_ST}"); k("s_add_u32 s57, s56, 3584")
    k(f"s_mul_i32 s58, s53, {2*112}"); k(f"s_lshl_b32 s48, s{sPN}, 2"); k("s_add_u32 s58, s58, s48"); k("s_lshl_b32 s58, s58, 10")
    k(f"s_add_u32 s58, s58, {WS_HH}"); k(f"s_add_u32 s59, s58, {112*1024}")
    k(f"s_lshl_b32 s51, s53, 7"); k(f"s_add_u32 s50, s51, {FL2}")
    k(f"s_lshl_b32 s48, s{sPN}, 2"); k("s_add_u32 s51, s51, s48"); k(f"s_add_u32 s51, s51, {FL3}")
    k("s_waitcnt vmcnt(0)")
    def cr(c): return [f"ds_read_b64_tr_b16 {v(ACC+16*c+4*b+2*hh,2)}, v{STT+b} offset:{c*8192+hh*512}" for b in range(4) for hh in range(2)]
    for x in cr(0): k(x)
    for c in range(7):
        for x in (cr(c+1) if c < 6 else []): k(x)
        for b in range(4): k(f"{MF16} {v(CS,4)}, {v(SEL+4*b,4)}, {v(ACC+16*c+4*b,4)}, {'0' if (c == 0 and b == 0) else v(CS,4)}")
    k(f"s_mul_i32 s48, s{sWV}, 12288"); k(f"s_add_u32 s48, s48, {L_EX}")
    k(f"v_lshrrev_b32 v{T2}, 4, v{LANE}"); k(f"v_lshlrev_b32 v{T2}, 8, v{T2}")
    k(f"v_and_b32 v{T3}, 15, v{LANE}"); k(f"v_lshl_add_u32 v{T2}, v{T3}, 2, v{T2}"); k(f"v_add_u32 v{T2}, s48, v{T2}")
    for r in range(4): k(f"ds_write_b32 v{T2}, v{CS+r} offset:{r*64}")
    k(f"v_lshlrev_b32 v{T3}, 3, v{LANE}"); k(f"v_add_u32 v{T2}, {L_EX}, v{T3}"); k(f"v_add_u32 v{T3}, s48, v{T3}")
    k("s_waitcnt lgkmcnt(0)"); k("s_barrier")
    for p in range(4): k(f"ds_read_b64 {v(SEL+2*p,2)}, v{T2} offset:{p*12288}")
    for p in range(1, 4): k(f"v_pk_add_f32 {v(SEL,2)}, {v(SEL,2)}, {v(SEL+2*p,2)}")
    k(f"ds_write_b64 v{T3}, {v(SEL,2)} offset:1024")
    ACQ = 15
    k(f"v_lshrrev_b32 v{T3}, 5, v{LANE}"); k(f"v_lshl_add_u32 v{ACQ}, v{T3}, 4, s48")
    VST = T4
    k(f"v_and_b32 v{T1}, 31, v{LANE}"); k(f"v_lshlrev_b32 v{VST}, 3, v{T1}")
    k(f"v_mul_u32_u24 v{T3}, 1792, v{T3}"); k(f"v_add_u32 v{VST}, v{VST}, v{T3}")
    k(f"v_lshlrev_b32 v{T1}, 2, v{T1}")
    kc = OPT["kc"]
    steps = [(ks, b) for ks in range(4*kc) for b in range(4)] + [(ks, b) for b in range(4) for ks in range(4*kc, 28)]
    RD = 8; AH = 6
    def rw(n):
        ks, b = steps[n]
        return [f"ds_read_b64_tr_b16 {v(WF+4*(n%RD)+2*hh,2)}, v{AD+b} offset:{ks*2048+hh*512}" for hh in range(2)]
    for n in range(AH):
        for x in rw(n): k(x)
    stamp(k, 11)
    poll(k, "p3", T2, T1, "s50", 1, "0x0fffffff")
    stamp(k, 12)
    if STAMP: k("s_waitcnt lgkmcnt(0)")
    loads = []
    for ks in range(28):
        for t in range(2):
            loads.append(f"buffer_load_dwordx4 {a(8*ks+4*t,4)}, v{VL16}, {s(SWS,4)}, s{54+t} offen offset:{(ks&3)*1024} sc1")
        if (ks & 3) == 3: loads[-1] += "\ns_add_u32 s54, s54, 4096\ns_add_u32 s55, s55, 4096"
    stl = [f"buffer_load_dwordx2 {v(STT+14*t+2*p,2)}, v{VST}, {s(SWS,4)}, s{56+t} offen offset:{p*256} sc1" for t in range(2) for p in range(7)]
    loads = loads + stl
    NI = 12
    for x in loads[:NI]: k(x)
    loads = loads[NI:]
    def stats():
        o = []
        for t in range(2):
            sb = STT + 14*t
            for p in range(1, 7): o += [f"v_add_f32 v{sb}, v{sb}, v{sb+2*p}", f"v_add_f32 v{sb+1}, v{sb+1}, v{sb+2*p+1}"]
            o += [f"v_mov_b32 v{sb+2}, v{sb}", f"v_mov_b32 v{sb+3}, v{sb+1}",
                  f"v_permlane32_swap_b32 v{sb}, v{sb+2}", f"v_permlane32_swap_b32 v{sb+1}, v{sb+3}",
                  f"v_add_f32 v{sb}, v{sb}, v{sb+2}", f"v_add_f32 v{sb+1}, v{sb+1}, v{sb+3}",
                  f"v_mul_f32 v{MN+t}, 0xbb124925, v{sb}", f"v_mul_f32 v{sb+1}, {INVD}, v{sb+1}",
                  f"v_fma_f32 v{sb+1}, -v{MN+t}, v{MN+t}, v{sb+1}", f"v_max_f32 v{sb+1}, 0, v{sb+1}",
                  f"v_add_f32 v{sb+1}, {EPS5}, v{sb+1}", f"v_rcp_f32 v{R2+2*t}, v{sb+1}"]
        return o
    def cqr(b): return [f"ds_read_b128 {v(CQ+4*q,4)}, v{ACQ} offset:{1024+b*128+q*32}" for q in range(4)]
    def corr(b): return [f"v_fmac_f32 v{ACC+64*t+16*b+r}, v{MN+t}, v{CQ+r}" for t in range(2) for r in range(16)]
    def fin(b, pk):
        o = []
        for t in range(2):
            ac = ACC + 64*t + 16*b
            if pk:
                for r in range(0, 8, 2): o.append(f"v_pk_mul_f32 {v(ac+r,2)}, {v(ac+r,2)}, {v(ac+8+r,2)}")
                for r in range(0, 8, 2): o.append(f"v_pk_mul_f32 {v(ac+r,2)}, {v(ac+r,2)}, {v(R2+2*t,2)} op_sel_hi:[1,0]")
            else:
                for r in range(8): o.append(f"v_mul_f32 v{ac+r}, v{ac+r}, v{ac+8+r}")
                for r in range(8): o.append(f"v_mul_f32 v{ac+r}, v{ac+r}, v{R2+2*t}")
            for r in range(4): o.append(f"v_cvt_pk_bf16_f32 v{ac+8+r}, v{ac+2*r}, v{ac+2*r+1}")
            o.append(f"buffer_store_dwordx4 {v(ac+8,4)}, v{VL16}, {s(SWS,4)}, s{58+t} offen offset:{b*1024} sc1")
        return o
    nk = 16*kc; per = 28 - 4*kc
    extra = {}
    extra[nk] = cqr(3) + stats() + corr(3)
    for b in range(1, 4): extra[nk + b*per] = cqr(b-1) + ["", "", "", ""] + corr(b-1) + fin(b-1, False)
    cur = []
    seen = set()
    for n, (ks, b) in enumerate(steps):
        if n in extra:
            assert not cur, "filler overflow"
            cur = list(extra[n])
        rd = rw(n+AH) if n + AH < len(steps) else []
        for t in range(2):
            acc = v(ACC+64*t+16*b,16)
            k(f"{MF32} {acc}, {v(WF+4*(n%RD),4)}, {a(8*ks+4*t,4)}, {'0' if (b,t) not in seen else acc}")
            seen.add((b, t))
            if rd: k(rd.pop(0))
            if loads and (t == 0 or n % 2 == 0): k(loads.pop(0))
            for _ in range(4 if not loads else 0):
                if cur:
                    x = cur.pop(0)
                    if x: k(x)
        if n == nk - 1: stamp(k, 13)
    assert not cur and not loads
    stamp(k, 14)
    for x in fin(3, True): k(x)
    k("s_barrier")
    k("s_waitcnt vmcnt(0)")
    flag_store(k, 51)
    stamp(k, 15)

def phase4(k):
    VWA, A0, A1, EXA, ACC, HH = 12, 8, 9, 88, 24, 96
    NS = 40
    k(f"v_lshrrev_b32 v{T1}, 3, v{LANE}"); k(f"v_mul_u32_u24 v{VWA}, 896, v{T1}")
    k(f"v_bfe_u32 v{T1}, v{LANE}, 4, 1"); k(f"v_lshlrev_b32 v{T1}, 2, v{T1}")
    k(f"v_and_b32 v{T2}, 7, v{LANE}"); k(f"v_xor_b32 v{T1}, v{T1}, v{T2}")
    k(f"v_lshl_add_u32 v{VWA}, v{T1}, 4, v{VWA}")
    k(f"s_mul_i32 s50, s{sWV}, {448*896}"); k(f"s_lshl_b32 s48, s{sCT}, 7"); k("s_add_u32 s50, s50, s48")
    k(f"s_mul_i32 s51, s{sWV}, 28672")
    def dma(i0, i1):
        for i in range(i0, i1):
            k(f"s_add_u32 m0, s51, {(i%28)*1024}")
            k(f"buffer_load_dwordx4 v{VWA}, {s(SDN,4)}, s50 offen lds")
            k(f"s_add_u32 s50, s50, {8*896}")
    dma(0, 28)
    k(f"s_and_b32 s49, s{sWV}, 1")
    k(f"v_bfe_u32 v{T1}, v{LANE}, 4, 1"); k(f"v_lshlrev_b32 v{T1}, 5, v{T1}")
    k(f"v_and_b32 v{T2}, 1, v{LANE}"); k(f"v_lshl_add_u32 v{T1}, v{T2}, 4, v{T1}")
    k(f"v_bfe_u32 v{T2}, v{LANE}, 1, 1"); k(f"v_lshl_add_u32 v{T1}, v{T2}, 3, v{T1}")
    k(f"v_add_u32 v{T1}, s51, v{T1}")
    k(f"v_bfe_u32 v{T2}, v{LANE}, 2, 2"); k(f"v_lshrrev_b32 v{T3}, 5, v{LANE}")
    k(f"v_lshl_add_u32 v{A0}, v{T3}, 3, v{T2}"); k(f"v_lshl_add_u32 v{A0}, v{A0}, 7, v{T1}")
    k(f"v_bfe_u32 v{T2}, v{LANE}, 3, 1"); k(f"v_xor_b32 v{T2}, s49, v{T2}")
    k(f"v_lshl_add_u32 v{A0}, v{T2}, 6, v{A0}"); k(f"v_xor_b32 v{A1}, 64, v{A0}")
    exchange(k, ACC, EXA)
    k(f"s_mul_i32 s54, s{sWV}, 28672"); k(f"s_add_u32 s54, s54, {WS_HH}")
    k(f"s_mul_i32 s52, s{sTG}, {112*1024}"); k("s_add_u32 s52, s52, s54")
    k(f"s_xor_b32 s53, s{sTG}, 1"); k(f"s_mul_i32 s53, s53, {112*1024}"); k("s_add_u32 s53, s53, s54")
    k(f"s_lshl_b32 s55, s{sTT}, 7"); k(f"s_mul_i32 s48, s{sWV}, 28"); k("s_add_u32 s55, s55, s48"); k(f"s_add_u32 s55, s55, {FL3}")
    def rd(ks):
        return [f"ds_read_b64_tr_b16 {a(8*ks+4*cg+2*hh,2)}, v{A1 if cg else A0} offset:{(ks%14)*2048+hh*512}" for cg in range(2) for hh in range(2)]
    for g in range(7):
        k(f"s_waitcnt vmcnt(24)")
        for x in rd(2*g) + rd(2*g+1): k(x)
        k("s_waitcnt lgkmcnt(0)")
        dma(28+4*g, 32+4*g)
    k(f"v_and_b32 v{T1}, 7, v{LANE}"); k(f"v_lshlrev_b32 v{T1}, 2, v{T1}")
    stamp(k, 16)
    poll(k, "p4", T2, T1, "s55", 1, "0x7f")
    stamp(k, 17)
    if STAMP: k("s_waitcnt lgkmcnt(0)")
    loads = []
    for ks in range(28):
        for t in range(2):
            f = 2*ks + t
            loads.append(f"buffer_load_dwordx4 {v(HH+4*(f%NS),4)}, v{VL16}, {s(SWS,4)}, s{52+t} offen offset:{(ks&3)*1024} sc1")
        if (ks & 3) == 3: loads[-1] += "\ns_add_u32 s52, s52, 4096\ns_add_u32 s53, s53, 4096"
    NI = 16
    rds = [x for ks in range(14, 28) for x in rd(ks)]
    for i, x in enumerate(loads[:NI]):
        k(x)
    loads = loads[NI:]
    for ks in range(28):
        order = [(1, 1), (1, 0), (0, 1), (0, 0)] if ks == 27 else [(0, 0), (0, 1), (1, 0), (1, 1)]
        for j, (t, cg) in enumerate(order):
            acc = v(ACC+16*(2*t+cg),16)
            k(f"{MF32} {acc}, {a(8*ks+4*cg,4)}, {v(HH+4*((2*ks+t)%NS),4)}, {'0' if ks == 0 else acc}")
            if loads and (j & 1): k(loads.pop(0))
            for _ in range(2):
                if rds: k(rds.pop(0))
    stamp(k, 18)
    for i in (3, 2, 1):
        for x in exchange_w(ACC, EXA, i): k(x)
    for x in add_packed(ACC, HR, 8): k(x)
    exchange_r(k, ACC, EXA)
    sum_parts(k, ACC)
    for r in range(8): k(f"v_cvt_pk_bf16_f32 v{HR+r}, v{ACC+2*r}, v{ACC+2*r+1}")
    k(f"buffer_store_dwordx4 {v(HR,4)}, v14, {s(SO,4)}, s101 offen")
    k(f"buffer_store_dwordx4 {v(HR+4,4)}, v14, {s(SO,4)}, s101 offen offset:32")

def build(path, aslist=False):
    hdr = open("cdna_kernels/" + NAME + ".s.ref").read().split("; Override")[0]
    k = K()
    setup(k)
    tail = phase1(k)
    if OPT["stop"] > 1: phase2(k)
    if OPT["stop"] > 2: phase3(k)
    if OPT["stop"] > 3: phase4(k)
    k("L_fin:")
    stamp_out(k, 19)
    k("L_end:")
    k("s_endpgm")
    tail(k)
    lines = k.finalize()
    out = hdr
    kn = NAME + "_kernel"
    if aslist: out += f"; @launch kernel={kn} grid=(256,1,1) block=(256,1,1) lds=163840\n"
    else: out += f"; @launch grid=(256,1,1) block=(256,1,1) lds=163840\n"
    out += '.amdgcn_target "amdgcn-amd-amdhsa--gfx950"\n'
    out += kernel(kn, lines, 256, 256)
    open(path, "w").write(out)

if __name__ == "__main__":
    args = sys.argv[2:]
    for x in args:
        if x == "stamp": STAMP = True
        elif "=" in x:
            n, val = x.split("="); OPT[n] = eval(val)
    build(sys.argv[1], aslist=("list" in args))
```

```python
import sys
sys.path.insert(0, "dev")
from asmlib import *

NAME = "sequential_preLN__linear_attn_block__glu_gated_bilinear__prompt"
WS_KV, WS_FL, WS_PQ, WS_H, WS_ST, WS_HH = 0x0, 0x10000, 0x100000, 0x400000, 0x600000, 0x800000
FL1, FL2, FL3 = WS_FL, WS_FL + 0x1000, WS_FL + 0x2000
ONES = 0x3f803f80
EPS6 = "0x358637bd"; EPS5 = "0x3727c5ac"; INVD = "0x3b124925"; LOG2E = "0x3fb8aa3b"
MF32 = "v_mfma_f32_32x32x16_bf16"
MF16 = "v_mfma_f32_16x16x32_bf16"
SX, SW1, SWS, SD, SWO, SG, SU, SDN, SO = 4, 8, 12, 16, 20, 24, 28, 32, 36
sWV, sTB, sHD, sTT, sCT, sTB3, sPN, sJ = 40, 41, 42, 43, 44, 45, 46, 47
LANE, VL16 = 1, 2
T0, T1, T2, T3, T4 = 3, 4, 5, 6, 7
POLLMAX = 0x40000
OPT = dict(gu=(3, 2, 2), kc=3, stop=9)

STAMP = False
WS_TS = 0x2000000
def stamp(k, i):
    if STAMP: k(f"s_memrealtime {s(60+2*i,2)}")
def stamp_out(k, n):
    if not STAMP: return
    k("s_waitcnt vmcnt(0) lgkmcnt(0)")
    stamp(k, n)
    k("s_waitcnt lgkmcnt(0)")
    if OPT.get("pad") is not None:
        i = OPT["pad"]
        k(f"s_cmp_ge_u32 s{sJ}, 28"); k("s_cbranch_scc1 L_end")
        k(f"s_add_u32 s58, s{60+2*i}, 5000")
        k("L_padw:")
        k("s_memrealtime s[56:57]"); k("s_waitcnt lgkmcnt(0)")
        k("s_sub_u32 s59, s56, s58"); k("s_cmp_lt_i32 s59, 0"); k("s_cbranch_scc1 L_padw")
        return
    k("s_mov_b64 exec, 1")
    if OPT.get("dbg") is not None:
        k(f"s_lshl_b32 s58, s2, 2"); k(f"s_add_u32 s58, s58, s{sWV}")
        k(f"s_cmp_lg_u32 s58, {OPT['dbg']}"); k("s_cbranch_scc1 L_end")
        for j, i in enumerate([1,2,3,4,6,7,8,9,10,12,14,15,16,17,18,19]):
            k(f"s_sub_u32 s58, s{60+2*i}, s60"); k(f"v_mov_b32 v1, s58")
            k(f"buffer_store_dword v1, off, {s(SD,4)}, 0 offset:{4*j}")
        return
    k(f"s_lshl_b32 s58, s2, 2"); k(f"s_add_u32 s58, s58, s{sWV}"); k("s_lshl_b32 s58, s58, 7")
    k(f"s_add_u32 s58, s58, {WS_TS}")
    for i in range(n+1):
        k(f"v_mov_b32 v1, s{60+2*i}")
        k(f"buffer_store_dword v1, off, {s(SWS,4)}, s58 offset:{4*i}")

def mix(k, mf, fill, per=None, lead=0):
    fill = list(fill); n = len(mf)
    for _ in range(lead):
        if fill: k(fill.pop(0))
    for i, m in enumerate(mf):
        k(m)
        cnt = per if per is not None else -(-len(fill) // (n - i))
        for _ in range(cnt):
            if fill: k(fill.pop(0))
    for f in fill: k(f)

def poll(k, tag, vdst, vaddr, soff, cmp_val, mask_lo, first=True):
    k(f"s_mov_b32 s48, {POLLMAX}")
    k(f"L_poll_{tag}:")
    k(f"buffer_load_dword v{vdst}, v{vaddr}, {s(SWS,4)}, {soff} offen sc1")
    k("s_sub_u32 s48, s48, 1")
    k("s_waitcnt vmcnt(0)")
    k(f"v_cmp_eq_u32 vcc, {cmp_val}, v{vdst}")
    k(f"s_cbranch_scc1 L_pollx_{tag}")
    k(f"s_andn2_b32 s49, {mask_lo}, vcc_lo")
    k(f"s_cbranch_scc1 L_poll_{tag}")
    k(f"L_pollx_{tag}:")

def setup(k):
    k("s_cmp_ge_u32 s2, 256"); k("s_cbranch_scc1 L_end")
    stamp(k, 0)
    for sr, off in ((SX, 0), (SW1, 8), (SWS, 72), (SD, 64), (SWO, 16), (SG, 32), (SU, 40), (SDN, 48), (SO, 56)):
        k(f"s_load_dwordx2 {s(sr,2)}, s[0:1], {off}")
    k(f"v_and_b32 v{LANE}, 63, v0"); k(f"v_lshrrev_b32 v{T0}, 6, v0")
    k(f"v_readfirstlane_b32 s{sWV}, v{T0}")
    k(f"v_lshlrev_b32 v{VL16}, 4, v{LANE}")
    k("s_and_b32 s3, s2, 7"); k(f"s_lshr_b32 s{sJ}, s2, 3")
    k(f"s_and_b32 s48, s{sJ}, 3"); k(f"s_lshr_b32 s49, s{sJ}, 2")
    k(f"s_and_b32 s{sTB}, s3, 3"); k(f"s_lshl_b32 s{sTB}, s{sTB}, 2"); k(f"s_add_u32 s{sTB}, s{sTB}, s48")
    k(f"s_lshr_b32 s{sHD}, s3, 2"); k(f"s_lshl_b32 s{sHD}, s{sHD}, 3"); k(f"s_add_u32 s{sHD}, s{sHD}, s49")
    k(f"s_lshl_b32 s{sTT}, s3, 2"); k(f"s_add_u32 s{sTT}, s{sTT}, s48")
    k(f"s_min_u32 s{sCT}, s49, 6")
    k(f"s_and_b32 s{sTB3}, s3, 1"); k(f"s_lshl_b32 s{sTB3}, s{sTB3}, 2"); k(f"s_add_u32 s{sTB3}, s{sTB3}, s48")
    k(f"s_lshr_b32 s{sPN}, s3, 1"); k(f"s_mul_i32 s{sPN}, s{sPN}, 7"); k(f"s_add_u32 s{sPN}, s{sPN}, s{sCT}")
    for sr, size in ((SX, 2048*896), (SW1, 448*2688), (SWS, 268435456), (SD, 256), (SWO, 448*896), (SG, 448*3584),
                     (SU, 448*3584), (SDN, 1792*896), (SO, 2048*896)):
        k(f"s_mov_b32 {s(sr+2)}, {size}"); k(f"s_mov_b32 {s(sr+3)}, 0x00020000")

L_W, L_ONE, L_CS, L_ST, L_RING = 1024, 87040, 87552, 91648, 98304
def phase1(k):
    VX, VW, VWO, QINC, FL = 8, 12, 13, 14, 15
    AQ, AK, AXL, AX = 16, 20, 24, 28
    Q, KK, VV, G, CS, SEL, WF, XF = 32, 48, 64, 80, 96, 100, 112, 160
    sG, sXB, sWB, sLW, sRB, sDX, sRX, sIT, sA, sB, sWOo, sWOl = 50, 51, 52, 53, 54, 55, 56, 57, 58, 59, 100, 101
    k(f"v_lshrrev_b32 v{T1}, 2, v{LANE}"); k(f"v_mul_u32_u24 v{VW}, 2688, v{T1}")
    k(f"v_and_b32 v{T1}, 3, v{LANE}"); k(f"v_lshl_add_u32 v{VW}, v{T1}, 4, v{VW}")
    k(f"v_lshrrev_b32 v{T1}, 3, v{LANE}"); k(f"v_mul_u32_u24 v{T2}, 896, v{T1}")
    k(f"v_and_b32 v{T3}, 7, v{LANE}"); k(f"v_xor_b32 v{T3}, v{T3}, v{T1}")
    k(f"v_lshl_add_u32 v{VX}, v{T3}, 4, v{T2}")
    k(f"v_xor_b32 v{VX+1}, 16, v{VX}"); k(f"v_add_u32 v{VX+1}, 6144, v{VX+1}")
    k(f"v_add_u32 v{VX+2}, 12288, v{VX}"); k(f"v_add_u32 v{VX+3}, 12288, v{VX+1}")
    k(f"s_lshl_b32 s{sG}, s48, 1"); k(f"s_add_u32 s{sG}, s{sG}, s49")
    k(f"s_sub_u32 s{sA}, s{sG}, 7"); k(f"s_cselect_b32 s{sG}, s{sG}, s{sA}")
    k(f"s_lshl_b32 s{sXB}, s{sTB}, 2"); k(f"s_add_u32 s{sXB}, s{sXB}, s{sWV}"); k(f"s_mul_i32 s{sXB}, s{sXB}, 28672")
    k(f"s_mul_i32 s{sWB}, s{sWV}, {16*2688}"); k(f"s_mul_i32 s{sA}, s{sHD}, 56"); k(f"s_add_u32 s{sWB}, s{sWB}, s{sA}")
    k(f"s_lshl_b32 s{sLW}, s{sWV}, 10"); k(f"s_add_u32 s{sLW}, s{sLW}, {L_W}")
    k(f"s_lshl_b32 s{sRB}, s{sWV}, 14"); k(f"s_add_u32 s{sRB}, s{sRB}, {L_RING}")
    k(f"s_mov_b32 s{sDX}, 0")
    for i in range(4): k(f"v_mov_b32 v{CS+i}, 0")
    k("s_waitcnt lgkmcnt(0)")
    stamp(k, 1)
    k(f"s_cmp_lg_u32 s{sTB}, 0"); k("s_cbranch_scc1 L_p1_nz")
    k.cond_begin()
    k(f"v_lshlrev_b32 v{T3}, 4, v0"); k(f"s_lshl_b32 s{sA}, s{sHD}, 12")
    k(f"buffer_store_dwordx4 {v(CS,4)}, v{T3}, {s(SWS,4)}, s{sA} offen sc1")
    k(f"v_lshlrev_b32 v{T3}, 2, v0"); k(f"s_lshl_b32 s{sA}, s{sHD}, 10"); k(f"s_add_u32 s{sA}, s{sA}, {WS_FL}")
    k(f"buffer_store_dword v{CS}, v{T3}, {s(SWS,4)}, s{sA} offen sc1")
    k.cond_end()
    k("L_p1_nz:")
    def issue():
        k(f"s_mul_i32 s{sB}, s{sG}, {64*2688}"); k(f"s_add_u32 s{sB}, s{sB}, s{sWB}")
        k(f"s_lshl_b32 s{sA}, s{sG}, 7"); k(f"s_add_u32 s{sA}, s{sA}, s{sXB}")
        for m in range(3):
            k(f"s_add_u32 m0, s{sLW}, {m*4096 - m*896}")
            k(f"buffer_load_dwordx4 v{VW}, {s(SW1,4)}, s{sB} offen offset:{m*896} lds")
        k(f"s_add_u32 m0, s{sRB}, s{sDX}")
        k(f"s_add_u32 s{sG}, s{sG}, 1")
        for r in range(4):
            k(f"buffer_load_dwordx4 v{VX+r}, {s(SX,4)}, s{sA} offen offset:{r*1024} lds")
        k(f"s_cmp_eq_u32 s{sG}, 7"); k(f"s_cselect_b32 s{sG}, 0, s{sG}")
        k(f"s_add_u32 s{sLW}, s{sLW}, 12288")
        k(f"s_add_u32 s{sDX}, s{sDX}, 4096"); k(f"s_and_b32 s{sDX}, s{sDX}, 0x3fff")
    for c in range(3): issue()
    stamp(k, 2)
    k(f"v_mov_b32 v{T1}, {ONES}"); k(f"v_lshlrev_b32 v{T2}, 2, v{LANE}"); k(f"v_add_u32 v{T2}, {L_ONE}, v{T2}")
    k(f"ds_write2st64_b32 v{T2}, v{T1}, v{T1} offset0:0 offset1:1")
    k(f"v_lshrrev_b32 v{T0}, 5, v{LANE}"); k(f"v_lshlrev_b32 v{T0}, 9, v{T0}")
    k(f"v_bfe_u32 v{T2}, v{LANE}, 2, 2"); k(f"v_lshlrev_b32 v{T2}, 6, v{T2}")
    k(f"v_bfe_u32 v{T3}, v{LANE}, 4, 1"); k(f"v_lshl_add_u32 v{T2}, v{T3}, 5, v{T2}")
    k(f"v_and_b32 v{T3}, 3, v{LANE}"); k(f"v_lshl_add_u32 v{T2}, v{T3}, 3, v{T2}")
    k(f"v_add_u32 v{T0}, v{T0}, v{T2}"); k(f"v_add_u32 v{T2}, {L_ONE}, v{T2}")
    k(f"v_and_b32 v{T3}, 19, v{LANE}"); k(f"v_cmp_eq_u32 vcc, 19, v{T3}")
    k(f"v_mov_b32 v{QINC}, 12288"); k(f"v_cndmask_b32 v{QINC}, v{QINC}, v{CS}")
    k(f"v_and_b32 v{T3}, 31, v{LANE}"); k(f"v_lshlrev_b32 v{T4}, 7, v{T3}")
    k(f"v_bfe_u32 v{T3}, v{LANE}, 3, 1"); k(f"v_lshrrev_b32 v{AX}, 5, v{LANE}"); k(f"v_xor_b32 v{T3}, v{T3}, v{AX}")
    k(f"v_and_b32 v{AX}, 7, v{LANE}"); k(f"v_xor_b32 v{T3}, v{T3}, v{AX}")
    k(f"v_lshl_add_u32 v{T4}, v{T3}, 4, v{T4}")
    for i in range(4):
        k(f"s_xor_b32 s{sA}, s{sWV}, {i}"); k(f"s_lshl_b32 s{sB}, s{sA}, 5"); k(f"s_lshl_b32 s{sA}, s{sA}, 10")
        k(f"s_add_u32 s{sA}, s{sA}, {L_W}")
        k(f"v_add_u32 v{AK+i}, s{sA}, v{T0}"); k(f"v_cndmask_b32 v{AQ+i}, v{AK+i}, v{T2}")
        k(f"v_xor_b32 v{AXL+i}, s{sB}, v{T4}"); k(f"v_add_u32 v{AX+i}, s{sRB}, v{AXL+i}")
    k(f"v_and_b32 v{T2}, 15, v{LANE}"); k(f"v_bfe_u32 v{T3}, v{LANE}, 4, 1"); k(f"v_sub_u32 v{T2}, v{T2}, v{T3}")
    for m in range(3):
        k(f"v_cmp_eq_u32 vcc, {2*m}, v{T2}")
        for i in range(4): k(f"v_cndmask_b32 v{SEL+4*m+i}, v{CS}, v{T1}")
    for i in range(64): k(f"v_mov_b32 v{Q+i}, 0")
    k(f"v_lshrrev_b32 v{T1}, 3, v{LANE}"); k(f"v_mul_u32_u24 v{VWO}, 896, v{T1}")
    k(f"v_bfe_u32 v{T1}, v{LANE}, 4, 1"); k(f"v_lshlrev_b32 v{T1}, 2, v{T1}")
    k(f"v_and_b32 v{T2}, 7, v{LANE}"); k(f"v_xor_b32 v{T1}, v{T1}, v{T2}")
    k(f"v_lshl_add_u32 v{VWO}, v{T1}, 4, v{VWO}")
    k(f"s_mul_i32 s{sWOo}, s{sWV}, {112*896}"); k(f"s_lshl_b32 s{sA}, s{sCT}, 7"); k(f"s_add_u32 s{sWOo}, s{sWOo}, s{sA}")
    k(f"s_mul_i32 s{sWOl}, s{sWV}, 14336")
    k(f"s_mov_b32 s{sRX}, 0"); k(f"s_mov_b32 s{sIT}, 0")
    k("s_waitcnt vmcnt(14) lgkmcnt(0)"); k("s_barrier")
    stamp(k, 3)
    k(f"s_or_b32 s{sA}, s{sTB}, s{sWV}"); k("s_cbranch_scc1 L_p1_nf")
    k.cond_begin()
    k("s_mov_b64 exec, 1"); k(f"s_lshl_b32 s{sA}, s{sHD}, 2")
    k(f"buffer_store_dword v{QINC}, off, {s(SD,4)}, s{sA} sc1")
    k("s_mov_b64 exec, -1")
    k.cond_end()
    k("L_p1_nf:")
    if STAMP: k("s_waitcnt lgkmcnt(0)")
    def rdw(i, m):
        ar = (AQ if m == 0 else AK) + i
        return [f"ds_read_b64_tr_b16 {v(WF+12*i+4*m+2*hh,2)}, v{ar} offset:{m*4096+hh*256}" for hh in range(2)]
    def rdx(i): return [f"ds_read_b128 {v(XF+4*i,4)}, v{AX+i}"]
    def adv(i): return [f"v_add_u32 v{AQ+i}, v{QINC}, v{AQ+i}", f"v_add_u32 v{AK+i}, 12288, v{AK+i}", f"v_add_u32 v{AX+i}, s{sRX+0}, v{AXL+i}"]
    def nextrx():
        k(f"s_add_u32 s{sRX}, s{sRX}, 4096"); k(f"s_and_b32 s{sRX}, s{sRX}, 0x3fff"); k(f"s_or_b32 s{sRX}, s{sRX}, s{sRB}")
    mK = lambda i: f"{MF32} {v(KK,16)}, {v(XF+4*i,4)}, {v(WF+12*i+4,4)}, {v(KK,16)}"
    mV = lambda i: f"{MF32} {v(VV,16)}, {v(XF+4*i,4)}, {v(WF+12*i+8,4)}, {v(VV,16)}"
    mQ = lambda i: f"{MF32} {v(Q,16)}, {v(WF+12*i,4)}, {v(XF+4*i,4)}, {v(Q,16)}"
    mG = lambda i: f"{MF32} {v(G,16)}, {v(XF+4*i,4)}, {v(XF+4*i,4)}, {v(G,16)}"
    mC = lambda m: f"{MF16} {v(CS,4)}, {v(SEL+4*m,4)}, {v(WF+4*m,4)}, {v(CS,4)}"
    nextrx()
    for i in range(4):
        for x in rdw(i, 1) + rdw(i, 2) + rdw(i, 0) + rdx(i) + adv(i): k(x)
    k("L_p1_loop:")
    k("s_waitcnt vmcnt(7)"); k("s_barrier")
    k(f"s_cmp_ge_u32 s{sIT}, 4"); k("s_cbranch_scc1 L_p1_wo")
    k.cond_begin()
    issue()
    k.cond_end()
    k("L_p1_body:")
    nextrx()
    k(f"s_add_u32 s{sIT}, s{sIT}, 1")
    for m in range(3): k(mC(m))
    for i in range(4):
        k(mK(i)); [k(x) for x in rdw(i, 1)]
        k(mV(i)); [k(x) for x in rdw(i, 2)]
        k(mQ(i)); [k(x) for x in rdw(i, 0)]
        k(mG(i)); [k(x) for x in rdx(i) + adv(i)]
    k(f"s_cmp_lt_u32 s{sIT}, 6"); k("s_cbranch_scc1 L_p1_loop")
    stamp(k, 4)
    CK, CV, CQL, MEAN, RSTD, SXX = 176, 180, 184, 188, 190, 192
    CQ, MR, RR, TM = 112, 128, 144, 160
    for m in range(3): k(mC(m))
    k(mG(0)); k(f"v_lshrrev_b32 v{T1}, 4, v{LANE}"); k(f"v_lshlrev_b32 v{T1}, 6, v{T1}"); k(f"v_and_b32 v{T2}, 15, v{LANE}")
    k(mQ(0)); k(f"v_add_u32 v{T1}, v{T1}, v{T2}"); k(f"s_lshl_b32 s{sA}, s{sWV}, 2"); k(f"s_add_u32 s{sA}, s{sA}, {L_CS}")
    k(f"v_lshl_add_u32 v{T1}, v{T1}, 4, s{sA}")
    k(mG(1))
    for r in range(4): k(f"ds_write_b32 v{T1}, v{CS+r} offset:{r*256}")
    k(mQ(1))
    k(f"v_and_b32 v{T2}, 31, v{LANE}"); k(f"v_lshlrev_b32 v{T3}, 4, v{T2}"); k(f"v_add_u32 v{T3}, {L_CS}, v{T3}")
    k(f"s_lshl_b32 s{sB}, s{sWV}, 9"); k(f"s_add_u32 s{sB}, s{sB}, {L_ST}")
    k(mG(2)); k(mQ(2))
    k("s_waitcnt lgkmcnt(0)"); k("s_barrier")
    k(f"ds_read_b128 {v(CQL,4)}, v{T3}"); k(f"ds_read_b128 {v(CK,4)}, v{T3} offset:512"); k(f"ds_read_b128 {v(CV,4)}, v{T3} offset:1024")
    k(mG(3)); k(mQ(3))
    k(f"v_lshl_add_u32 v{T2}, v{T2}, 2, s{sB}")
    k(f"v_lshl_add_u32 v{T4}, v{LANE}, 2, s{sB}")
    k(f"v_lshrrev_b32 v{T3}, 5, v{LANE}"); k(f"v_lshl_add_u32 v{T3}, v{T3}, 4, s{sB}")
    k(mK(0))
    for x in (CQL, CK, CV):
        k(f"v_add_f32 v{x}, v{x}, v{x+1}"); k(f"v_add_f32 v{x+2}, v{x+2}, v{x+3}"); k(f"v_add_f32 v{x}, v{x}, v{x+2}")
        if x == CQL: k(f"ds_write_b32 v{T2}, v{CQL}"); k(mV(0))
    sel = []
    for lvl, (msk, stp) in enumerate(((0xaaaaaaaa, 1), (0xcccccccc, 2), (0xff00ff00, 4), (0xffff0000, 8))):
        sel.append(f"s_mov_b32 vcc_lo, {msk:#x}"); sel.append(f"s_mov_b32 vcc_hi, {msk:#x}")
        for r in range(0, 16, 2*stp): sel.append(f"v_cndmask_b32 v{G+r}, v{G+r}, v{G+r+stp}")
    mix(k, [mK(1), mV(1), mK(2)], sel)
    st = [f"v_mov_b32 v{G+1}, v{G}", f"v_mov_b32 v{MEAN}, v{Q+12}", f"v_mov_b32 v{RSTD}, v{Q+12}",
          "s_mov_b32 vcc_lo, 0xf0f0f0f0", "s_mov_b32 vcc_hi, 0xf0f0f0f0",
          f"v_permlane32_swap_b32 v{G}, v{G+1}", f"v_permlane32_swap_b32 v{RSTD}, v{MEAN}",
          f"v_cndmask_b32 v{SXX}, v{G}, v{G+1}",
          f"v_mul_f32 v{MEAN}, 0xbb124925, v{MEAN}",
          f"v_mul_f32 v{SXX}, {INVD}, v{SXX}",
          f"v_fma_f32 v{RSTD}, -v{MEAN}, v{MEAN}, v{SXX}",
          f"v_max_f32 v{RSTD}, 0, v{RSTD}", f"v_add_f32 v{RSTD}, {EPS5}, v{RSTD}", f"v_rsq_f32 v{RSTD}, v{RSTD}",
          "s_mov_b32 vcc_lo, 0", "s_mov_b32 vcc_hi, -1",
          f"v_cndmask_b32 v{SXX}, v{MEAN}, v{RSTD}",
          f"ds_write_b32 v{T4}, v{SXX} offset:128"]
    mix(k, [mV(2), mK(3), mV(3)], st)
    for q in range(4): k(f"ds_read_b128 {v(MR+4*q,4)}, v{T3} offset:{128+q*32}"); k(f"ds_read_b128 {v(RR+4*q,4)}, v{T3} offset:{256+q*32}")
    for q in range(4): k(f"ds_read_b128 {v(CQ+4*q,4)}, v{T3} offset:{q*32}")
    stamp(k, 5)
    EP, LG = 194, 196
    k(f"v_mov_b32 v{EP}, {EPS6}"); k(f"v_mov_b32 v{LG}, {LOG2E}")
    PK, PV, PQ = 200, 208, 216
    def phi(acc, dst, mean, cs, rstd, bt):
        o = []
        for r in range(0, 16, 2):
            A = v(acc+r,2)
            if bt:
                o.append(f"v_pk_fma_f32 {A}, {v(mean,2)}, {v(cs+r,2)}, {A} op_sel_hi:[0,1,1]")
                o.append(f"v_pk_fma_f32 {A}, {A}, {v(rstd,2)}, {v(EP,2)} op_sel_hi:[1,0,0]")
            else:
                o.append(f"v_pk_fma_f32 {A}, {v(mean+r,2)}, {v(cs,2)}, {A} op_sel_hi:[1,0,1]")
                o.append(f"v_pk_fma_f32 {A}, {A}, {v(rstd+r,2)}, {v(EP,2)} op_sel_hi:[1,1,0]")
        for r in range(0, 16, 2): o.append(f"v_pk_mul_f32 {v(TM+r,2)}, {v(acc+r,2)}, {v(LG,2)} op_sel_hi:[1,0]")
        for r in range(16):
            o.append(f"v_exp_f32_e64 v{TM+r}, v{TM+r} clamp"); o.append(f"v_max_f32 v{acc+r}, v{acc+r}, v{EP}")
        for r in range(0, 16, 2): o.append(f"v_pk_add_f32 {v(acc+r,2)}, {v(acc+r,2)}, {v(TM+r,2)}")
        for r in range(8): o.append(f"v_cvt_pk_bf16_f32 v{dst+r}, v{acc+2*r}, v{acc+2*r+1}")
        return o
    for x in phi(KK, PK, MR, CK, RR, False): k(x)
    for r in range(0, 16, 2): k(f"v_pk_fma_f32 {v(VV+r,2)}, {v(MR+r,2)}, {v(CV,2)}, {v(VV+r,2)} op_sel_hi:[1,0,1]")
    for r in range(0, 16, 2): k(f"v_pk_mul_f32 {v(VV+r,2)}, {v(VV+r,2)}, {v(RR+r,2)}")
    k("s_mov_b32 vcc_lo, 0x30000000"); k("s_mov_b32 vcc_hi, 0x30000000"); k(f"v_mov_b32 v{T0}, {ONES}")
    for r in range(8): k(f"v_cvt_pk_bf16_f32 v{PV+r}, v{VV+2*r}, v{VV+2*r+1}")
    for r in range(8): k(f"v_cndmask_b32 v{PV+r}, v{PV+r}, v{T0}")
    k(f"{MF32} {v(KK,16)}, {v(PK,4)}, {v(PV,4)}, 0")
    k(f"{MF32} {v(KK,16)}, {v(PK+4,4)}, {v(PV+4,4)}, {v(KK,16)}")
    k(f"v_and_b32 v{T1}, 31, v{LANE}")
    k(f"v_subrev_u32 v{T2}, 24, v{T1}"); k(f"v_lshlrev_b32 v{T2}, 2, v{T2}")
    k(f"v_mov_b32 v{T3}, 0x62735410")
    k(f"v_lshrrev_b32 v{T3}, v{T2}, v{T3}"); k(f"v_and_b32 v{T3}, 7, v{T3}"); k(f"v_add_u32 v{T3}, 24, v{T3}")
    k(f"v_cmp_le_u32 vcc, 24, v{T1}")
    k(f"v_cndmask_b32 v{T1}, v{T1}, v{T3}")
    k(f"v_and_b32 v{T2}, 32, v{LANE}"); k(f"v_add_u32 v{T1}, v{T1}, v{T2}")
    k(f"v_lshl_add_u32 v{T1}, v{T1}, 4, s{sRB}")
    qp = phi(Q, PQ, MEAN, CQ, RSTD, True)
    for x in qp[:8]: k(x)
    for q in range(4): k(f"ds_write_b128 v{T1}, {v(KK+4*q,4)} offset:{q*1024}")
    k(f"s_lshl_b32 s{sA}, s{sWV}, 10")
    k(f"v_lshl_add_u32 v{T2}, v{LANE}, 2, s{sA}"); k(f"v_add_u32 v{T3}, {L_RING}, v{T2}")
    for x in qp[8:24]: k(x)
    k("s_waitcnt lgkmcnt(0)"); k("s_barrier")
    for i in range(4):
        k(f"ds_read2st64_b32 {v(VV+4*i,2)}, v{T3} offset0:{i} offset1:{64+i}")
        k(f"ds_read2st64_b32 {v(VV+4*i+2,2)}, v{T3} offset0:{128+i} offset1:{192+i}")
    for x in qp[24:40]: k(x)
    k(f"s_mov_b32 s48, {POLLMAX}")
    k("s_waitcnt vmcnt(7)")
    k("L_p1_poll:")
    k(f"v_cmp_ne_u32 vcc, 0, v{FL}")
    k("s_sub_u32 s48, s48, 1"); k("s_cbranch_scc1 L_p1_go")
    k("s_andn2_b32 s49, 0xffff, vcc_lo"); k("s_cbranch_scc0 L_p1_go")
    k(f"v_lshlrev_b32 v{T0}, 2, v{LANE}")
    k(f"buffer_load_dword v{FL}, v{T0}, {s(SD,4)}, 0 offen sc1")
    k("s_waitcnt vmcnt(0)")
    k("s_branch L_p1_poll")
    k("L_p1_go:")
    k(f"s_lshl_b32 s{sA}, s{sHD}, 12")
    for i in range(4):
        k(f"v_pk_add_f32 {v(VV+4*i,2)}, {v(VV+4*i,2)}, {v(VV+4*i+2,2)}")
        k(f"v_add_f32 v{VV+4*i}, v{VV+4*i}, v{VV+4*i+1}")
    for i in range(4): k(f"buffer_atomic_add_f32 v{VV+4*i}, v{T2}, {s(SWS,4)}, s{sA} offen offset:{i*256} sc1")
    for x in qp[40:]: k(x)
    k("s_mov_b32 exec_lo, 0"); k(f"v_mov_b32 v{PQ+6}, 0"); k(f"v_mov_b32 v{PQ+7}, 0"); k("s_mov_b64 exec, -1")
    k(f"s_lshl_b32 s{sA}, s{sTB}, 2"); k(f"s_add_u32 s{sA}, s{sA}, s{sWV}"); k(f"s_lshl_b32 s{sA}, s{sA}, 4")
    k(f"s_add_u32 s{sA}, s{sA}, s{sHD}"); k(f"s_lshl_b32 s{sA}, s{sA}, 11"); k(f"s_add_u32 s{sA}, s{sA}, {WS_PQ}")
    k(f"buffer_store_dwordx4 {v(PQ,4)}, v{VL16}, {s(SWS,4)}, s{sA} offen sc1")
    k(f"buffer_store_dwordx4 {v(PQ+4,4)}, v{VL16}, {s(SWS,4)}, s{sA} offen offset:1024 sc1")
    stamp(k, 6)
    A0, A1, A2, A3 = 8, 9, 10, 11
    k(f"s_mul_i32 s{sA}, s{sWV}, 14336"); k(f"s_and_b32 s{sB}, s{sWV}, 1")
    k(f"v_bfe_u32 v{T1}, v{LANE}, 4, 1"); k(f"v_lshlrev_b32 v{T1}, 5, v{T1}")
    k(f"v_and_b32 v{T2}, 1, v{LANE}"); k(f"v_lshl_add_u32 v{T1}, v{T2}, 4, v{T1}")
    k(f"v_bfe_u32 v{T2}, v{LANE}, 1, 1"); k(f"v_lshl_add_u32 v{T1}, v{T2}, 3, v{T1}")
    k(f"v_add_u32 v{T1}, s{sA}, v{T1}")
    k(f"v_bfe_u32 v{T2}, v{LANE}, 2, 2"); k(f"v_lshrrev_b32 v{T3}, 5, v{LANE}")
    k(f"v_lshl_add_u32 v{A0}, v{T3}, 2, v{T2}"); k(f"v_lshl_add_u32 v{A0}, v{A0}, 7, v{T1}")
    k(f"v_bfe_u32 v{T2}, v{LANE}, 3, 1"); k(f"v_xor_b32 v{T2}, s{sB}, v{T2}")
    k(f"v_lshl_add_u32 v{A0}, v{T2}, 6, v{A0}"); k(f"v_xor_b32 v{A1}, 64, v{A0}")
    k(f"v_bfe_u32 v{T2}, v{LANE}, 2, 1"); k(f"v_lshl_add_u32 v{A2}, v{T3}, 1, v{T2}")
    k(f"v_lshl_add_u32 v{A2}, v{A2}, 7, v{T1}")
    k(f"v_xor_b32 v{T2}, s{sB}, v{T3}"); k(f"v_lshl_add_u32 v{A2}, v{T2}, 6, v{A2}")
    k(f"v_xor_b32 v{A3}, 64, v{A2}")
    k("s_waitcnt vmcnt(6)")
    for hd in range(4):
        for cg in range(2):
            ar, al = (A0, A2) if cg == 0 else (A1, A3)
            b = hd*3584; wf = 16*hd + 8*cg
            for j in range(3): k(f"ds_read_b64_tr_b16 {a(wf+2*j,2)}, v{ar} offset:{b+1024*j}")
            k(f"ds_read_b64_tr_b16 {a(wf+6,2)}, v{al} offset:{b+3072}")
    k("s_waitcnt vmcnt(0) lgkmcnt(0)"); k("s_barrier")
    k(f"s_cmp_lg_u32 s{sWV}, 0"); k("s_cbranch_scc1 L_p1_nc")
    k.cond_begin()
    k("s_mov_b64 exec, 1"); k(f"v_mov_b32 v{T0}, 1")
    k(f"s_lshl_b32 s{sA}, s{sHD}, 7"); k(f"s_add_u32 s{sA}, s{sA}, {FL1}")
    k(f"buffer_atomic_add v{T0}, off, {s(SWS,4)}, s{sA} sc1")
    k("s_mov_b64 exec, -1")
    k.cond_end()
    k("L_p1_nc:")
    stamp(k, 7)
    k(f"s_cmp_ge_u32 s{sJ}, 28"); k("s_cbranch_scc1 L_fin")
    def tail(k):
        k("L_p1_wo:")
        k(f"v_lshlrev_b32 v{T0}, 2, v{LANE}")
        k(f"buffer_load_dword v{FL}, v{T0}, {s(SD,4)}, 0 offen sc1")
        for i in range(7):
            k(f"s_add_u32 m0, s{sWOl}, {i*1024}")
            k(f"buffer_load_dwordx4 v{VWO}, {s(SWO,4)}, s{sWOo} offen lds")
            k(f"s_add_u32 s{sWOo}, s{sWOo}, {8*896}")
        k(f"s_add_u32 s{sWOl}, s{sWOl}, 7168")
        k("s_branch L_p1_body")
    return tail

VG, VU = 12, 13
def gu_setup(k):
    k(f"v_lshrrev_b32 v{T1}, 3, v{LANE}"); k(f"v_mul_u32_u24 v{VG}, 3584, v{T1}")
    k(f"v_bfe_u32 v{T1}, v{LANE}, 4, 1"); k(f"v_lshlrev_b32 v{T1}, 1, v{T1}")
    k(f"v_and_b32 v{T2}, 7, v{LANE}"); k(f"v_xor_b32 v{T1}, v{T1}, v{T2}")
    k(f"v_xor_b32 v{T2}, 4, v{T1}")
    k(f"v_lshl_add_u32 v{VU}, v{T2}, 4, v{VG}"); k(f"v_lshl_add_u32 v{VG}, v{T1}, 4, v{VG}")
    k(f"s_and_b32 s50, s{sJ}, 3"); k("s_lshl_b32 s50, s50, 1")
    k(f"s_mul_i32 s51, s{sWV}, {16*3584}"); k(f"s_lshl_b32 s52, s{sPN}, 7"); k("s_add_u32 s51, s51, s52")
    k(f"s_lshl_b32 s52, s{sWV}, 11")
def gu_issue(k, n):
    for _ in range(n):
        k(f"s_mul_i32 s53, s50, {64*3584}"); k("s_add_u32 s53, s53, s51"); k(f"s_add_u32 s54, s53, {8*3584}")
        k("s_lshl_b32 s55, s50, 13"); k("s_add_u32 s55, s55, s52")
        for m in range(2):
            for j in range(2):
                k(f"s_add_u32 m0, s55, {m*57344 + j*1024}")
                k(f"buffer_load_dwordx4 v{VU if m else VG}, {s(SU if m else SG,4)}, s{54 if j else 53} offen lds")
        k("s_add_u32 s50, s50, 1"); k("s_cmp_eq_u32 s50, 7"); k("s_cselect_b32 s50, 0, s50")

L_EX = 114688
def exchange(k, ACC, TMP):
    for i in range(1, 4):
        k(f"s_xor_b32 s48, s{sWV}, {i}"); k("s_mul_i32 s48, s48, 12288"); k(f"s_add_u32 s48, s48, {L_EX + (i-1)*4096}")
        k(f"v_add_u32 v{TMP+i}, s48, v{VL16}")
    k(f"s_mul_i32 s48, s{sWV}, 12288"); k(f"s_add_u32 s48, s48, {L_EX}")
    k(f"v_add_u32 v{TMP}, s48, v{VL16}")
def exchange_w(ACC, TMP, i):
    return [f"ds_write_b128 v{TMP+i}, {v(ACC+16*i+4*q,4)} offset:{q*1024}" for q in range(4)]
def exchange_r(k, ACC, TMP):
    k("s_waitcnt lgkmcnt(0)"); k("s_barrier")
    for i in range(1, 4):
        for q in range(4): k(f"ds_read_b128 {v(ACC+16*i+4*q,4)}, v{TMP} offset:{(i-1)*4096+q*1024}")
def add_packed(ACC, RES, TT):
    o = []
    for r in range(8):
        o += [f"v_lshlrev_b32 v{TT}, 16, v{RES+r}", f"v_and_b32 v{TT+1}, 0xffff0000, v{RES+r}",
              f"v_pk_add_f32 {v(ACC+2*r,2)}, {v(ACC+2*r,2)}, {v(TT,2)}"]
    return o
def sum_parts(k, ACC):
    for i in range(1, 4):
        for r in range(0, 16, 2): k(f"v_pk_add_f32 {v(ACC+r,2)}, {v(ACC+r,2)}, {v(ACC+16*i+r,2)}")
def flag_store(k, soff_reg):
    k("s_mov_b64 exec, 1"); k(f"v_mov_b32 v{T0}, 1")
    k(f"buffer_store_dword v{T0}, off, {s(SWS,4)}, s{soff_reg} sc1")
    k("s_mov_b64 exec, -1")

HR = 16
sTG = 100
def phase2(k):
    ACC, KVF, KVB, OD, OP, EXA = 24, 88, 152, 184, 216, 232
    PQ = 64
    gu_setup(k)
    k(f"s_lshr_b32 s48, s{sWV}, 1"); k(f"s_lshl_b32 s{sTG}, s{sTT}, 1"); k(f"s_add_u32 s{sTG}, s{sTG}, s48")
    k(f"v_and_b32 v{T1}, 31, v{LANE}"); k(f"v_mul_u32_u24 v{T1}, 896, v{T1}")
    k(f"v_lshrrev_b32 v{T2}, 5, v{LANE}"); k(f"v_lshl_add_u32 v14, v{T2}, 4, v{T1}")
    k(f"s_mul_i32 s101, s{sTG}, 28672"); k(f"s_lshl_b32 s48, s{sCT}, 7"); k("s_add_u32 s101, s101, s48")
    k(f"s_and_b32 s48, s{sWV}, 1"); k("s_lshl_b32 s48, s48, 6"); k("s_add_u32 s101, s101, s48")
    k(f"buffer_load_dwordx4 {v(HR,4)}, v14, {s(SX,4)}, s101 offen")
    k(f"buffer_load_dwordx4 {v(HR+4,4)}, v14, {s(SX,4)}, s101 offen offset:32")
    gu_issue(k, OPT["gu"][0])
    exchange(k, ACC, EXA)
    k(f"v_mov_b32 v{OP+7}, 0"); k(f"v_mov_b32 v{OP+15}, 0")
    k(f"s_lshl_b32 s56, s{sWV}, 14")
    k(f"s_lshl_b32 s59, s{sWV}, 13"); k(f"s_add_u32 s59, s59, {WS_PQ}")
    k(f"s_lshl_b32 s57, s{sTG}, 15"); k("s_add_u32 s57, s57, s59")
    k(f"s_xor_b32 s58, s{sTG}, 1"); k("s_lshl_b32 s58, s58, 15"); k("s_add_u32 s58, s58, s59")
    k(f"v_and_b32 v{T1}, 3, v{LANE}"); k(f"v_lshlrev_b32 v{T1}, 7, v{T1}")
    k(f"s_lshl_b32 s59, s{sWV}, 9"); k(f"s_add_u32 s59, s59, {FL1}")
    poll(k, "p2", T2, T1, "s59", 16, "15")
    stamp(k, 8)
    for hd in range(4):
        for q in range(4):
            k(f"buffer_load_dwordx4 {v(KVF+16*hd+4*q,4)}, v{VL16}, {s(SWS,4)}, s56 offen offset:{q*1024} sc1")
        k("s_add_u32 s56, s56, 4096")
        for t in range(2):
            for ks in range(2):
                k(f"buffer_load_dwordx4 {a(PQ+16*hd+8*t+4*ks,4)}, v{VL16}, {s(SWS,4)}, s{57+t} offen offset:{(hd&1)*2048+ks*1024} sc1")
        if hd == 1: k("s_add_u32 s57, s57, 4096"); k("s_add_u32 s58, s58, 4096")
    gu_issue(k, OPT["gu"][1])
    def cvt(hd): return [f"v_cvt_pk_bf16_f32 v{KVB+8*hd+r}, v{KVF+16*hd+2*r}, v{KVF+16*hd+2*r+1}" for r in range(8)]
    def mo(u):
        hd, t = u >> 1, u & 1; od = v(OD+16*(u&1),16)
        return [f"{MF32} {od}, {v(KVB+8*hd,4)}, {a(PQ+16*hd+8*t,4)}, 0", f"{MF32} {od}, {v(KVB+8*hd+4,4)}, {a(PQ+16*hd+8*t+4,4)}, {od}"]
    def vo(u):
        od = OD+16*(u&1); op = OP + 8*(u&1)
        o = [f"v_add_f32 v{T1}, {EPS6}, v{od+15}", f"v_rcp_f32 v{T1}, v{T1}"]
        for r in range(7):
            o += [f"v_mul_f32 v{od+2*r}, v{od+2*r}, v{T1}", f"v_mul_f32 v{od+2*r+1}, v{od+2*r+1}, v{T1}"]
        for r in range(7): o.append(f"v_cvt_pk_bf16_f32 v{op+r}, v{od+2*r}, v{od+2*r+1}")
        return o
    def mw(u):
        hd, t = u >> 1, u & 1; op = OP + 8*(u&1); o = []
        for ks in range(2):
            for cg in range(2):
                acc = v(ACC+16*(2*t+cg),16)
                o.append(f"{MF32} {acc}, {a(16*hd+8*cg+4*ks,4)}, {v(op+4*ks,4)}, {'0' if (hd == 0 and ks == 0) else acc}")
        return o
    for x in cvt(0): k(x)
    for x in mo(0) + mo(1): k(x)
    for x in cvt(1): k(x)
    for x in vo(0): k(x)
    for u in range(8):
        mf = mw(u) + (mo(u+2) if u + 2 < 8 else [])
        fl = (vo(u+1) if u + 1 < 8 else [])
        if u in (1, 3): fl = cvt((u+3)//2) + fl
        if u == 7: fl = exchange_w(ACC, EXA, 1) + add_packed(ACC, HR, 8)
        mix(k, mf, fl)
    stamp(k, 9)
    for x in exchange_w(ACC, EXA, 2) + exchange_w(ACC, EXA, 3): k(x)
    exchange_r(k, ACC, EXA)
    k(f"s_mul_i32 s56, s{sTG}, 28"); k(f"s_lshl_b32 s48, s{sCT}, 2"); k("s_add_u32 s56, s56, s48")
    k(f"s_and_b32 s49, s{sWV}, 1"); k("s_lshl_b32 s48, s49, 1"); k("s_add_u32 s56, s56, s48"); k("s_lshl_b32 s56, s56, 10")
    k(f"s_add_u32 s56, s56, {WS_H}")
    k(f"s_mul_i32 s57, s{sTG}, 14"); k(f"s_lshl_b32 s48, s{sCT}, 1"); k("s_add_u32 s57, s57, s48"); k("s_add_u32 s57, s57, s49")
    k("s_lshl_b32 s57, s57, 8"); k(f"s_add_u32 s57, s57, {WS_ST}")
    k(f"s_lshl_b32 s58, s{sTT}, 5"); k(f"s_lshl_b32 s48, s{sCT}, 2"); k("s_add_u32 s58, s58, s48"); k(f"s_add_u32 s58, s58, s{sWV}")
    k("s_lshl_b32 s58, s58, 2"); k(f"s_add_u32 s58, s58, {FL2}")
    sum_parts(k, ACC)
    for r in range(8): k(f"v_cvt_pk_bf16_f32 v{HR+r}, v{ACC+2*r}, v{ACC+2*r+1}")
    k(f"buffer_store_dwordx4 {v(HR,4)}, v{VL16}, {s(SWS,4)}, s56 offen sc1")
    k(f"buffer_store_dwordx4 {v(HR+4,4)}, v{VL16}, {s(SWS,4)}, s56 offen offset:1024 sc1")
    S1, S2 = 8, 9
    k(f"s_mov_b32 s48, {ONES}")
    k(f"v_mov_b32 v{S1}, 0"); k(f"v_mov_b32 v{S2}, 0")
    for r in range(8):
        k(f"v_dot2c_f32_bf16 v{S1}, s48, v{HR+r}"); k(f"v_dot2c_f32_bf16 v{S2}, v{HR+r}, v{HR+r}")
    k(f"v_mov_b32 v10, v{S1}"); k(f"v_mov_b32 v11, v{S2}")
    k(f"v_permlane32_swap_b32 v{S1}, v10"); k(f"v_permlane32_swap_b32 v{S2}, v11")
    k(f"v_add_f32 v{S1}, v{S1}, v10"); k(f"v_add_f32 v{S2}, v{S2}, v11")
    k(f"v_lshlrev_b32 v{T1}, 3, v{LANE}")
    k("s_mov_b32 exec_hi, 0")
    k(f"buffer_store_dwordx2 {v(S1,2)}, v{T1}, {s(SWS,4)}, s57 offen sc1")
    k("s_mov_b32 exec_hi, -1")
    k("s_waitcnt vmcnt(0)")
    flag_store(k, 58)
    stamp(k, 10)

def phase3(k):
    AD, SEL, CS, STT, MN, R2 = 24, 28, 44, 48, 8, 10
    WF, CQ, ACC = 80, 112, 128
    gu_issue(k, OPT["gu"][2])
    k(f"v_bfe_u32 v{T1}, v{LANE}, 4, 1"); k(f"v_mul_u32_u24 v{T0}, 57344, v{T1}")
    k(f"v_lshrrev_b32 v{T2}, 5, v{LANE}"); k(f"v_lshl_add_u32 v{T0}, v{T2}, 10, v{T0}")
    k(f"v_bfe_u32 v{T2}, v{LANE}, 2, 2"); k(f"v_lshl_add_u32 v{T0}, v{T2}, 7, v{T0}")
    k(f"v_and_b32 v{T2}, 1, v{LANE}"); k(f"v_lshl_add_u32 v{T0}, v{T2}, 4, v{T0}")
    k(f"v_bfe_u32 v{T2}, v{LANE}, 1, 1"); k(f"v_lshl_add_u32 v{T0}, v{T2}, 3, v{T0}")
    k(f"v_bfe_u32 v{T2}, v{LANE}, 3, 2"); k(f"v_lshl_add_u32 v{T0}, v{T2}, 5, v{T0}")
    for b in range(4):
        k(f"v_xor_b32 v{AD+b}, {b*32}, v{T0}"); k(f"v_add_u32 v{STT+b}, s52, v{AD+b}")
    k(f"v_and_b32 v{T1}, 15, v{LANE}"); k(f"v_bfe_u32 v{T2}, v{LANE}, 4, 1"); k(f"v_sub_u32 v{T1}, v{T1}, v{T2}")
    k(f"v_mov_b32 v{T2}, {ONES}"); k(f"v_mov_b32 v{T3}, 0")
    for b in range(4):
        k(f"v_cmp_eq_u32 vcc, {2*b}, v{T1}")
        for i in range(4): k(f"v_cndmask_b32 v{SEL+4*b+i}, v{T3}, v{T2}")
    k(f"s_lshl_b32 s53, s{sTB3}, 2"); k(f"s_add_u32 s53, s53, s{sWV}")
    k(f"s_mul_i32 s54, s53, {2*28672}"); k(f"s_add_u32 s54, s54, {WS_H}"); k("s_add_u32 s55, s54, 28672")
    k(f"s_mul_i32 s56, s53, {2*3584}"); k(f"s_add_u32 s56, s56, {WS_ST}"); k("s_add_u32 s57, s56, 3584")
    k(f"s_mul_i32 s58, s53, {2*112}"); k(f"s_lshl_b32 s48, s{sPN}, 2"); k("s_add_u32 s58, s58, s48"); k("s_lshl_b32 s58, s58, 10")
    k(f"s_add_u32 s58, s58, {WS_HH}"); k(f"s_add_u32 s59, s58, {112*1024}")
    k(f"s_lshl_b32 s51, s53, 7"); k(f"s_add_u32 s50, s51, {FL2}")
    k(f"s_lshl_b32 s48, s{sPN}, 2"); k("s_add_u32 s51, s51, s48"); k(f"s_add_u32 s51, s51, {FL3}")
    k("s_waitcnt vmcnt(0)")
    def cr(c): return [f"ds_read_b64_tr_b16 {v(ACC+16*c+4*b+2*hh,2)}, v{STT+b} offset:{c*8192+hh*512}" for b in range(4) for hh in range(2)]
    for x in cr(0): k(x)
    for c in range(7):
        for x in (cr(c+1) if c < 6 else []): k(x)
        for b in range(4): k(f"{MF16} {v(CS,4)}, {v(SEL+4*b,4)}, {v(ACC+16*c+4*b,4)}, {'0' if (c == 0 and b == 0) else v(CS,4)}")
    k(f"s_mul_i32 s48, s{sWV}, 12288"); k(f"s_add_u32 s48, s48, {L_EX}")
    k(f"v_lshrrev_b32 v{T2}, 4, v{LANE}"); k(f"v_lshlrev_b32 v{T2}, 8, v{T2}")
    k(f"v_and_b32 v{T3}, 15, v{LANE}"); k(f"v_lshl_add_u32 v{T2}, v{T3}, 2, v{T2}"); k(f"v_add_u32 v{T2}, s48, v{T2}")
    for r in range(4): k(f"ds_write_b32 v{T2}, v{CS+r} offset:{r*64}")
    k(f"v_lshlrev_b32 v{T3}, 3, v{LANE}"); k(f"v_add_u32 v{T2}, {L_EX}, v{T3}"); k(f"v_add_u32 v{T3}, s48, v{T3}")
    k("s_waitcnt lgkmcnt(0)"); k("s_barrier")
    for p in range(4): k(f"ds_read_b64 {v(SEL+2*p,2)}, v{T2} offset:{p*12288}")
    for p in range(1, 4): k(f"v_pk_add_f32 {v(SEL,2)}, {v(SEL,2)}, {v(SEL+2*p,2)}")
    k(f"ds_write_b64 v{T3}, {v(SEL,2)} offset:1024")
    ACQ = 15
    k(f"v_lshrrev_b32 v{T3}, 5, v{LANE}"); k(f"v_lshl_add_u32 v{ACQ}, v{T3}, 4, s48")
    VST = T4
    k(f"v_and_b32 v{T1}, 31, v{LANE}"); k(f"v_lshlrev_b32 v{VST}, 3, v{T1}")
    k(f"v_mul_u32_u24 v{T3}, 1792, v{T3}"); k(f"v_add_u32 v{VST}, v{VST}, v{T3}")
    k(f"v_lshlrev_b32 v{T1}, 2, v{T1}")
    kc = OPT["kc"]
    steps = [(ks, b) for ks in range(4*kc) for b in range(4)] + [(ks, b) for b in range(4) for ks in range(4*kc, 28)]
    RD = 8; AH = 6
    def rw(n):
        ks, b = steps[n]
        return [f"ds_read_b64_tr_b16 {v(WF+4*(n%RD)+2*hh,2)}, v{AD+b} offset:{ks*2048+hh*512}" for hh in range(2)]
    for n in range(AH):
        for x in rw(n): k(x)
    stamp(k, 11)
    poll(k, "p3", T2, T1, "s50", 1, "0x0fffffff")
    stamp(k, 12)
    if STAMP: k("s_waitcnt lgkmcnt(0)")
    loads = []
    for ks in range(28):
        for t in range(2):
            loads.append(f"buffer_load_dwordx4 {a(8*ks+4*t,4)}, v{VL16}, {s(SWS,4)}, s{54+t} offen offset:{(ks&3)*1024} sc1")
        if (ks & 3) == 3: loads[-1] += "\ns_add_u32 s54, s54, 4096\ns_add_u32 s55, s55, 4096"
    stl = [f"buffer_load_dwordx2 {v(STT+14*t+2*p,2)}, v{VST}, {s(SWS,4)}, s{56+t} offen offset:{p*256} sc1" for t in range(2) for p in range(7)]
    loads = loads + stl
    NI = 12
    for x in loads[:NI]: k(x)
    loads = loads[NI:]
    def stats():
        o = []
        for t in range(2):
            sb = STT + 14*t
            for p in range(1, 7): o += [f"v_add_f32 v{sb}, v{sb}, v{sb+2*p}", f"v_add_f32 v{sb+1}, v{sb+1}, v{sb+2*p+1}"]
            o += [f"v_mov_b32 v{sb+2}, v{sb}", f"v_mov_b32 v{sb+3}, v{sb+1}",
                  f"v_permlane32_swap_b32 v{sb}, v{sb+2}", f"v_permlane32_swap_b32 v{sb+1}, v{sb+3}",
                  f"v_add_f32 v{sb}, v{sb}, v{sb+2}", f"v_add_f32 v{sb+1}, v{sb+1}, v{sb+3}",
                  f"v_mul_f32 v{MN+t}, 0xbb124925, v{sb}", f"v_mul_f32 v{sb+1}, {INVD}, v{sb+1}",
                  f"v_fma_f32 v{sb+1}, -v{MN+t}, v{MN+t}, v{sb+1}", f"v_max_f32 v{sb+1}, 0, v{sb+1}",
                  f"v_add_f32 v{sb+1}, {EPS5}, v{sb+1}", f"v_rcp_f32 v{R2+2*t}, v{sb+1}"]
        return o
    def cqr(b): return [f"ds_read_b128 {v(CQ+4*q,4)}, v{ACQ} offset:{1024+b*128+q*32}" for q in range(4)]
    def corr(b): return [f"v_fmac_f32 v{ACC+64*t+16*b+r}, v{MN+t}, v{CQ+r}" for t in range(2) for r in range(16)]
    def fin(b, pk):
        o = []
        for t in range(2):
            ac = ACC + 64*t + 16*b
            if pk:
                for r in range(0, 8, 2): o.append(f"v_pk_mul_f32 {v(ac+r,2)}, {v(ac+r,2)}, {v(ac+8+r,2)}")
                for r in range(0, 8, 2): o.append(f"v_pk_mul_f32 {v(ac+r,2)}, {v(ac+r,2)}, {v(R2+2*t,2)} op_sel_hi:[1,0]")
            else:
                for r in range(8): o.append(f"v_mul_f32 v{ac+r}, v{ac+r}, v{ac+8+r}")
                for r in range(8): o.append(f"v_mul_f32 v{ac+r}, v{ac+r}, v{R2+2*t}")
            for r in range(4): o.append(f"v_cvt_pk_bf16_f32 v{ac+8+r}, v{ac+2*r}, v{ac+2*r+1}")
            o.append(f"buffer_store_dwordx4 {v(ac+8,4)}, v{VL16}, {s(SWS,4)}, s{58+t} offen offset:{b*1024} sc1")
        return o
    nk = 16*kc; per = 28 - 4*kc
    extra = {}
    extra[nk] = cqr(3) + stats() + corr(3)
    for b in range(1, 4): extra[nk + b*per] = cqr(b-1) + ["", "", "", ""] + corr(b-1) + fin(b-1, False)
    cur = []
    seen = set()
    for n, (ks, b) in enumerate(steps):
        if n in extra:
            assert not cur, "filler overflow"
            cur = list(extra[n])
        rd = rw(n+AH) if n + AH < len(steps) else []
        for t in range(2):
            acc = v(ACC+64*t+16*b,16)
            k(f"{MF32} {acc}, {v(WF+4*(n%RD),4)}, {a(8*ks+4*t,4)}, {'0' if (b,t) not in seen else acc}")
            seen.add((b, t))
            if rd: k(rd.pop(0))
            if loads and (t == 0 or n % 2 == 0): k(loads.pop(0))
            for _ in range(4 if not loads else 0):
                if cur:
                    x = cur.pop(0)
                    if x: k(x)
        if n == nk - 1: stamp(k, 13)
    assert not cur and not loads
    stamp(k, 14)
    for x in fin(3, True): k(x)
    k("s_barrier")
    k("s_waitcnt vmcnt(0)")
    flag_store(k, 51)
    stamp(k, 15)

def phase4(k):
    VWA, A0, A1, EXA, ACC, HH = 12, 8, 9, 88, 24, 96
    NS = 40
    k(f"v_lshrrev_b32 v{T1}, 3, v{LANE}"); k(f"v_mul_u32_u24 v{VWA}, 896, v{T1}")
    k(f"v_bfe_u32 v{T1}, v{LANE}, 4, 1"); k(f"v_lshlrev_b32 v{T1}, 2, v{T1}")
    k(f"v_and_b32 v{T2}, 7, v{LANE}"); k(f"v_xor_b32 v{T1}, v{T1}, v{T2}")
    k(f"v_lshl_add_u32 v{VWA}, v{T1}, 4, v{VWA}")
    k(f"s_mul_i32 s50, s{sWV}, {448*896}"); k(f"s_lshl_b32 s48, s{sCT}, 7"); k("s_add_u32 s50, s50, s48")
    k(f"s_mul_i32 s51, s{sWV}, 28672")
    def dma(i0, i1):
        for i in range(i0, i1):
            k(f"s_add_u32 m0, s51, {(i%28)*1024}")
            k(f"buffer_load_dwordx4 v{VWA}, {s(SDN,4)}, s50 offen lds")
            k(f"s_add_u32 s50, s50, {8*896}")
    dma(0, 28)
    k(f"s_and_b32 s49, s{sWV}, 1")
    k(f"v_bfe_u32 v{T1}, v{LANE}, 4, 1"); k(f"v_lshlrev_b32 v{T1}, 5, v{T1}")
    k(f"v_and_b32 v{T2}, 1, v{LANE}"); k(f"v_lshl_add_u32 v{T1}, v{T2}, 4, v{T1}")
    k(f"v_bfe_u32 v{T2}, v{LANE}, 1, 1"); k(f"v_lshl_add_u32 v{T1}, v{T2}, 3, v{T1}")
    k(f"v_add_u32 v{T1}, s51, v{T1}")
    k(f"v_bfe_u32 v{T2}, v{LANE}, 2, 2"); k(f"v_lshrrev_b32 v{T3}, 5, v{LANE}")
    k(f"v_lshl_add_u32 v{A0}, v{T3}, 3, v{T2}"); k(f"v_lshl_add_u32 v{A0}, v{A0}, 7, v{T1}")
    k(f"v_bfe_u32 v{T2}, v{LANE}, 3, 1"); k(f"v_xor_b32 v{T2}, s49, v{T2}")
    k(f"v_lshl_add_u32 v{A0}, v{T2}, 6, v{A0}"); k(f"v_xor_b32 v{A1}, 64, v{A0}")
    exchange(k, ACC, EXA)
    k(f"s_mul_i32 s54, s{sWV}, 28672"); k(f"s_add_u32 s54, s54, {WS_HH}")
    k(f"s_mul_i32 s52, s{sTG}, {112*1024}"); k("s_add_u32 s52, s52, s54")
    k(f"s_xor_b32 s53, s{sTG}, 1"); k(f"s_mul_i32 s53, s53, {112*1024}"); k("s_add_u32 s53, s53, s54")
    k(f"s_lshl_b32 s55, s{sTT}, 7"); k(f"s_mul_i32 s48, s{sWV}, 28"); k("s_add_u32 s55, s55, s48"); k(f"s_add_u32 s55, s55, {FL3}")
    def rd(ks):
        return [f"ds_read_b64_tr_b16 {a(8*ks+4*cg+2*hh,2)}, v{A1 if cg else A0} offset:{(ks%14)*2048+hh*512}" for cg in range(2) for hh in range(2)]
    for g in range(7):
        k(f"s_waitcnt vmcnt(24)")
        for x in rd(2*g) + rd(2*g+1): k(x)
        k("s_waitcnt lgkmcnt(0)")
        dma(28+4*g, 32+4*g)
    k(f"v_and_b32 v{T1}, 7, v{LANE}"); k(f"v_lshlrev_b32 v{T1}, 2, v{T1}")
    stamp(k, 16)
    poll(k, "p4", T2, T1, "s55", 1, "0x7f")
    stamp(k, 17)
    if STAMP: k("s_waitcnt lgkmcnt(0)")
    loads = []
    for ks in range(28):
        for t in range(2):
            f = 2*ks + t
            loads.append(f"buffer_load_dwordx4 {v(HH+4*(f%NS),4)}, v{VL16}, {s(SWS,4)}, s{52+t} offen offset:{(ks&3)*1024} sc1")
        if (ks & 3) == 3: loads[-1] += "\ns_add_u32 s52, s52, 4096\ns_add_u32 s53, s53, 4096"
    NI = 16
    rds = [x for ks in range(14, 28) for x in rd(ks)]
    for i, x in enumerate(loads[:NI]):
        k(x)
    loads = loads[NI:]
    for ks in range(28):
        order = [(1, 1), (1, 0), (0, 1), (0, 0)] if ks == 27 else [(0, 0), (0, 1), (1, 0), (1, 1)]
        for j, (t, cg) in enumerate(order):
            acc = v(ACC+16*(2*t+cg),16)
            k(f"{MF32} {acc}, {a(8*ks+4*cg,4)}, {v(HH+4*((2*ks+t)%NS),4)}, {'0' if ks == 0 else acc}")
            if loads and (j & 1): k(loads.pop(0))
            for _ in range(2):
                if rds: k(rds.pop(0))
    stamp(k, 18)
    for i in (3, 2, 1):
        for x in exchange_w(ACC, EXA, i): k(x)
    for x in add_packed(ACC, HR, 8): k(x)
    exchange_r(k, ACC, EXA)
    sum_parts(k, ACC)
    for r in range(8): k(f"v_cvt_pk_bf16_f32 v{HR+r}, v{ACC+2*r}, v{ACC+2*r+1}")
    k(f"buffer_store_dwordx4 {v(HR,4)}, v14, {s(SO,4)}, s101 offen {OPT.get('om','')}")
    k(f"buffer_store_dwordx4 {v(HR+4,4)}, v14, {s(SO,4)}, s101 offen offset:32 {OPT.get('om','')}")

def build(path, aslist=False):
    hdr = open("cdna_kernels/" + NAME + ".s.ref").read().split("; Override")[0]
    k = K()
    setup(k)
    tail = phase1(k)
    if OPT["stop"] > 1: phase2(k)
    if OPT["stop"] > 2: phase3(k)
    if OPT["stop"] > 3: phase4(k)
    k("L_fin:")
    stamp_out(k, 19)
    k("L_end:")
    k("s_endpgm")
    tail(k)
    lines = k.finalize()
    out = hdr
    kn = NAME + "_kernel"
    if aslist: out += f"; @launch kernel={kn} grid=(256,1,1) block=(256,1,1) lds=163840\n"
    else: out += f"; @launch grid=(256,1,1) block=(256,1,1) lds=163840\n"
    out += '.amdgcn_target "amdgcn-amd-amdhsa--gfx950"\n'
    out += kernel(kn, lines, 256, 256)
    open(path, "w").write(out)

if __name__ == "__main__":
    args = sys.argv[2:]
    for x in args:
        if x == "stamp": STAMP = True
        elif "=" in x:
            n, val = x.split("="); OPT[n] = eval(val)
    build(sys.argv[1], aslist=("list" in args))
```

```python
import sys
sys.path.insert(0, "dev")
from asmlib import *

NAME = "sequential_preLN__linear_attn_block__glu_gated_bilinear__prompt"
WS_KV, WS_FL, WS_PQ, WS_H, WS_ST, WS_HH = 0x0, 0x10000, 0x100000, 0x400000, 0x600000, 0x800000
FL1, FL2, FL3 = WS_FL, WS_FL + 0x1000, WS_FL + 0x2000
ONES = 0x3f803f80
EPS6 = "0x358637bd"; EPS5 = "0x3727c5ac"; INVD = "0x3b124925"; LOG2E = "0x3fb8aa3b"
MF32 = "v_mfma_f32_32x32x16_bf16"
MF16 = "v_mfma_f32_16x16x32_bf16"
SX, SW1, SWS, SD, SWO, SG, SU, SDN, SO = 4, 8, 12, 16, 20, 24, 28, 32, 36
sWV, sTB, sHD, sTT, sCT, sTB3, sPN, sJ = 40, 41, 42, 43, 44, 45, 46, 47
LANE, VL16 = 1, 2
T0, T1, T2, T3, T4 = 3, 4, 5, 6, 7
POLLMAX = 0x40000
OPT = dict(gu=(3, 2, 2), kc=3, stop=9)

STAMP = False
WS_TS = 0x2000000
def stamp(k, i):
    if STAMP: k(f"s_memrealtime {s(60+2*i,2)}")
def stamp_out(k, n):
    if not STAMP: return
    k("s_waitcnt vmcnt(0) lgkmcnt(0)")
    stamp(k, n)
    k("s_waitcnt lgkmcnt(0)")
    if OPT.get("pad") is not None:
        i = OPT["pad"]
        k(f"s_cmp_ge_u32 s{sJ}, 28"); k("s_cbranch_scc1 L_end")
        if OPT.get("tiny") == 2:
            k(f"s_mov_b32 s58, 0x3000000")
            k(f"buffer_load_dword v1, off, {s(SWS,4)}, s58 sc1")
            k("s_waitcnt vmcnt(0)")
            k("v_readfirstlane_b32 s58, v1"); k("s_add_u32 s58, s58, 5000")
            k("s_sub_u32 s59, s58, s60"); k("s_cmp_gt_u32 s59, 5000"); k("s_cbranch_scc1 L_end")
        else: k(f"s_add_u32 s58, s{60+2*i}, 5000")
        k("L_padw:")
        k("s_memrealtime s[56:57]"); k("s_waitcnt lgkmcnt(0)")
        k("s_sub_u32 s59, s56, s58"); k("s_cmp_lt_i32 s59, 0"); k("s_cbranch_scc1 L_padw")
        return
    k("s_mov_b64 exec, 1")
    if OPT.get("dbg") is not None:
        k(f"s_lshl_b32 s58, s2, 2"); k(f"s_add_u32 s58, s58, s{sWV}")
        k(f"s_cmp_lg_u32 s58, {OPT['dbg']}"); k("s_cbranch_scc1 L_end")
        for j, i in enumerate([1,2,3,4,6,7,8,9,10,12,14,15,16,17,18,19]):
            k(f"s_sub_u32 s58, s{60+2*i}, s60"); k(f"v_mov_b32 v1, s58")
            k(f"buffer_store_dword v1, off, {s(SD,4)}, 0 offset:{4*j}")
        return
    k(f"s_lshl_b32 s58, s2, 2"); k(f"s_add_u32 s58, s58, s{sWV}"); k("s_lshl_b32 s58, s58, 7")
    k(f"s_add_u32 s58, s58, {WS_TS}")
    for i in range(n+1):
        k(f"v_mov_b32 v1, s{60+2*i}")
        k(f"buffer_store_dword v1, off, {s(SWS,4)}, s58 offset:{4*i}")

def mix(k, mf, fill, per=None, lead=0):
    fill = list(fill); n = len(mf)
    for _ in range(lead):
        if fill: k(fill.pop(0))
    for i, m in enumerate(mf):
        k(m)
        cnt = per if per is not None else -(-len(fill) // (n - i))
        for _ in range(cnt):
            if fill: k(fill.pop(0))
    for f in fill: k(f)

def poll(k, tag, vdst, vaddr, soff, cmp_val, mask_lo, first=True):
    k(f"s_mov_b32 s48, {POLLMAX}")
    k(f"L_poll_{tag}:")
    k(f"buffer_load_dword v{vdst}, v{vaddr}, {s(SWS,4)}, {soff} offen sc1")
    k("s_sub_u32 s48, s48, 1")
    k("s_waitcnt vmcnt(0)")
    k(f"v_cmp_eq_u32 vcc, {cmp_val}, v{vdst}")
    k(f"s_cbranch_scc1 L_pollx_{tag}")
    k(f"s_andn2_b32 s49, {mask_lo}, vcc_lo")
    k(f"s_cbranch_scc1 L_poll_{tag}")
    k(f"L_pollx_{tag}:")

def setup(k):
    k("s_cmp_ge_u32 s2, 256"); k("s_cbranch_scc1 L_end")
    stamp(k, 0)
    for sr, off in ((SX, 0), (SW1, 8), (SWS, 72), (SD, 64), (SWO, 16), (SG, 32), (SU, 40), (SDN, 48), (SO, 56)):
        k(f"s_load_dwordx2 {s(sr,2)}, s[0:1], {off}")
    k(f"v_and_b32 v{LANE}, 63, v0"); k(f"v_lshrrev_b32 v{T0}, 6, v0")
    k(f"v_readfirstlane_b32 s{sWV}, v{T0}")
    k(f"v_lshlrev_b32 v{VL16}, 4, v{LANE}")
    k("s_and_b32 s3, s2, 7"); k(f"s_lshr_b32 s{sJ}, s2, 3")
    k(f"s_and_b32 s48, s{sJ}, 3"); k(f"s_lshr_b32 s49, s{sJ}, 2")
    k(f"s_and_b32 s{sTB}, s3, 3"); k(f"s_lshl_b32 s{sTB}, s{sTB}, 2"); k(f"s_add_u32 s{sTB}, s{sTB}, s48")
    k(f"s_lshr_b32 s{sHD}, s3, 2"); k(f"s_lshl_b32 s{sHD}, s{sHD}, 3"); k(f"s_add_u32 s{sHD}, s{sHD}, s49")
    k(f"s_lshl_b32 s{sTT}, s3, 2"); k(f"s_add_u32 s{sTT}, s{sTT}, s48")
    k(f"s_min_u32 s{sCT}, s49, 6")
    k(f"s_and_b32 s{sTB3}, s3, 1"); k(f"s_lshl_b32 s{sTB3}, s{sTB3}, 2"); k(f"s_add_u32 s{sTB3}, s{sTB3}, s48")
    k(f"s_lshr_b32 s{sPN}, s3, 1"); k(f"s_mul_i32 s{sPN}, s{sPN}, 7"); k(f"s_add_u32 s{sPN}, s{sPN}, s{sCT}")
    for sr, size in ((SX, 2048*896), (SW1, 448*2688), (SWS, 268435456), (SD, 256), (SWO, 448*896), (SG, 448*3584),
                     (SU, 448*3584), (SDN, 1792*896), (SO, 2048*896)):
        k(f"s_mov_b32 {s(sr+2)}, {size}"); k(f"s_mov_b32 {s(sr+3)}, 0x00020000")

L_W, L_ONE, L_CS, L_ST, L_RING = 1024, 87040, 87552, 91648, 98304
def phase1(k):
    VX, VW, VWO, QINC, FL = 8, 12, 13, 14, 15
    AQ, AK, AXL, AX = 16, 20, 24, 28
    Q, KK, VV, G, CS, SEL, WF, XF = 32, 48, 64, 80, 96, 100, 112, 160
    sG, sXB, sWB, sLW, sRB, sDX, sRX, sIT, sA, sB, sWOo, sWOl = 50, 51, 52, 53, 54, 55, 56, 57, 58, 59, 100, 101
    k(f"v_lshrrev_b32 v{T1}, 2, v{LANE}"); k(f"v_mul_u32_u24 v{VW}, 2688, v{T1}")
    k(f"v_and_b32 v{T1}, 3, v{LANE}"); k(f"v_lshl_add_u32 v{VW}, v{T1}, 4, v{VW}")
    k(f"v_lshrrev_b32 v{T1}, 3, v{LANE}"); k(f"v_mul_u32_u24 v{T2}, 896, v{T1}")
    k(f"v_and_b32 v{T3}, 7, v{LANE}"); k(f"v_xor_b32 v{T3}, v{T3}, v{T1}")
    k(f"v_lshl_add_u32 v{VX}, v{T3}, 4, v{T2}")
    k(f"v_xor_b32 v{VX+1}, 16, v{VX}"); k(f"v_add_u32 v{VX+1}, 6144, v{VX+1}")
    k(f"v_add_u32 v{VX+2}, 12288, v{VX}"); k(f"v_add_u32 v{VX+3}, 12288, v{VX+1}")
    k(f"s_lshl_b32 s{sG}, s48, 1"); k(f"s_add_u32 s{sG}, s{sG}, s49")
    k(f"s_sub_u32 s{sA}, s{sG}, 7"); k(f"s_cselect_b32 s{sG}, s{sG}, s{sA}")
    k(f"s_lshl_b32 s{sXB}, s{sTB}, 2"); k(f"s_add_u32 s{sXB}, s{sXB}, s{sWV}"); k(f"s_mul_i32 s{sXB}, s{sXB}, 28672")
    k(f"s_mul_i32 s{sWB}, s{sWV}, {16*2688}"); k(f"s_mul_i32 s{sA}, s{sHD}, 56"); k(f"s_add_u32 s{sWB}, s{sWB}, s{sA}")
    k(f"s_lshl_b32 s{sLW}, s{sWV}, 10"); k(f"s_add_u32 s{sLW}, s{sLW}, {L_W}")
    k(f"s_lshl_b32 s{sRB}, s{sWV}, 14"); k(f"s_add_u32 s{sRB}, s{sRB}, {L_RING}")
    k(f"s_mov_b32 s{sDX}, 0")
    for i in range(4): k(f"v_mov_b32 v{CS+i}, 0")
    k("s_waitcnt lgkmcnt(0)")
    stamp(k, 1)
    k(f"s_cmp_lg_u32 s{sTB}, 0"); k("s_cbranch_scc1 L_p1_nz")
    k.cond_begin()
    k(f"v_lshlrev_b32 v{T3}, 4, v0"); k(f"s_lshl_b32 s{sA}, s{sHD}, 12")
    k(f"buffer_store_dwordx4 {v(CS,4)}, v{T3}, {s(SWS,4)}, s{sA} offen sc1")
    k(f"v_lshlrev_b32 v{T3}, 2, v0"); k(f"s_lshl_b32 s{sA}, s{sHD}, 10"); k(f"s_add_u32 s{sA}, s{sA}, {WS_FL}")
    k(f"buffer_store_dword v{CS}, v{T3}, {s(SWS,4)}, s{sA} offen sc1")
    k.cond_end()
    k("L_p1_nz:")
    def issue():
        k(f"s_mul_i32 s{sB}, s{sG}, {64*2688}"); k(f"s_add_u32 s{sB}, s{sB}, s{sWB}")
        k(f"s_lshl_b32 s{sA}, s{sG}, 7"); k(f"s_add_u32 s{sA}, s{sA}, s{sXB}")
        for m in range(3):
            k(f"s_add_u32 m0, s{sLW}, {m*4096 - m*896}")
            k(f"buffer_load_dwordx4 v{VW}, {s(SW1,4)}, s{sB} offen offset:{m*896} lds")
        k(f"s_add_u32 m0, s{sRB}, s{sDX}")
        k(f"s_add_u32 s{sG}, s{sG}, 1")
        for r in range(4):
            k(f"buffer_load_dwordx4 v{VX+r}, {s(SX,4)}, s{sA} offen offset:{r*1024} lds")
        k(f"s_cmp_eq_u32 s{sG}, 7"); k(f"s_cselect_b32 s{sG}, 0, s{sG}")
        k(f"s_add_u32 s{sLW}, s{sLW}, 12288")
        k(f"s_add_u32 s{sDX}, s{sDX}, 4096"); k(f"s_and_b32 s{sDX}, s{sDX}, 0x3fff")
    for c in range(3): issue()
    stamp(k, 2)
    k(f"v_mov_b32 v{T1}, {ONES}"); k(f"v_lshlrev_b32 v{T2}, 2, v{LANE}"); k(f"v_add_u32 v{T2}, {L_ONE}, v{T2}")
    k(f"ds_write2st64_b32 v{T2}, v{T1}, v{T1} offset0:0 offset1:1")
    k(f"v_lshrrev_b32 v{T0}, 5, v{LANE}"); k(f"v_lshlrev_b32 v{T0}, 9, v{T0}")
    k(f"v_bfe_u32 v{T2}, v{LANE}, 2, 2"); k(f"v_lshlrev_b32 v{T2}, 6, v{T2}")
    k(f"v_bfe_u32 v{T3}, v{LANE}, 4, 1"); k(f"v_lshl_add_u32 v{T2}, v{T3}, 5, v{T2}")
    k(f"v_and_b32 v{T3}, 3, v{LANE}"); k(f"v_lshl_add_u32 v{T2}, v{T3}, 3, v{T2}")
    k(f"v_add_u32 v{T0}, v{T0}, v{T2}"); k(f"v_add_u32 v{T2}, {L_ONE}, v{T2}")
    k(f"v_and_b32 v{T3}, 19, v{LANE}"); k(f"v_cmp_eq_u32 vcc, 19, v{T3}")
    k(f"v_mov_b32 v{QINC}, 12288"); k(f"v_cndmask_b32 v{QINC}, v{QINC}, v{CS}")
    k(f"v_and_b32 v{T3}, 31, v{LANE}"); k(f"v_lshlrev_b32 v{T4}, 7, v{T3}")
    k(f"v_bfe_u32 v{T3}, v{LANE}, 3, 1"); k(f"v_lshrrev_b32 v{AX}, 5, v{LANE}"); k(f"v_xor_b32 v{T3}, v{T3}, v{AX}")
    k(f"v_and_b32 v{AX}, 7, v{LANE}"); k(f"v_xor_b32 v{T3}, v{T3}, v{AX}")
    k(f"v_lshl_add_u32 v{T4}, v{T3}, 4, v{T4}")
    for i in range(4):
        k(f"s_xor_b32 s{sA}, s{sWV}, {i}"); k(f"s_lshl_b32 s{sB}, s{sA}, 5"); k(f"s_lshl_b32 s{sA}, s{sA}, 10")
        k(f"s_add_u32 s{sA}, s{sA}, {L_W}")
        k(f"v_add_u32 v{AK+i}, s{sA}, v{T0}"); k(f"v_cndmask_b32 v{AQ+i}, v{AK+i}, v{T2}")
        k(f"v_xor_b32 v{AXL+i}, s{sB}, v{T4}"); k(f"v_add_u32 v{AX+i}, s{sRB}, v{AXL+i}")
    k(f"v_and_b32 v{T2}, 15, v{LANE}"); k(f"v_bfe_u32 v{T3}, v{LANE}, 4, 1"); k(f"v_sub_u32 v{T2}, v{T2}, v{T3}")
    for m in range(3):
        k(f"v_cmp_eq_u32 vcc, {2*m}, v{T2}")
        for i in range(4): k(f"v_cndmask_b32 v{SEL+4*m+i}, v{CS}, v{T1}")
    for i in range(64): k(f"v_mov_b32 v{Q+i}, 0")
    k(f"v_lshrrev_b32 v{T1}, 3, v{LANE}"); k(f"v_mul_u32_u24 v{VWO}, 896, v{T1}")
    k(f"v_bfe_u32 v{T1}, v{LANE}, 4, 1"); k(f"v_lshlrev_b32 v{T1}, 2, v{T1}")
    k(f"v_and_b32 v{T2}, 7, v{LANE}"); k(f"v_xor_b32 v{T1}, v{T1}, v{T2}")
    k(f"v_lshl_add_u32 v{VWO}, v{T1}, 4, v{VWO}")
    k(f"s_mul_i32 s{sWOo}, s{sWV}, {112*896}"); k(f"s_lshl_b32 s{sA}, s{sCT}, 7"); k(f"s_add_u32 s{sWOo}, s{sWOo}, s{sA}")
    k(f"s_mul_i32 s{sWOl}, s{sWV}, 14336")
    k(f"s_mov_b32 s{sRX}, 0"); k(f"s_mov_b32 s{sIT}, 0")
    k("s_waitcnt vmcnt(14) lgkmcnt(0)"); k("s_barrier")
    stamp(k, 3)
    k(f"s_or_b32 s{sA}, s{sTB}, s{sWV}"); k("s_cbranch_scc1 L_p1_nf")
    k.cond_begin()
    k("s_mov_b64 exec, 1"); k(f"s_lshl_b32 s{sA}, s{sHD}, 2")
    k(f"buffer_store_dword v{QINC}, off, {s(SD,4)}, s{sA} sc1")
    k("s_mov_b64 exec, -1")
    k.cond_end()
    k("L_p1_nf:")
    if STAMP: k("s_waitcnt lgkmcnt(0)")
    def rdw(i, m):
        ar = (AQ if m == 0 else AK) + i
        return [f"ds_read_b64_tr_b16 {v(WF+12*i+4*m+2*hh,2)}, v{ar} offset:{m*4096+hh*256}" for hh in range(2)]
    def rdx(i): return [f"ds_read_b128 {v(XF+4*i,4)}, v{AX+i}"]
    def adv(i): return [f"v_add_u32 v{AQ+i}, v{QINC}, v{AQ+i}", f"v_add_u32 v{AK+i}, 12288, v{AK+i}", f"v_add_u32 v{AX+i}, s{sRX+0}, v{AXL+i}"]
    def nextrx():
        k(f"s_add_u32 s{sRX}, s{sRX}, 4096"); k(f"s_and_b32 s{sRX}, s{sRX}, 0x3fff"); k(f"s_or_b32 s{sRX}, s{sRX}, s{sRB}")
    mK = lambda i: f"{MF32} {v(KK,16)}, {v(XF+4*i,4)}, {v(WF+12*i+4,4)}, {v(KK,16)}"
    mV = lambda i: f"{MF32} {v(VV,16)}, {v(XF+4*i,4)}, {v(WF+12*i+8,4)}, {v(VV,16)}"
    mQ = lambda i: f"{MF32} {v(Q,16)}, {v(WF+12*i,4)}, {v(XF+4*i,4)}, {v(Q,16)}"
    mG = lambda i: f"{MF32} {v(G,16)}, {v(XF+4*i,4)}, {v(XF+4*i,4)}, {v(G,16)}"
    mC = lambda m: f"{MF16} {v(CS,4)}, {v(SEL+4*m,4)}, {v(WF+4*m,4)}, {v(CS,4)}"
    nextrx()
    for i in range(4):
        for x in rdw(i, 1) + rdw(i, 2) + rdw(i, 0) + rdx(i) + adv(i): k(x)
    k("L_p1_loop:")
    k("s_waitcnt vmcnt(7)"); k("s_barrier")
    k(f"s_cmp_ge_u32 s{sIT}, 4"); k("s_cbranch_scc1 L_p1_wo")
    k.cond_begin()
    issue()
    k.cond_end()
    k("L_p1_body:")
    nextrx()
    k(f"s_add_u32 s{sIT}, s{sIT}, 1")
    for m in range(3): k(mC(m))
    for i in range(4):
        k(mK(i)); [k(x) for x in rdw(i, 1)]
        k(mV(i)); [k(x) for x in rdw(i, 2)]
        k(mQ(i)); [k(x) for x in rdw(i, 0)]
        k(mG(i)); [k(x) for x in rdx(i) + adv(i)]
    k(f"s_cmp_lt_u32 s{sIT}, 6"); k("s_cbranch_scc1 L_p1_loop")
    stamp(k, 4)
    CK, CV, CQL, MEAN, RSTD, SXX = 176, 180, 184, 188, 190, 192
    CQ, MR, RR, TM = 112, 128, 144, 160
    for m in range(3): k(mC(m))
    k(mG(0)); k(f"v_lshrrev_b32 v{T1}, 4, v{LANE}"); k(f"v_lshlrev_b32 v{T1}, 6, v{T1}"); k(f"v_and_b32 v{T2}, 15, v{LANE}")
    k(mQ(0)); k(f"v_add_u32 v{T1}, v{T1}, v{T2}"); k(f"s_lshl_b32 s{sA}, s{sWV}, 2"); k(f"s_add_u32 s{sA}, s{sA}, {L_CS}")
    k(f"v_lshl_add_u32 v{T1}, v{T1}, 4, s{sA}")
    k(mG(1))
    for r in range(4): k(f"ds_write_b32 v{T1}, v{CS+r} offset:{r*256}")
    k(mQ(1))
    k(f"v_and_b32 v{T2}, 31, v{LANE}"); k(f"v_lshlrev_b32 v{T3}, 4, v{T2}"); k(f"v_add_u32 v{T3}, {L_CS}, v{T3}")
    k(f"s_lshl_b32 s{sB}, s{sWV}, 9"); k(f"s_add_u32 s{sB}, s{sB}, {L_ST}")
    k(mG(2)); k(mQ(2))
    k("s_waitcnt lgkmcnt(0)"); k("s_barrier")
    k(f"ds_read_b128 {v(CQL,4)}, v{T3}"); k(f"ds_read_b128 {v(CK,4)}, v{T3} offset:512"); k(f"ds_read_b128 {v(CV,4)}, v{T3} offset:1024")
    k(mG(3)); k(mQ(3))
    k(f"v_lshl_add_u32 v{T2}, v{T2}, 2, s{sB}")
    k(f"v_lshl_add_u32 v{T4}, v{LANE}, 2, s{sB}")
    k(f"v_lshrrev_b32 v{T3}, 5, v{LANE}"); k(f"v_lshl_add_u32 v{T3}, v{T3}, 4, s{sB}")
    k(mK(0))
    for x in (CQL, CK, CV):
        k(f"v_add_f32 v{x}, v{x}, v{x+1}"); k(f"v_add_f32 v{x+2}, v{x+2}, v{x+3}"); k(f"v_add_f32 v{x}, v{x}, v{x+2}")
        if x == CQL: k(f"ds_write_b32 v{T2}, v{CQL}"); k(mV(0))
    sel = []
    for lvl, (msk, stp) in enumerate(((0xaaaaaaaa, 1), (0xcccccccc, 2), (0xff00ff00, 4), (0xffff0000, 8))):
        sel.append(f"s_mov_b32 vcc_lo, {msk:#x}"); sel.append(f"s_mov_b32 vcc_hi, {msk:#x}")
        for r in range(0, 16, 2*stp): sel.append(f"v_cndmask_b32 v{G+r}, v{G+r}, v{G+r+stp}")
    mix(k, [mK(1), mV(1), mK(2)], sel)
    st = [f"v_mov_b32 v{G+1}, v{G}", f"v_mov_b32 v{MEAN}, v{Q+12}", f"v_mov_b32 v{RSTD}, v{Q+12}",
          "s_mov_b32 vcc_lo, 0xf0f0f0f0", "s_mov_b32 vcc_hi, 0xf0f0f0f0",
          f"v_permlane32_swap_b32 v{G}, v{G+1}", f"v_permlane32_swap_b32 v{RSTD}, v{MEAN}",
          f"v_cndmask_b32 v{SXX}, v{G}, v{G+1}",
          f"v_mul_f32 v{MEAN}, 0xbb124925, v{MEAN}",
          f"v_mul_f32 v{SXX}, {INVD}, v{SXX}",
          f"v_fma_f32 v{RSTD}, -v{MEAN}, v{MEAN}, v{SXX}",
          f"v_max_f32 v{RSTD}, 0, v{RSTD}", f"v_add_f32 v{RSTD}, {EPS5}, v{RSTD}", f"v_rsq_f32 v{RSTD}, v{RSTD}",
          "s_mov_b32 vcc_lo, 0", "s_mov_b32 vcc_hi, -1",
          f"v_cndmask_b32 v{SXX}, v{MEAN}, v{RSTD}",
          f"ds_write_b32 v{T4}, v{SXX} offset:128"]
    mix(k, [mV(2), mK(3), mV(3)], st)
    for q in range(4): k(f"ds_read_b128 {v(MR+4*q,4)}, v{T3} offset:{128+q*32}"); k(f"ds_read_b128 {v(RR+4*q,4)}, v{T3} offset:{256+q*32}")
    for q in range(4): k(f"ds_read_b128 {v(CQ+4*q,4)}, v{T3} offset:{q*32}")
    stamp(k, 5)
    EP, LG = 194, 196
    k(f"v_mov_b32 v{EP}, {EPS6}"); k(f"v_mov_b32 v{LG}, {LOG2E}")
    PK, PV, PQ = 200, 208, 216
    def phi(acc, dst, mean, cs, rstd, bt):
        o = []
        for r in range(0, 16, 2):
            A = v(acc+r,2)
            if bt:
                o.append(f"v_pk_fma_f32 {A}, {v(mean,2)}, {v(cs+r,2)}, {A} op_sel_hi:[0,1,1]")
                o.append(f"v_pk_fma_f32 {A}, {A}, {v(rstd,2)}, {v(EP,2)} op_sel_hi:[1,0,0]")
            else:
                o.append(f"v_pk_fma_f32 {A}, {v(mean+r,2)}, {v(cs,2)}, {A} op_sel_hi:[1,0,1]")
                o.append(f"v_pk_fma_f32 {A}, {A}, {v(rstd+r,2)}, {v(EP,2)} op_sel_hi:[1,1,0]")
        for r in range(0, 16, 2): o.append(f"v_pk_mul_f32 {v(TM+r,2)}, {v(acc+r,2)}, {v(LG,2)} op_sel_hi:[1,0]")
        for r in range(16):
            o.append(f"v_exp_f32_e64 v{TM+r}, v{TM+r} clamp"); o.append(f"v_max_f32 v{acc+r}, v{acc+r}, v{EP}")
        for r in range(0, 16, 2): o.append(f"v_pk_add_f32 {v(acc+r,2)}, {v(acc+r,2)}, {v(TM+r,2)}")
        for r in range(8): o.append(f"v_cvt_pk_bf16_f32 v{dst+r}, v{acc+2*r}, v{acc+2*r+1}")
        return o
    for x in phi(KK, PK, MR, CK, RR, False): k(x)
    for r in range(0, 16, 2): k(f"v_pk_fma_f32 {v(VV+r,2)}, {v(MR+r,2)}, {v(CV,2)}, {v(VV+r,2)} op_sel_hi:[1,0,1]")
    for r in range(0, 16, 2): k(f"v_pk_mul_f32 {v(VV+r,2)}, {v(VV+r,2)}, {v(RR+r,2)}")
    k("s_mov_b32 vcc_lo, 0x30000000"); k("s_mov_b32 vcc_hi, 0x30000000"); k(f"v_mov_b32 v{T0}, {ONES}")
    for r in range(8): k(f"v_cvt_pk_bf16_f32 v{PV+r}, v{VV+2*r}, v{VV+2*r+1}")
    for r in range(8): k(f"v_cndmask_b32 v{PV+r}, v{PV+r}, v{T0}")
    k(f"{MF32} {v(KK,16)}, {v(PK,4)}, {v(PV,4)}, 0")
    k(f"{MF32} {v(KK,16)}, {v(PK+4,4)}, {v(PV+4,4)}, {v(KK,16)}")
    k(f"v_and_b32 v{T1}, 31, v{LANE}")
    k(f"v_subrev_u32 v{T2}, 24, v{T1}"); k(f"v_lshlrev_b32 v{T2}, 2, v{T2}")
    k(f"v_mov_b32 v{T3}, 0x62735410")
    k(f"v_lshrrev_b32 v{T3}, v{T2}, v{T3}"); k(f"v_and_b32 v{T3}, 7, v{T3}"); k(f"v_add_u32 v{T3}, 24, v{T3}")
    k(f"v_cmp_le_u32 vcc, 24, v{T1}")
    k(f"v_cndmask_b32 v{T1}, v{T1}, v{T3}")
    k(f"v_and_b32 v{T2}, 32, v{LANE}"); k(f"v_add_u32 v{T1}, v{T1}, v{T2}")
    k(f"v_lshl_add_u32 v{T1}, v{T1}, 4, s{sRB}")
    qp = phi(Q, PQ, MEAN, CQ, RSTD, True)
    for x in qp[:8]: k(x)
    for q in range(4): k(f"ds_write_b128 v{T1}, {v(KK+4*q,4)} offset:{q*1024}")
    k(f"s_lshl_b32 s{sA}, s{sWV}, 10")
    k(f"v_lshl_add_u32 v{T2}, v{LANE}, 2, s{sA}"); k(f"v_add_u32 v{T3}, {L_RING}, v{T2}")
    for x in qp[8:24]: k(x)
    k("s_waitcnt lgkmcnt(0)"); k("s_barrier")
    for i in range(4):
        k(f"ds_read2st64_b32 {v(VV+4*i,2)}, v{T3} offset0:{i} offset1:{64+i}")
        k(f"ds_read2st64_b32 {v(VV+4*i+2,2)}, v{T3} offset0:{128+i} offset1:{192+i}")
    for x in qp[24:40]: k(x)
    k(f"s_mov_b32 s48, {POLLMAX}")
    k("s_waitcnt vmcnt(7)")
    k("L_p1_poll:")
    k(f"v_cmp_ne_u32 vcc, 0, v{FL}")
    k("s_sub_u32 s48, s48, 1"); k("s_cbranch_scc1 L_p1_go")
    k("s_andn2_b32 s49, 0xffff, vcc_lo"); k("s_cbranch_scc0 L_p1_go")
    k(f"v_lshlrev_b32 v{T0}, 2, v{LANE}")
    k(f"buffer_load_dword v{FL}, v{T0}, {s(SD,4)}, 0 offen sc1")
    k("s_waitcnt vmcnt(0)")
    k("s_branch L_p1_poll")
    k("L_p1_go:")
    k(f"s_lshl_b32 s{sA}, s{sHD}, 12")
    for i in range(4):
        k(f"v_pk_add_f32 {v(VV+4*i,2)}, {v(VV+4*i,2)}, {v(VV+4*i+2,2)}")
        k(f"v_add_f32 v{VV+4*i}, v{VV+4*i}, v{VV+4*i+1}")
    for i in range(4): k(f"buffer_atomic_add_f32 v{VV+4*i}, v{T2}, {s(SWS,4)}, s{sA} offen offset:{i*256} sc1")
    for x in qp[40:]: k(x)
    k("s_mov_b32 exec_lo, 0"); k(f"v_mov_b32 v{PQ+6}, 0"); k(f"v_mov_b32 v{PQ+7}, 0"); k("s_mov_b64 exec, -1")
    k(f"s_lshl_b32 s{sA}, s{sTB}, 2"); k(f"s_add_u32 s{sA}, s{sA}, s{sWV}"); k(f"s_lshl_b32 s{sA}, s{sA}, 4")
    k(f"s_add_u32 s{sA}, s{sA}, s{sHD}"); k(f"s_lshl_b32 s{sA}, s{sA}, 11"); k(f"s_add_u32 s{sA}, s{sA}, {WS_PQ}")
    k(f"buffer_store_dwordx4 {v(PQ,4)}, v{VL16}, {s(SWS,4)}, s{sA} offen sc1")
    k(f"buffer_store_dwordx4 {v(PQ+4,4)}, v{VL16}, {s(SWS,4)}, s{sA} offen offset:1024 sc1")
    stamp(k, 6)
    A0, A1, A2, A3 = 8, 9, 10, 11
    k(f"s_mul_i32 s{sA}, s{sWV}, 14336"); k(f"s_and_b32 s{sB}, s{sWV}, 1")
    k(f"v_bfe_u32 v{T1}, v{LANE}, 4, 1"); k(f"v_lshlrev_b32 v{T1}, 5, v{T1}")
    k(f"v_and_b32 v{T2}, 1, v{LANE}"); k(f"v_lshl_add_u32 v{T1}, v{T2}, 4, v{T1}")
    k(f"v_bfe_u32 v{T2}, v{LANE}, 1, 1"); k(f"v_lshl_add_u32 v{T1}, v{T2}, 3, v{T1}")
    k(f"v_add_u32 v{T1}, s{sA}, v{T1}")
    k(f"v_bfe_u32 v{T2}, v{LANE}, 2, 2"); k(f"v_lshrrev_b32 v{T3}, 5, v{LANE}")
    k(f"v_lshl_add_u32 v{A0}, v{T3}, 2, v{T2}"); k(f"v_lshl_add_u32 v{A0}, v{A0}, 7, v{T1}")
    k(f"v_bfe_u32 v{T2}, v{LANE}, 3, 1"); k(f"v_xor_b32 v{T2}, s{sB}, v{T2}")
    k(f"v_lshl_add_u32 v{A0}, v{T2}, 6, v{A0}"); k(f"v_xor_b32 v{A1}, 64, v{A0}")
    k(f"v_bfe_u32 v{T2}, v{LANE}, 2, 1"); k(f"v_lshl_add_u32 v{A2}, v{T3}, 1, v{T2}")
    k(f"v_lshl_add_u32 v{A2}, v{A2}, 7, v{T1}")
    k(f"v_xor_b32 v{T2}, s{sB}, v{T3}"); k(f"v_lshl_add_u32 v{A2}, v{T2}, 6, v{A2}")
    k(f"v_xor_b32 v{A3}, 64, v{A2}")
    k("s_waitcnt vmcnt(6)")
    for hd in range(4):
        for cg in range(2):
            ar, al = (A0, A2) if cg == 0 else (A1, A3)
            b = hd*3584; wf = 16*hd + 8*cg
            for j in range(3): k(f"ds_read_b64_tr_b16 {a(wf+2*j,2)}, v{ar} offset:{b+1024*j}")
            k(f"ds_read_b64_tr_b16 {a(wf+6,2)}, v{al} offset:{b+3072}")
    k("s_waitcnt vmcnt(0) lgkmcnt(0)"); k("s_barrier")
    k(f"s_cmp_lg_u32 s{sWV}, 0"); k("s_cbranch_scc1 L_p1_nc")
    k.cond_begin()
    k("s_mov_b64 exec, 1"); k(f"v_mov_b32 v{T0}, 1")
    k(f"s_lshl_b32 s{sA}, s{sHD}, 7"); k(f"s_add_u32 s{sA}, s{sA}, {FL1}")
    k(f"buffer_atomic_add v{T0}, off, {s(SWS,4)}, s{sA} sc1")
    k("s_mov_b64 exec, -1")
    k.cond_end()
    k("L_p1_nc:")
    stamp(k, 7)
    k(f"s_cmp_ge_u32 s{sJ}, 28"); k("s_cbranch_scc1 L_fin")
    def tail(k):
        k("L_p1_wo:")
        k(f"v_lshlrev_b32 v{T0}, 2, v{LANE}")
        k(f"buffer_load_dword v{FL}, v{T0}, {s(SD,4)}, 0 offen sc1")
        for i in range(7):
            k(f"s_add_u32 m0, s{sWOl}, {i*1024}")
            k(f"buffer_load_dwordx4 v{VWO}, {s(SWO,4)}, s{sWOo} offen lds")
            k(f"s_add_u32 s{sWOo}, s{sWOo}, {8*896}")
        k(f"s_add_u32 s{sWOl}, s{sWOl}, 7168")
        k("s_branch L_p1_body")
    return tail

VG, VU = 12, 13
def gu_setup(k):
    k(f"v_lshrrev_b32 v{T1}, 3, v{LANE}"); k(f"v_mul_u32_u24 v{VG}, 3584, v{T1}")
    k(f"v_bfe_u32 v{T1}, v{LANE}, 4, 1"); k(f"v_lshlrev_b32 v{T1}, 1, v{T1}")
    k(f"v_and_b32 v{T2}, 7, v{LANE}"); k(f"v_xor_b32 v{T1}, v{T1}, v{T2}")
    k(f"v_xor_b32 v{T2}, 4, v{T1}")
    k(f"v_lshl_add_u32 v{VU}, v{T2}, 4, v{VG}"); k(f"v_lshl_add_u32 v{VG}, v{T1}, 4, v{VG}")
    k(f"s_and_b32 s50, s{sJ}, 3"); k("s_lshl_b32 s50, s50, 1")
    k(f"s_mul_i32 s51, s{sWV}, {16*3584}"); k(f"s_lshl_b32 s52, s{sPN}, 7"); k("s_add_u32 s51, s51, s52")
    k(f"s_lshl_b32 s52, s{sWV}, 11")
def gu_issue(k, n):
    for _ in range(n):
        k(f"s_mul_i32 s53, s50, {64*3584}"); k("s_add_u32 s53, s53, s51"); k(f"s_add_u32 s54, s53, {8*3584}")
        k("s_lshl_b32 s55, s50, 13"); k("s_add_u32 s55, s55, s52")
        for m in range(2):
            for j in range(2):
                k(f"s_add_u32 m0, s55, {m*57344 + j*1024}")
                k(f"buffer_load_dwordx4 v{VU if m else VG}, {s(SU if m else SG,4)}, s{54 if j else 53} offen lds")
        k("s_add_u32 s50, s50, 1"); k("s_cmp_eq_u32 s50, 7"); k("s_cselect_b32 s50, 0, s50")

L_EX = 114688
def exchange(k, ACC, TMP):
    for i in range(1, 4):
        k(f"s_xor_b32 s48, s{sWV}, {i}"); k("s_mul_i32 s48, s48, 12288"); k(f"s_add_u32 s48, s48, {L_EX + (i-1)*4096}")
        k(f"v_add_u32 v{TMP+i}, s48, v{VL16}")
    k(f"s_mul_i32 s48, s{sWV}, 12288"); k(f"s_add_u32 s48, s48, {L_EX}")
    k(f"v_add_u32 v{TMP}, s48, v{VL16}")
def exchange_w(ACC, TMP, i):
    return [f"ds_write_b128 v{TMP+i}, {v(ACC+16*i+4*q,4)} offset:{q*1024}" for q in range(4)]
def exchange_r(k, ACC, TMP):
    k("s_waitcnt lgkmcnt(0)"); k("s_barrier")
    for i in range(1, 4):
        for q in range(4): k(f"ds_read_b128 {v(ACC+16*i+4*q,4)}, v{TMP} offset:{(i-1)*4096+q*1024}")
def add_packed(ACC, RES, TT):
    o = []
    for r in range(8):
        o += [f"v_lshlrev_b32 v{TT}, 16, v{RES+r}", f"v_and_b32 v{TT+1}, 0xffff0000, v{RES+r}",
              f"v_pk_add_f32 {v(ACC+2*r,2)}, {v(ACC+2*r,2)}, {v(TT,2)}"]
    return o
def sum_parts(k, ACC):
    for i in range(1, 4):
        for r in range(0, 16, 2): k(f"v_pk_add_f32 {v(ACC+r,2)}, {v(ACC+r,2)}, {v(ACC+16*i+r,2)}")
def flag_store(k, soff_reg):
    k("s_mov_b64 exec, 1"); k(f"v_mov_b32 v{T0}, 1")
    k(f"buffer_store_dword v{T0}, off, {s(SWS,4)}, s{soff_reg} sc1")
    k("s_mov_b64 exec, -1")

HR = 16
sTG = 100
def phase2(k):
    ACC, KVF, KVB, OD, OP, EXA = 24, 88, 152, 184, 216, 232
    PQ = 64
    gu_setup(k)
    k(f"s_lshr_b32 s48, s{sWV}, 1"); k(f"s_lshl_b32 s{sTG}, s{sTT}, 1"); k(f"s_add_u32 s{sTG}, s{sTG}, s48")
    k(f"v_and_b32 v{T1}, 31, v{LANE}"); k(f"v_mul_u32_u24 v{T1}, 896, v{T1}")
    k(f"v_lshrrev_b32 v{T2}, 5, v{LANE}"); k(f"v_lshl_add_u32 v14, v{T2}, 4, v{T1}")
    k(f"s_mul_i32 s101, s{sTG}, 28672"); k(f"s_lshl_b32 s48, s{sCT}, 7"); k("s_add_u32 s101, s101, s48")
    k(f"s_and_b32 s48, s{sWV}, 1"); k("s_lshl_b32 s48, s48, 6"); k("s_add_u32 s101, s101, s48")
    k(f"buffer_load_dwordx4 {v(HR,4)}, v14, {s(SX,4)}, s101 offen")
    k(f"buffer_load_dwordx4 {v(HR+4,4)}, v14, {s(SX,4)}, s101 offen offset:32")
    gu_issue(k, OPT["gu"][0])
    exchange(k, ACC, EXA)
    k(f"v_mov_b32 v{OP+7}, 0"); k(f"v_mov_b32 v{OP+15}, 0")
    k(f"s_lshl_b32 s56, s{sWV}, 14")
    k(f"s_lshl_b32 s59, s{sWV}, 13"); k(f"s_add_u32 s59, s59, {WS_PQ}")
    k(f"s_lshl_b32 s57, s{sTG}, 15"); k("s_add_u32 s57, s57, s59")
    k(f"s_xor_b32 s58, s{sTG}, 1"); k("s_lshl_b32 s58, s58, 15"); k("s_add_u32 s58, s58, s59")
    k(f"v_and_b32 v{T1}, 3, v{LANE}"); k(f"v_lshlrev_b32 v{T1}, 7, v{T1}")
    k(f"s_lshl_b32 s59, s{sWV}, 9"); k(f"s_add_u32 s59, s59, {FL1}")
    poll(k, "p2", T2, T1, "s59", 16, "15")
    stamp(k, 8)
    for hd in range(4):
        for q in range(4):
            k(f"buffer_load_dwordx4 {v(KVF+16*hd+4*q,4)}, v{VL16}, {s(SWS,4)}, s56 offen offset:{q*1024} sc1")
        k("s_add_u32 s56, s56, 4096")
        for t in range(2):
            for ks in range(2):
                k(f"buffer_load_dwordx4 {a(PQ+16*hd+8*t+4*ks,4)}, v{VL16}, {s(SWS,4)}, s{57+t} offen offset:{(hd&1)*2048+ks*1024} sc1")
        if hd == 1: k("s_add_u32 s57, s57, 4096"); k("s_add_u32 s58, s58, 4096")
    gu_issue(k, OPT["gu"][1])
    def cvt(hd): return [f"v_cvt_pk_bf16_f32 v{KVB+8*hd+r}, v{KVF+16*hd+2*r}, v{KVF+16*hd+2*r+1}" for r in range(8)]
    def mo(u):
        hd, t = u >> 1, u & 1; od = v(OD+16*(u&1),16)
        return [f"{MF32} {od}, {v(KVB+8*hd,4)}, {a(PQ+16*hd+8*t,4)}, 0", f"{MF32} {od}, {v(KVB+8*hd+4,4)}, {a(PQ+16*hd+8*t+4,4)}, {od}"]
    def vo(u):
        od = OD+16*(u&1); op = OP + 8*(u&1)
        o = [f"v_add_f32 v{T1}, {EPS6}, v{od+15}", f"v_rcp_f32 v{T1}, v{T1}"]
        for r in range(7):
            o += [f"v_mul_f32 v{od+2*r}, v{od+2*r}, v{T1}", f"v_mul_f32 v{od+2*r+1}, v{od+2*r+1}, v{T1}"]
        for r in range(7): o.append(f"v_cvt_pk_bf16_f32 v{op+r}, v{od+2*r}, v{od+2*r+1}")
        return o
    def mw(u):
        hd, t = u >> 1, u & 1; op = OP + 8*(u&1); o = []
        for ks in range(2):
            for cg in range(2):
                acc = v(ACC+16*(2*t+cg),16)
                o.append(f"{MF32} {acc}, {a(16*hd+8*cg+4*ks,4)}, {v(op+4*ks,4)}, {'0' if (hd == 0 and ks == 0) else acc}")
        return o
    for x in cvt(0): k(x)
    for x in mo(0) + mo(1): k(x)
    for x in cvt(1): k(x)
    for x in vo(0): k(x)
    for u in range(8):
        mf = mw(u) + (mo(u+2) if u + 2 < 8 else [])
        fl = (vo(u+1) if u + 1 < 8 else [])
        if u in (1, 3): fl = cvt((u+3)//2) + fl
        if u == 7: fl = exchange_w(ACC, EXA, 1) + add_packed(ACC, HR, 8)
        mix(k, mf, fl)
    stamp(k, 9)
    for x in exchange_w(ACC, EXA, 2) + exchange_w(ACC, EXA, 3): k(x)
    exchange_r(k, ACC, EXA)
    k(f"s_mul_i32 s56, s{sTG}, 28"); k(f"s_lshl_b32 s48, s{sCT}, 2"); k("s_add_u32 s56, s56, s48")
    k(f"s_and_b32 s49, s{sWV}, 1"); k("s_lshl_b32 s48, s49, 1"); k("s_add_u32 s56, s56, s48"); k("s_lshl_b32 s56, s56, 10")
    k(f"s_add_u32 s56, s56, {WS_H}")
    k(f"s_mul_i32 s57, s{sTG}, 14"); k(f"s_lshl_b32 s48, s{sCT}, 1"); k("s_add_u32 s57, s57, s48"); k("s_add_u32 s57, s57, s49")
    k("s_lshl_b32 s57, s57, 8"); k(f"s_add_u32 s57, s57, {WS_ST}")
    k(f"s_lshl_b32 s58, s{sTT}, 5"); k(f"s_lshl_b32 s48, s{sCT}, 2"); k("s_add_u32 s58, s58, s48"); k(f"s_add_u32 s58, s58, s{sWV}")
    k("s_lshl_b32 s58, s58, 2"); k(f"s_add_u32 s58, s58, {FL2}")
    sum_parts(k, ACC)
    for r in range(8): k(f"v_cvt_pk_bf16_f32 v{HR+r}, v{ACC+2*r}, v{ACC+2*r+1}")
    k(f"buffer_store_dwordx4 {v(HR,4)}, v{VL16}, {s(SWS,4)}, s56 offen sc1")
    k(f"buffer_store_dwordx4 {v(HR+4,4)}, v{VL16}, {s(SWS,4)}, s56 offen offset:1024 sc1")
    S1, S2 = 8, 9
    k(f"s_mov_b32 s48, {ONES}")
    k(f"v_mov_b32 v{S1}, 0"); k(f"v_mov_b32 v{S2}, 0")
    for r in range(8):
        k(f"v_dot2c_f32_bf16 v{S1}, s48, v{HR+r}"); k(f"v_dot2c_f32_bf16 v{S2}, v{HR+r}, v{HR+r}")
    k(f"v_mov_b32 v10, v{S1}"); k(f"v_mov_b32 v11, v{S2}")
    k(f"v_permlane32_swap_b32 v{S1}, v10"); k(f"v_permlane32_swap_b32 v{S2}, v11")
    k(f"v_add_f32 v{S1}, v{S1}, v10"); k(f"v_add_f32 v{S2}, v{S2}, v11")
    k(f"v_lshlrev_b32 v{T1}, 3, v{LANE}")
    k("s_mov_b32 exec_hi, 0")
    k(f"buffer_store_dwordx2 {v(S1,2)}, v{T1}, {s(SWS,4)}, s57 offen sc1")
    k("s_mov_b32 exec_hi, -1")
    k("s_waitcnt vmcnt(0)")
    flag_store(k, 58)
    stamp(k, 10)

def phase3(k):
    AD, SEL, CS, STT, MN, R2 = 24, 28, 44, 48, 8, 10
    WF, CQ, ACC = 80, 112, 128
    gu_issue(k, OPT["gu"][2])
    k(f"v_bfe_u32 v{T1}, v{LANE}, 4, 1"); k(f"v_mul_u32_u24 v{T0}, 57344, v{T1}")
    k(f"v_lshrrev_b32 v{T2}, 5, v{LANE}"); k(f"v_lshl_add_u32 v{T0}, v{T2}, 10, v{T0}")
    k(f"v_bfe_u32 v{T2}, v{LANE}, 2, 2"); k(f"v_lshl_add_u32 v{T0}, v{T2}, 7, v{T0}")
    k(f"v_and_b32 v{T2}, 1, v{LANE}"); k(f"v_lshl_add_u32 v{T0}, v{T2}, 4, v{T0}")
    k(f"v_bfe_u32 v{T2}, v{LANE}, 1, 1"); k(f"v_lshl_add_u32 v{T0}, v{T2}, 3, v{T0}")
    k(f"v_bfe_u32 v{T2}, v{LANE}, 3, 2"); k(f"v_lshl_add_u32 v{T0}, v{T2}, 5, v{T0}")
    for b in range(4):
        k(f"v_xor_b32 v{AD+b}, {b*32}, v{T0}"); k(f"v_add_u32 v{STT+b}, s52, v{AD+b}")
    k(f"v_and_b32 v{T1}, 15, v{LANE}"); k(f"v_bfe_u32 v{T2}, v{LANE}, 4, 1"); k(f"v_sub_u32 v{T1}, v{T1}, v{T2}")
    k(f"v_mov_b32 v{T2}, {ONES}"); k(f"v_mov_b32 v{T3}, 0")
    for b in range(4):
        k(f"v_cmp_eq_u32 vcc, {2*b}, v{T1}")
        for i in range(4): k(f"v_cndmask_b32 v{SEL+4*b+i}, v{T3}, v{T2}")
    k(f"s_lshl_b32 s53, s{sTB3}, 2"); k(f"s_add_u32 s53, s53, s{sWV}")
    k(f"s_mul_i32 s54, s53, {2*28672}"); k(f"s_add_u32 s54, s54, {WS_H}"); k("s_add_u32 s55, s54, 28672")
    k(f"s_mul_i32 s56, s53, {2*3584}"); k(f"s_add_u32 s56, s56, {WS_ST}"); k("s_add_u32 s57, s56, 3584")
    k(f"s_mul_i32 s58, s53, {2*112}"); k(f"s_lshl_b32 s48, s{sPN}, 2"); k("s_add_u32 s58, s58, s48"); k("s_lshl_b32 s58, s58, 10")
    k(f"s_add_u32 s58, s58, {WS_HH}"); k(f"s_add_u32 s59, s58, {112*1024}")
    k(f"s_lshl_b32 s51, s53, 7"); k(f"s_add_u32 s50, s51, {FL2}")
    k(f"s_lshl_b32 s48, s{sPN}, 2"); k("s_add_u32 s51, s51, s48"); k(f"s_add_u32 s51, s51, {FL3}")
    k("s_waitcnt vmcnt(0)")
    def cr(c): return [f"ds_read_b64_tr_b16 {v(ACC+16*c+4*b+2*hh,2)}, v{STT+b} offset:{c*8192+hh*512}" for b in range(4) for hh in range(2)]
    for x in cr(0): k(x)
    for c in range(7):
        for x in (cr(c+1) if c < 6 else []): k(x)
        for b in range(4): k(f"{MF16} {v(CS,4)}, {v(SEL+4*b,4)}, {v(ACC+16*c+4*b,4)}, {'0' if (c == 0 and b == 0) else v(CS,4)}")
    k(f"s_mul_i32 s48, s{sWV}, 12288"); k(f"s_add_u32 s48, s48, {L_EX}")
    k(f"v_lshrrev_b32 v{T2}, 4, v{LANE}"); k(f"v_lshlrev_b32 v{T2}, 8, v{T2}")
    k(f"v_and_b32 v{T3}, 15, v{LANE}"); k(f"v_lshl_add_u32 v{T2}, v{T3}, 2, v{T2}"); k(f"v_add_u32 v{T2}, s48, v{T2}")
    for r in range(4): k(f"ds_write_b32 v{T2}, v{CS+r} offset:{r*64}")
    k(f"v_lshlrev_b32 v{T3}, 3, v{LANE}"); k(f"v_add_u32 v{T2}, {L_EX}, v{T3}"); k(f"v_add_u32 v{T3}, s48, v{T3}")
    k("s_waitcnt lgkmcnt(0)"); k("s_barrier")
    for p in range(4): k(f"ds_read_b64 {v(SEL+2*p,2)}, v{T2} offset:{p*12288}")
    for p in range(1, 4): k(f"v_pk_add_f32 {v(SEL,2)}, {v(SEL,2)}, {v(SEL+2*p,2)}")
    k(f"ds_write_b64 v{T3}, {v(SEL,2)} offset:1024")
    ACQ = 15
    k(f"v_lshrrev_b32 v{T3}, 5, v{LANE}"); k(f"v_lshl_add_u32 v{ACQ}, v{T3}, 4, s48")
    VST = T4
    k(f"v_and_b32 v{T1}, 31, v{LANE}"); k(f"v_lshlrev_b32 v{VST}, 3, v{T1}")
    k(f"v_mul_u32_u24 v{T3}, 1792, v{T3}"); k(f"v_add_u32 v{VST}, v{VST}, v{T3}")
    k(f"v_lshlrev_b32 v{T1}, 2, v{T1}")
    kc = OPT["kc"]
    steps = [(ks, b) for ks in range(4*kc) for b in range(4)] + [(ks, b) for b in range(4) for ks in range(4*kc, 28)]
    RD = 8; AH = 6
    def rw(n):
        ks, b = steps[n]
        return [f"ds_read_b64_tr_b16 {v(WF+4*(n%RD)+2*hh,2)}, v{AD+b} offset:{ks*2048+hh*512}" for hh in range(2)]
    for n in range(AH):
        for x in rw(n): k(x)
    stamp(k, 11)
    poll(k, "p3", T2, T1, "s50", 1, "0x0fffffff")
    stamp(k, 12)
    if STAMP: k("s_waitcnt lgkmcnt(0)")
    loads = []
    for ks in range(28):
        for t in range(2):
            loads.append(f"buffer_load_dwordx4 {a(8*ks+4*t,4)}, v{VL16}, {s(SWS,4)}, s{54+t} offen offset:{(ks&3)*1024} sc1")
        if (ks & 3) == 3: loads[-1] += "\ns_add_u32 s54, s54, 4096\ns_add_u32 s55, s55, 4096"
    stl = [f"buffer_load_dwordx2 {v(STT+14*t+2*p,2)}, v{VST}, {s(SWS,4)}, s{56+t} offen offset:{p*256} sc1" for t in range(2) for p in range(7)]
    loads = loads + stl
    NI = 12
    for x in loads[:NI]: k(x)
    loads = loads[NI:]
    def stats():
        o = []
        for t in range(2):
            sb = STT + 14*t
            for p in range(1, 7): o += [f"v_add_f32 v{sb}, v{sb}, v{sb+2*p}", f"v_add_f32 v{sb+1}, v{sb+1}, v{sb+2*p+1}"]
            o += [f"v_mov_b32 v{sb+2}, v{sb}", f"v_mov_b32 v{sb+3}, v{sb+1}",
                  f"v_permlane32_swap_b32 v{sb}, v{sb+2}", f"v_permlane32_swap_b32 v{sb+1}, v{sb+3}",
                  f"v_add_f32 v{sb}, v{sb}, v{sb+2}", f"v_add_f32 v{sb+1}, v{sb+1}, v{sb+3}",
                  f"v_mul_f32 v{MN+t}, 0xbb124925, v{sb}", f"v_mul_f32 v{sb+1}, {INVD}, v{sb+1}",
                  f"v_fma_f32 v{sb+1}, -v{MN+t}, v{MN+t}, v{sb+1}", f"v_max_f32 v{sb+1}, 0, v{sb+1}",
                  f"v_add_f32 v{sb+1}, {EPS5}, v{sb+1}", f"v_rcp_f32 v{R2+2*t}, v{sb+1}"]
        return o
    def cqr(b): return [f"ds_read_b128 {v(CQ+4*q,4)}, v{ACQ} offset:{1024+b*128+q*32}" for q in range(4)]
    def corr(b): return [f"v_fmac_f32 v{ACC+64*t+16*b+r}, v{MN+t}, v{CQ+r}" for t in range(2) for r in range(16)]
    def fin(b, pk):
        o = []
        for t in range(2):
            ac = ACC + 64*t + 16*b
            if pk:
                for r in range(0, 8, 2): o.append(f"v_pk_mul_f32 {v(ac+r,2)}, {v(ac+r,2)}, {v(ac+8+r,2)}")
                for r in range(0, 8, 2): o.append(f"v_pk_mul_f32 {v(ac+r,2)}, {v(ac+r,2)}, {v(R2+2*t,2)} op_sel_hi:[1,0]")
            else:
                for r in range(8): o.append(f"v_mul_f32 v{ac+r}, v{ac+r}, v{ac+8+r}")
                for r in range(8): o.append(f"v_mul_f32 v{ac+r}, v{ac+r}, v{R2+2*t}")
            for r in range(4): o.append(f"v_cvt_pk_bf16_f32 v{ac+8+r}, v{ac+2*r}, v{ac+2*r+1}")
            o.append(f"buffer_store_dwordx4 {v(ac+8,4)}, v{VL16}, {s(SWS,4)}, s{58+t} offen offset:{b*1024} sc1")
        return o
    nk = 16*kc; per = 28 - 4*kc
    extra = {}
    extra[nk] = cqr(3) + stats() + corr(3)
    for b in range(1, 4): extra[nk + b*per] = cqr(b-1) + ["", "", "", ""] + corr(b-1) + fin(b-1, False)
    cur = []
    seen = set()
    for n, (ks, b) in enumerate(steps):
        if n in extra:
            assert not cur, "filler overflow"
            cur = list(extra[n])
        rd = rw(n+AH) if n + AH < len(steps) else []
        for t in range(2):
            acc = v(ACC+64*t+16*b,16)
            k(f"{MF32} {acc}, {v(WF+4*(n%RD),4)}, {a(8*ks+4*t,4)}, {'0' if (b,t) not in seen else acc}")
            seen.add((b, t))
            if rd: k(rd.pop(0))
            if loads and (t == 0 or n % 2 == 0): k(loads.pop(0))
            for _ in range(4 if not loads else 0):
                if cur:
                    x = cur.pop(0)
                    if x: k(x)
        if n == nk - 1: stamp(k, 13)
    assert not cur and not loads
    stamp(k, 14)
    for x in fin(3, True): k(x)
    k("s_barrier")
    k("s_waitcnt vmcnt(0)")
    flag_store(k, 51)
    stamp(k, 15)

def phase4(k):
    VWA, A0, A1, EXA, ACC, HH = 12, 8, 9, 88, 24, 96
    NS = 40
    k(f"v_lshrrev_b32 v{T1}, 3, v{LANE}"); k(f"v_mul_u32_u24 v{VWA}, 896, v{T1}")
    k(f"v_bfe_u32 v{T1}, v{LANE}, 4, 1"); k(f"v_lshlrev_b32 v{T1}, 2, v{T1}")
    k(f"v_and_b32 v{T2}, 7, v{LANE}"); k(f"v_xor_b32 v{T1}, v{T1}, v{T2}")
    k(f"v_lshl_add_u32 v{VWA}, v{T1}, 4, v{VWA}")
    k(f"s_mul_i32 s50, s{sWV}, {448*896}"); k(f"s_lshl_b32 s48, s{sCT}, 7"); k("s_add_u32 s50, s50, s48")
    k(f"s_mul_i32 s51, s{sWV}, 28672")
    def dma(i0, i1):
        for i in range(i0, i1):
            k(f"s_add_u32 m0, s51, {(i%28)*1024}")
            k(f"buffer_load_dwordx4 v{VWA}, {s(SDN,4)}, s50 offen lds")
            k(f"s_add_u32 s50, s50, {8*896}")
    dma(0, 28)
    k(f"s_and_b32 s49, s{sWV}, 1")
    k(f"v_bfe_u32 v{T1}, v{LANE}, 4, 1"); k(f"v_lshlrev_b32 v{T1}, 5, v{T1}")
    k(f"v_and_b32 v{T2}, 1, v{LANE}"); k(f"v_lshl_add_u32 v{T1}, v{T2}, 4, v{T1}")
    k(f"v_bfe_u32 v{T2}, v{LANE}, 1, 1"); k(f"v_lshl_add_u32 v{T1}, v{T2}, 3, v{T1}")
    k(f"v_add_u32 v{T1}, s51, v{T1}")
    k(f"v_bfe_u32 v{T2}, v{LANE}, 2, 2"); k(f"v_lshrrev_b32 v{T3}, 5, v{LANE}")
    k(f"v_lshl_add_u32 v{A0}, v{T3}, 3, v{T2}"); k(f"v_lshl_add_u32 v{A0}, v{A0}, 7, v{T1}")
    k(f"v_bfe_u32 v{T2}, v{LANE}, 3, 1"); k(f"v_xor_b32 v{T2}, s49, v{T2}")
    k(f"v_lshl_add_u32 v{A0}, v{T2}, 6, v{A0}"); k(f"v_xor_b32 v{A1}, 64, v{A0}")
    exchange(k, ACC, EXA)
    k(f"s_mul_i32 s54, s{sWV}, 28672"); k(f"s_add_u32 s54, s54, {WS_HH}")
    k(f"s_mul_i32 s52, s{sTG}, {112*1024}"); k("s_add_u32 s52, s52, s54")
    k(f"s_xor_b32 s53, s{sTG}, 1"); k(f"s_mul_i32 s53, s53, {112*1024}"); k("s_add_u32 s53, s53, s54")
    k(f"s_lshl_b32 s55, s{sTT}, 7"); k(f"s_mul_i32 s48, s{sWV}, 28"); k("s_add_u32 s55, s55, s48"); k(f"s_add_u32 s55, s55, {FL3}")
    def rd(ks):
        return [f"ds_read_b64_tr_b16 {a(8*ks+4*cg+2*hh,2)}, v{A1 if cg else A0} offset:{(ks%14)*2048+hh*512}" for cg in range(2) for hh in range(2)]
    for g in range(7):
        k(f"s_waitcnt vmcnt(24)")
        for x in rd(2*g) + rd(2*g+1): k(x)
        k("s_waitcnt lgkmcnt(0)")
        dma(28+4*g, 32+4*g)
    k(f"v_and_b32 v{T1}, 7, v{LANE}"); k(f"v_lshlrev_b32 v{T1}, 2, v{T1}")
    stamp(k, 16)
    poll(k, "p4", T2, T1, "s55", 1, "0x7f")
    stamp(k, 17)
    if STAMP: k("s_waitcnt lgkmcnt(0)")
    loads = []
    for ks in range(28):
        for t in range(2):
            f = 2*ks + t
            loads.append(f"buffer_load_dwordx4 {v(HH+4*(f%NS),4)}, v{VL16}, {s(SWS,4)}, s{52+t} offen offset:{(ks&3)*1024} sc1")
        if (ks & 3) == 3: loads[-1] += "\ns_add_u32 s52, s52, 4096\ns_add_u32 s53, s53, 4096"
    NI = 16
    rds = [x for ks in range(14, 28) for x in rd(ks)]
    for i, x in enumerate(loads[:NI]):
        k(x)
    loads = loads[NI:]
    for ks in range(28):
        order = [(1, 1), (1, 0), (0, 1), (0, 0)] if ks == 27 else [(0, 0), (0, 1), (1, 0), (1, 1)]
        for j, (t, cg) in enumerate(order):
            acc = v(ACC+16*(2*t+cg),16)
            k(f"{MF32} {acc}, {a(8*ks+4*cg,4)}, {v(HH+4*((2*ks+t)%NS),4)}, {'0' if ks == 0 else acc}")
            if loads and (j & 1): k(loads.pop(0))
            for _ in range(2):
                if rds: k(rds.pop(0))
    stamp(k, 18)
    for i in (3, 2, 1):
        for x in exchange_w(ACC, EXA, i): k(x)
    for x in add_packed(ACC, HR, 8): k(x)
    exchange_r(k, ACC, EXA)
    sum_parts(k, ACC)
    for r in range(8): k(f"v_cvt_pk_bf16_f32 v{HR+r}, v{ACC+2*r}, v{ACC+2*r+1}")
    k(f"buffer_store_dwordx4 {v(HR,4)}, v14, {s(SO,4)}, s101 offen {OPT.get('om','')}")
    k(f"buffer_store_dwordx4 {v(HR+4,4)}, v14, {s(SO,4)}, s101 offen offset:32 {OPT.get('om','')}")

def build(path, aslist=False):
    hdr = open("cdna_kernels/" + NAME + ".s.ref").read().split("; Override")[0]
    k = K()
    setup(k)
    tail = phase1(k)
    if OPT["stop"] > 1: phase2(k)
    if OPT["stop"] > 2: phase3(k)
    if OPT["stop"] > 3: phase4(k)
    k("L_fin:")
    stamp_out(k, 19)
    k("L_end:")
    k("s_endpgm")
    tail(k)
    lines = k.finalize()
    out = hdr
    kn = NAME + "_kernel"
    tiny = OPT.get("tiny")
    tl = "; @launch kernel=tiny_kernel grid=(1,1,1) block=(64,1,1) lds=0\n"
    if tiny in (1, 2): out += tl
    if aslist: out += f"; @launch kernel={kn} grid=(256,1,1) block=(256,1,1) lds=163840\n" + (tl if tiny == 3 else "")
    else: out += f"; @launch grid=(256,1,1) block=(256,1,1) lds=163840\n"
    out += '.amdgcn_target "amdgcn-amd-amdhsa--gfx950"\n'
    out += kernel(kn, lines, 256, 256)
    if tiny:
        k2 = K()
        k2("s_memrealtime s[60:61]")
        k2("s_cmp_ge_u32 s2, 1"); k2("s_cbranch_scc1 L_tend")
        k2(f"s_load_dwordx2 {s(SWS,2)}, s[0:1], 72")
        k2(f"s_mov_b32 {s(SWS+2)}, 268435456"); k2(f"s_mov_b32 {s(SWS+3)}, 0x00020000")
        k2("s_mov_b32 s58, 0x3000000")
        k2("s_waitcnt lgkmcnt(0)")
        k2("v_mov_b32 v1, s60")
        k2(f"buffer_store_dword v1, off, {s(SWS,4)}, s58 sc1")
        k2("L_tend:")
        out += kernel("tiny_kernel", k2.finalize(), 8, 0)
    open(path, "w").write(out)

if __name__ == "__main__":
    args = sys.argv[2:]
    for x in args:
        if x == "stamp": STAMP = True
        elif "=" in x:
            n, val = x.split("="); OPT[n] = eval(val)
    build(sys.argv[1], aslist=("list" in args))
```

```python
import sys
sys.path.insert(0, "dev")
from asmlib import *

NAME = "sequential_preLN__linear_attn_block__glu_gated_bilinear__prompt"
WS_KV, WS_FL, WS_PQ, WS_H, WS_ST, WS_HH = 0x0, 0x10000, 0x100000, 0x400000, 0x600000, 0x800000
FL1, FL2, FL3 = WS_FL, WS_FL + 0x1000, WS_FL + 0x2000
ONES = 0x3f803f80
EPS6 = "0x358637bd"; EPS5 = "0x3727c5ac"; INVD = "0x3b124925"; LOG2E = "0x3fb8aa3b"
MF32 = "v_mfma_f32_32x32x16_bf16"
MF16 = "v_mfma_f32_16x16x32_bf16"
SX, SW1, SWS, SD, SWO, SG, SU, SDN, SO = 4, 8, 12, 16, 20, 24, 28, 32, 36
sWV, sTB, sHD, sTT, sCT, sTB3, sPN, sJ = 40, 41, 42, 43, 44, 45, 46, 47
LANE, VL16 = 1, 2
T0, T1, T2, T3, T4 = 3, 4, 5, 6, 7
POLLMAX = 0x40000
OPT = dict(gu=(3, 2, 2), kc=3, stop=9)

STAMP = False
WS_TS = 0x2000000
def stamp(k, i):
    if STAMP: k(f"{'s_memtime' if OPT.get('cyc') else 's_memrealtime'} {s(60+2*i,2)}")
def stamp_out(k, n):
    if not STAMP: return
    k("s_waitcnt vmcnt(0) lgkmcnt(0)")
    stamp(k, n)
    k("s_waitcnt lgkmcnt(0)")
    if OPT.get("pad") is not None:
        i = OPT["pad"]
        k(f"s_cmp_ge_u32 s{sJ}, 28"); k("s_cbranch_scc1 L_end")
        if OPT.get("tiny") == 2:
            k(f"s_mov_b32 s58, 0x3000000")
            k(f"buffer_load_dword v1, off, {s(SWS,4)}, s58 sc1")
            k("s_waitcnt vmcnt(0)")
            k("v_readfirstlane_b32 s58, v1"); k("s_add_u32 s58, s58, 5000")
            k("s_sub_u32 s59, s58, s60"); k("s_cmp_gt_u32 s59, 5000"); k("s_cbranch_scc1 L_end")
        else: k(f"s_add_u32 s58, s{60+2*i}, 5000")
        k("L_padw:")
        k("s_memrealtime s[56:57]"); k("s_waitcnt lgkmcnt(0)")
        k("s_sub_u32 s59, s56, s58"); k("s_cmp_lt_i32 s59, 0"); k("s_cbranch_scc1 L_padw")
        return
    k("s_mov_b64 exec, 1")
    if OPT.get("dbg") is not None:
        k(f"s_lshl_b32 s58, s2, 2"); k(f"s_add_u32 s58, s58, s{sWV}")
        k(f"s_cmp_lg_u32 s58, {OPT['dbg']}"); k("s_cbranch_scc1 L_end")
        for j, i in enumerate([1,2,3,4,6,7,8,9,10,12,14,15,16,17,18,19]):
            k(f"s_sub_u32 s58, s{60+2*i}, s60"); k(f"v_mov_b32 v1, s58")
            k(f"buffer_store_dword v1, off, {s(SD,4)}, 0 offset:{4*j}")
        return
    k(f"s_lshl_b32 s58, s2, 2"); k(f"s_add_u32 s58, s58, s{sWV}"); k("s_lshl_b32 s58, s58, 7")
    k(f"s_add_u32 s58, s58, {WS_TS}")
    for i in range(n+1):
        k(f"v_mov_b32 v1, s{60+2*i}")
        k(f"buffer_store_dword v1, off, {s(SWS,4)}, s58 offset:{4*i}")

def mix(k, mf, fill, per=None, lead=0):
    fill = list(fill); n = len(mf)
    for _ in range(lead):
        if fill: k(fill.pop(0))
    for i, m in enumerate(mf):
        k(m)
        cnt = per if per is not None else -(-len(fill) // (n - i))
        for _ in range(cnt):
            if fill: k(fill.pop(0))
    for f in fill: k(f)

def poll(k, tag, vdst, vaddr, soff, cmp_val, mask_lo, first=True):
    k(f"s_mov_b32 s48, {POLLMAX}")
    k(f"L_poll_{tag}:")
    k(f"buffer_load_dword v{vdst}, v{vaddr}, {s(SWS,4)}, {soff} offen sc1")
    k("s_sub_u32 s48, s48, 1")
    k("s_waitcnt vmcnt(0)")
    k(f"v_cmp_eq_u32 vcc, {cmp_val}, v{vdst}")
    k(f"s_cbranch_scc1 L_pollx_{tag}")
    k(f"s_andn2_b32 s49, {mask_lo}, vcc_lo")
    k(f"s_cbranch_scc1 L_poll_{tag}")
    k(f"L_pollx_{tag}:")

def setup(k):
    k("s_cmp_ge_u32 s2, 256"); k("s_cbranch_scc1 L_end")
    stamp(k, 0)
    for sr, off in ((SX, 0), (SW1, 8), (SWS, 72), (SD, 64), (SWO, 16), (SG, 32), (SU, 40), (SDN, 48), (SO, 56)):
        k(f"s_load_dwordx2 {s(sr,2)}, s[0:1], {off}")
    k(f"v_and_b32 v{LANE}, 63, v0"); k(f"v_lshrrev_b32 v{T0}, 6, v0")
    k(f"v_readfirstlane_b32 s{sWV}, v{T0}")
    k(f"v_lshlrev_b32 v{VL16}, 4, v{LANE}")
    k("s_and_b32 s3, s2, 7"); k(f"s_lshr_b32 s{sJ}, s2, 3")
    k(f"s_and_b32 s48, s{sJ}, 3"); k(f"s_lshr_b32 s49, s{sJ}, 2")
    k(f"s_and_b32 s{sTB}, s3, 3"); k(f"s_lshl_b32 s{sTB}, s{sTB}, 2"); k(f"s_add_u32 s{sTB}, s{sTB}, s48")
    k(f"s_lshr_b32 s{sHD}, s3, 2"); k(f"s_lshl_b32 s{sHD}, s{sHD}, 3"); k(f"s_add_u32 s{sHD}, s{sHD}, s49")
    k(f"s_lshl_b32 s{sTT}, s3, 2"); k(f"s_add_u32 s{sTT}, s{sTT}, s48")
    k(f"s_min_u32 s{sCT}, s49, 6")
    k(f"s_and_b32 s{sTB3}, s3, 1"); k(f"s_lshl_b32 s{sTB3}, s{sTB3}, 2"); k(f"s_add_u32 s{sTB3}, s{sTB3}, s48")
    k(f"s_lshr_b32 s{sPN}, s3, 1"); k(f"s_mul_i32 s{sPN}, s{sPN}, 7"); k(f"s_add_u32 s{sPN}, s{sPN}, s{sCT}")
    for sr, size in ((SX, 2048*896), (SW1, 448*2688), (SWS, 268435456), (SD, 256), (SWO, 448*896), (SG, 448*3584),
                     (SU, 448*3584), (SDN, 1792*896), (SO, 2048*896)):
        k(f"s_mov_b32 {s(sr+2)}, {size}"); k(f"s_mov_b32 {s(sr+3)}, 0x00020000")

L_W, L_ONE, L_CS, L_ST, L_RING = 1024, 87040, 87552, 91648, 98304
def phase1(k):
    VX, VW, VWO, QINC, FL = 8, 12, 13, 14, 15
    AQ, AK, AXL, AX = 16, 20, 24, 28
    Q, KK, VV, G, CS, SEL, WF, XF = 32, 48, 64, 80, 96, 100, 112, 160
    sG, sXB, sWB, sLW, sRB, sDX, sRX, sIT, sA, sB, sWOo, sWOl = 50, 51, 52, 53, 54, 55, 56, 57, 58, 59, 100, 101
    k(f"v_lshrrev_b32 v{T1}, 2, v{LANE}"); k(f"v_mul_u32_u24 v{VW}, 2688, v{T1}")
    k(f"v_and_b32 v{T1}, 3, v{LANE}"); k(f"v_lshl_add_u32 v{VW}, v{T1}, 4, v{VW}")
    k(f"v_lshrrev_b32 v{T1}, 3, v{LANE}"); k(f"v_mul_u32_u24 v{T2}, 896, v{T1}")
    k(f"v_and_b32 v{T3}, 7, v{LANE}"); k(f"v_xor_b32 v{T3}, v{T3}, v{T1}")
    k(f"v_lshl_add_u32 v{VX}, v{T3}, 4, v{T2}")
    k(f"v_xor_b32 v{VX+1}, 16, v{VX}"); k(f"v_add_u32 v{VX+1}, 6144, v{VX+1}")
    k(f"v_add_u32 v{VX+2}, 12288, v{VX}"); k(f"v_add_u32 v{VX+3}, 12288, v{VX+1}")
    k(f"s_lshl_b32 s{sG}, s48, 1"); k(f"s_add_u32 s{sG}, s{sG}, s49")
    k(f"s_sub_u32 s{sA}, s{sG}, 7"); k(f"s_cselect_b32 s{sG}, s{sG}, s{sA}")
    if OPT.get("rot") == 0: k(f"s_mov_b32 s{sG}, 0")
    if OPT.get("rot") == 1: k(f"s_and_b32 s{sG}, s3, 3")
    if OPT.get("rot") == 2: k(f"s_and_b32 s{sG}, s{sJ}, 1"); k(f"s_mul_i32 s{sG}, s{sG}, 3")
    k(f"s_lshl_b32 s{sXB}, s{sTB}, 2"); k(f"s_add_u32 s{sXB}, s{sXB}, s{sWV}"); k(f"s_mul_i32 s{sXB}, s{sXB}, 28672")
    k(f"s_mul_i32 s{sWB}, s{sWV}, {16*2688}"); k(f"s_mul_i32 s{sA}, s{sHD}, 56"); k(f"s_add_u32 s{sWB}, s{sWB}, s{sA}")
    k(f"s_lshl_b32 s{sLW}, s{sWV}, 10"); k(f"s_add_u32 s{sLW}, s{sLW}, {L_W}")
    k(f"s_lshl_b32 s{sRB}, s{sWV}, 14"); k(f"s_add_u32 s{sRB}, s{sRB}, {L_RING}")
    k(f"s_mov_b32 s{sDX}, 0")
    for i in range(4): k(f"v_mov_b32 v{CS+i}, 0")
    k("s_waitcnt lgkmcnt(0)")
    stamp(k, 1)
    k(f"s_cmp_lg_u32 s{sTB}, 0"); k("s_cbranch_scc1 L_p1_nz")
    k.cond_begin()
    k(f"v_lshlrev_b32 v{T3}, 4, v0"); k(f"s_lshl_b32 s{sA}, s{sHD}, 12")
    k(f"buffer_store_dwordx4 {v(CS,4)}, v{T3}, {s(SWS,4)}, s{sA} offen sc1")
    k(f"v_lshlrev_b32 v{T3}, 2, v0"); k(f"s_lshl_b32 s{sA}, s{sHD}, 10"); k(f"s_add_u32 s{sA}, s{sA}, {WS_FL}")
    k(f"buffer_store_dword v{CS}, v{T3}, {s(SWS,4)}, s{sA} offen sc1")
    k.cond_end()
    k("L_p1_nz:")
    def issue():
        k(f"s_mul_i32 s{sB}, s{sG}, {64*2688}"); k(f"s_add_u32 s{sB}, s{sB}, s{sWB}")
        k(f"s_lshl_b32 s{sA}, s{sG}, 7"); k(f"s_add_u32 s{sA}, s{sA}, s{sXB}")
        for m in range(3):
            k(f"s_add_u32 m0, s{sLW}, {m*4096 - m*896}")
            k(f"buffer_load_dwordx4 v{VW}, {s(SW1,4)}, s{sB} offen offset:{m*896} lds")
        k(f"s_add_u32 m0, s{sRB}, s{sDX}")
        k(f"s_add_u32 s{sG}, s{sG}, 1")
        for r in range(4):
            k(f"buffer_load_dwordx4 v{VX+r}, {s(SX,4)}, s{sA} offen offset:{r*1024} lds")
        k(f"s_cmp_eq_u32 s{sG}, 7"); k(f"s_cselect_b32 s{sG}, 0, s{sG}")
        k(f"s_add_u32 s{sLW}, s{sLW}, 12288")
        k(f"s_add_u32 s{sDX}, s{sDX}, 4096"); k(f"s_and_b32 s{sDX}, s{sDX}, 0x3fff")
    for c in range(3): issue()
    stamp(k, 2)
    k(f"v_mov_b32 v{T1}, {ONES}"); k(f"v_lshlrev_b32 v{T2}, 2, v{LANE}"); k(f"v_add_u32 v{T2}, {L_ONE}, v{T2}")
    k(f"ds_write2st64_b32 v{T2}, v{T1}, v{T1} offset0:0 offset1:1")
    k(f"v_lshrrev_b32 v{T0}, 5, v{LANE}"); k(f"v_lshlrev_b32 v{T0}, 9, v{T0}")
    k(f"v_bfe_u32 v{T2}, v{LANE}, 2, 2"); k(f"v_lshlrev_b32 v{T2}, 6, v{T2}")
    k(f"v_bfe_u32 v{T3}, v{LANE}, 4, 1"); k(f"v_lshl_add_u32 v{T2}, v{T3}, 5, v{T2}")
    k(f"v_and_b32 v{T3}, 3, v{LANE}"); k(f"v_lshl_add_u32 v{T2}, v{T3}, 3, v{T2}")
    k(f"v_add_u32 v{T0}, v{T0}, v{T2}"); k(f"v_add_u32 v{T2}, {L_ONE}, v{T2}")
    k(f"v_and_b32 v{T3}, 19, v{LANE}"); k(f"v_cmp_eq_u32 vcc, 19, v{T3}")
    k(f"v_mov_b32 v{QINC}, 12288"); k(f"v_cndmask_b32 v{QINC}, v{QINC}, v{CS}")
    k(f"v_and_b32 v{T3}, 31, v{LANE}"); k(f"v_lshlrev_b32 v{T4}, 7, v{T3}")
    k(f"v_bfe_u32 v{T3}, v{LANE}, 3, 1"); k(f"v_lshrrev_b32 v{AX}, 5, v{LANE}"); k(f"v_xor_b32 v{T3}, v{T3}, v{AX}")
    k(f"v_and_b32 v{AX}, 7, v{LANE}"); k(f"v_xor_b32 v{T3}, v{T3}, v{AX}")
    k(f"v_lshl_add_u32 v{T4}, v{T3}, 4, v{T4}")
    for i in range(4):
        k(f"s_xor_b32 s{sA}, s{sWV}, {i}"); k(f"s_lshl_b32 s{sB}, s{sA}, 5"); k(f"s_lshl_b32 s{sA}, s{sA}, 10")
        k(f"s_add_u32 s{sA}, s{sA}, {L_W}")
        k(f"v_add_u32 v{AK+i}, s{sA}, v{T0}"); k(f"v_cndmask_b32 v{AQ+i}, v{AK+i}, v{T2}")
        k(f"v_xor_b32 v{AXL+i}, s{sB}, v{T4}"); k(f"v_add_u32 v{AX+i}, s{sRB}, v{AXL+i}")
    k(f"v_and_b32 v{T2}, 15, v{LANE}"); k(f"v_bfe_u32 v{T3}, v{LANE}, 4, 1"); k(f"v_sub_u32 v{T2}, v{T2}, v{T3}")
    for m in range(3):
        k(f"v_cmp_eq_u32 vcc, {2*m}, v{T2}")
        for i in range(4): k(f"v_cndmask_b32 v{SEL+4*m+i}, v{CS}, v{T1}")
    for i in range(64): k(f"v_mov_b32 v{Q+i}, 0")
    k(f"v_lshrrev_b32 v{T1}, 3, v{LANE}"); k(f"v_mul_u32_u24 v{VWO}, 896, v{T1}")
    k(f"v_bfe_u32 v{T1}, v{LANE}, 4, 1"); k(f"v_lshlrev_b32 v{T1}, 2, v{T1}")
    k(f"v_and_b32 v{T2}, 7, v{LANE}"); k(f"v_xor_b32 v{T1}, v{T1}, v{T2}")
    k(f"v_lshl_add_u32 v{VWO}, v{T1}, 4, v{VWO}")
    k(f"s_mul_i32 s{sWOo}, s{sWV}, {112*896}"); k(f"s_lshl_b32 s{sA}, s{sCT}, 7"); k(f"s_add_u32 s{sWOo}, s{sWOo}, s{sA}")
    k(f"s_mul_i32 s{sWOl}, s{sWV}, 14336")
    k(f"s_mov_b32 s{sRX}, 0"); k(f"s_mov_b32 s{sIT}, 0")
    k("s_waitcnt vmcnt(14) lgkmcnt(0)"); k("s_barrier")
    stamp(k, 3)
    k(f"s_or_b32 s{sA}, s{sTB}, s{sWV}"); k("s_cbranch_scc1 L_p1_nf")
    k.cond_begin()
    k("s_mov_b64 exec, 1"); k(f"s_lshl_b32 s{sA}, s{sHD}, 2")
    k(f"buffer_store_dword v{QINC}, off, {s(SD,4)}, s{sA} sc1")
    k("s_mov_b64 exec, -1")
    k.cond_end()
    k("L_p1_nf:")
    if STAMP: k("s_waitcnt lgkmcnt(0)")
    def rdw(i, m):
        ar = (AQ if m == 0 else AK) + i
        return [f"ds_read_b64_tr_b16 {v(WF+12*i+4*m+2*hh,2)}, v{ar} offset:{m*4096+hh*256}" for hh in range(2)]
    def rdx(i): return [f"ds_read_b128 {v(XF+4*i,4)}, v{AX+i}"]
    def adv(i): return [f"v_add_u32 v{AQ+i}, v{QINC}, v{AQ+i}", f"v_add_u32 v{AK+i}, 12288, v{AK+i}", f"v_add_u32 v{AX+i}, s{sRX+0}, v{AXL+i}"]
    def nextrx():
        k(f"s_add_u32 s{sRX}, s{sRX}, 4096"); k(f"s_and_b32 s{sRX}, s{sRX}, 0x3fff"); k(f"s_or_b32 s{sRX}, s{sRX}, s{sRB}")
    mK = lambda i: f"{MF32} {v(KK,16)}, {v(XF+4*i,4)}, {v(WF+12*i+4,4)}, {v(KK,16)}"
    mV = lambda i: f"{MF32} {v(VV,16)}, {v(XF+4*i,4)}, {v(WF+12*i+8,4)}, {v(VV,16)}"
    mQ = lambda i: f"{MF32} {v(Q,16)}, {v(WF+12*i,4)}, {v(XF+4*i,4)}, {v(Q,16)}"
    mG = lambda i: f"{MF32} {v(G,16)}, {v(XF+4*i,4)}, {v(XF+4*i,4)}, {v(G,16)}"
    mC = lambda m: f"{MF16} {v(CS,4)}, {v(SEL+4*m,4)}, {v(WF+4*m,4)}, {v(CS,4)}"
    nextrx()
    for i in range(4):
        for x in rdw(i, 1) + rdw(i, 2) + rdw(i, 0) + rdx(i) + adv(i): k(x)
    k("L_p1_loop:")
    k("s_waitcnt vmcnt(7)"); k("s_barrier")
    k(f"s_cmp_ge_u32 s{sIT}, 4"); k("s_cbranch_scc1 L_p1_wo")
    k.cond_begin()
    issue()
    k.cond_end()
    k("L_p1_body:")
    nextrx()
    k(f"s_add_u32 s{sIT}, s{sIT}, 1")
    for m in range(3): k(mC(m))
    for i in range(4):
        k(mK(i)); [k(x) for x in rdw(i, 1)]
        k(mV(i)); [k(x) for x in rdw(i, 2)]
        k(mQ(i)); [k(x) for x in rdw(i, 0)]
        k(mG(i)); [k(x) for x in rdx(i) + adv(i)]
    k(f"s_cmp_lt_u32 s{sIT}, 6"); k("s_cbranch_scc1 L_p1_loop")
    stamp(k, 4)
    CK, CV, CQL, MEAN, RSTD, SXX = 176, 180, 184, 188, 190, 192
    CQ, MR, RR, TM = 112, 128, 144, 160
    for m in range(3): k(mC(m))
    k(mG(0)); k(f"v_lshrrev_b32 v{T1}, 4, v{LANE}"); k(f"v_lshlrev_b32 v{T1}, 6, v{T1}"); k(f"v_and_b32 v{T2}, 15, v{LANE}")
    k(mQ(0)); k(f"v_add_u32 v{T1}, v{T1}, v{T2}"); k(f"s_lshl_b32 s{sA}, s{sWV}, 2"); k(f"s_add_u32 s{sA}, s{sA}, {L_CS}")
    k(f"v_lshl_add_u32 v{T1}, v{T1}, 4, s{sA}")
    k(mG(1))
    for r in range(4): k(f"ds_write_b32 v{T1}, v{CS+r} offset:{r*256}")
    k(mQ(1))
    k(f"v_and_b32 v{T2}, 31, v{LANE}"); k(f"v_lshlrev_b32 v{T3}, 4, v{T2}"); k(f"v_add_u32 v{T3}, {L_CS}, v{T3}")
    k(f"s_lshl_b32 s{sB}, s{sWV}, 9"); k(f"s_add_u32 s{sB}, s{sB}, {L_ST}")
    k(mG(2)); k(mQ(2))
    k("s_waitcnt lgkmcnt(0)"); k("s_barrier")
    k(f"ds_read_b128 {v(CQL,4)}, v{T3}"); k(f"ds_read_b128 {v(CK,4)}, v{T3} offset:512"); k(f"ds_read_b128 {v(CV,4)}, v{T3} offset:1024")
    k(mG(3)); k(mQ(3))
    k(f"v_lshl_add_u32 v{T2}, v{T2}, 2, s{sB}")
    k(f"v_lshl_add_u32 v{T4}, v{LANE}, 2, s{sB}")
    k(f"v_lshrrev_b32 v{T3}, 5, v{LANE}"); k(f"v_lshl_add_u32 v{T3}, v{T3}, 4, s{sB}")
    k(mK(0))
    for x in (CQL, CK, CV):
        k(f"v_add_f32 v{x}, v{x}, v{x+1}"); k(f"v_add_f32 v{x+2}, v{x+2}, v{x+3}"); k(f"v_add_f32 v{x}, v{x}, v{x+2}")
        if x == CQL: k(f"ds_write_b32 v{T2}, v{CQL}"); k(mV(0))
    sel = []
    for lvl, (msk, stp) in enumerate(((0xaaaaaaaa, 1), (0xcccccccc, 2), (0xff00ff00, 4), (0xffff0000, 8))):
        sel.append(f"s_mov_b32 vcc_lo, {msk:#x}"); sel.append(f"s_mov_b32 vcc_hi, {msk:#x}")
        for r in range(0, 16, 2*stp): sel.append(f"v_cndmask_b32 v{G+r}, v{G+r}, v{G+r+stp}")
    mix(k, [mK(1), mV(1), mK(2)], sel)
    st = [f"v_mov_b32 v{G+1}, v{G}", f"v_mov_b32 v{MEAN}, v{Q+12}", f"v_mov_b32 v{RSTD}, v{Q+12}",
          "s_mov_b32 vcc_lo, 0xf0f0f0f0", "s_mov_b32 vcc_hi, 0xf0f0f0f0",
          f"v_permlane32_swap_b32 v{G}, v{G+1}", f"v_permlane32_swap_b32 v{RSTD}, v{MEAN}",
          f"v_cndmask_b32 v{SXX}, v{G}, v{G+1}",
          f"v_mul_f32 v{MEAN}, 0xbb124925, v{MEAN}",
          f"v_mul_f32 v{SXX}, {INVD}, v{SXX}",
          f"v_fma_f32 v{RSTD}, -v{MEAN}, v{MEAN}, v{SXX}",
          f"v_max_f32 v{RSTD}, 0, v{RSTD}", f"v_add_f32 v{RSTD}, {EPS5}, v{RSTD}", f"v_rsq_f32 v{RSTD}, v{RSTD}",
          "s_mov_b32 vcc_lo, 0", "s_mov_b32 vcc_hi, -1",
          f"v_cndmask_b32 v{SXX}, v{MEAN}, v{RSTD}",
          f"ds_write_b32 v{T4}, v{SXX} offset:128"]
    mix(k, [mV(2), mK(3), mV(3)], st)
    for q in range(4): k(f"ds_read_b128 {v(MR+4*q,4)}, v{T3} offset:{128+q*32}"); k(f"ds_read_b128 {v(RR+4*q,4)}, v{T3} offset:{256+q*32}")
    for q in range(4): k(f"ds_read_b128 {v(CQ+4*q,4)}, v{T3} offset:{q*32}")
    stamp(k, 5)
    EP, LG = 194, 196
    k(f"v_mov_b32 v{EP}, {EPS6}"); k(f"v_mov_b32 v{LG}, {LOG2E}")
    PK, PV, PQ = 200, 208, 216
    def phi(acc, dst, mean, cs, rstd, bt):
        o = []
        for r in range(0, 16, 2):
            A = v(acc+r,2)
            if bt:
                o.append(f"v_pk_fma_f32 {A}, {v(mean,2)}, {v(cs+r,2)}, {A} op_sel_hi:[0,1,1]")
                o.append(f"v_pk_fma_f32 {A}, {A}, {v(rstd,2)}, {v(EP,2)} op_sel_hi:[1,0,0]")
            else:
                o.append(f"v_pk_fma_f32 {A}, {v(mean+r,2)}, {v(cs,2)}, {A} op_sel_hi:[1,0,1]")
                o.append(f"v_pk_fma_f32 {A}, {A}, {v(rstd+r,2)}, {v(EP,2)} op_sel_hi:[1,1,0]")
        for r in range(0, 16, 2): o.append(f"v_pk_mul_f32 {v(TM+r,2)}, {v(acc+r,2)}, {v(LG,2)} op_sel_hi:[1,0]")
        for r in range(16):
            o.append(f"v_exp_f32_e64 v{TM+r}, v{TM+r} clamp"); o.append(f"v_max_f32 v{acc+r}, v{acc+r}, v{EP}")
        for r in range(0, 16, 2): o.append(f"v_pk_add_f32 {v(acc+r,2)}, {v(acc+r,2)}, {v(TM+r,2)}")
        for r in range(8): o.append(f"v_cvt_pk_bf16_f32 v{dst+r}, v{acc+2*r}, v{acc+2*r+1}")
        return o
    for x in phi(KK, PK, MR, CK, RR, False): k(x)
    for r in range(0, 16, 2): k(f"v_pk_fma_f32 {v(VV+r,2)}, {v(MR+r,2)}, {v(CV,2)}, {v(VV+r,2)} op_sel_hi:[1,0,1]")
    for r in range(0, 16, 2): k(f"v_pk_mul_f32 {v(VV+r,2)}, {v(VV+r,2)}, {v(RR+r,2)}")
    k("s_mov_b32 vcc_lo, 0x30000000"); k("s_mov_b32 vcc_hi, 0x30000000"); k(f"v_mov_b32 v{T0}, {ONES}")
    for r in range(8): k(f"v_cvt_pk_bf16_f32 v{PV+r}, v{VV+2*r}, v{VV+2*r+1}")
    for r in range(8): k(f"v_cndmask_b32 v{PV+r}, v{PV+r}, v{T0}")
    k(f"{MF32} {v(KK,16)}, {v(PK,4)}, {v(PV,4)}, 0")
    k(f"{MF32} {v(KK,16)}, {v(PK+4,4)}, {v(PV+4,4)}, {v(KK,16)}")
    k(f"v_and_b32 v{T1}, 31, v{LANE}")
    k(f"v_subrev_u32 v{T2}, 24, v{T1}"); k(f"v_lshlrev_b32 v{T2}, 2, v{T2}")
    k(f"v_mov_b32 v{T3}, 0x62735410")
    k(f"v_lshrrev_b32 v{T3}, v{T2}, v{T3}"); k(f"v_and_b32 v{T3}, 7, v{T3}"); k(f"v_add_u32 v{T3}, 24, v{T3}")
    k(f"v_cmp_le_u32 vcc, 24, v{T1}")
    k(f"v_cndmask_b32 v{T1}, v{T1}, v{T3}")
    k(f"v_and_b32 v{T2}, 32, v{LANE}"); k(f"v_add_u32 v{T1}, v{T1}, v{T2}")
    k(f"v_lshl_add_u32 v{T1}, v{T1}, 4, s{sRB}")
    qp = phi(Q, PQ, MEAN, CQ, RSTD, True)
    for x in qp[:8]: k(x)
    for q in range(4): k(f"ds_write_b128 v{T1}, {v(KK+4*q,4)} offset:{q*1024}")
    k(f"s_lshl_b32 s{sA}, s{sWV}, 10")
    k(f"v_lshl_add_u32 v{T2}, v{LANE}, 2, s{sA}"); k(f"v_add_u32 v{T3}, {L_RING}, v{T2}")
    for x in qp[8:24]: k(x)
    k("s_waitcnt lgkmcnt(0)"); k("s_barrier")
    for i in range(4):
        k(f"ds_read2st64_b32 {v(VV+4*i,2)}, v{T3} offset0:{i} offset1:{64+i}")
        k(f"ds_read2st64_b32 {v(VV+4*i+2,2)}, v{T3} offset0:{128+i} offset1:{192+i}")
    for x in qp[24:40]: k(x)
    k(f"s_mov_b32 s48, {POLLMAX}")
    k("s_waitcnt vmcnt(7)")
    k("L_p1_poll:")
    k(f"v_cmp_ne_u32 vcc, 0, v{FL}")
    k("s_sub_u32 s48, s48, 1"); k("s_cbranch_scc1 L_p1_go")
    k("s_andn2_b32 s49, 0xffff, vcc_lo"); k("s_cbranch_scc0 L_p1_go")
    k(f"v_lshlrev_b32 v{T0}, 2, v{LANE}")
    k(f"buffer_load_dword v{FL}, v{T0}, {s(SD,4)}, 0 offen sc1")
    k("s_waitcnt vmcnt(0)")
    k("s_branch L_p1_poll")
    k("L_p1_go:")
    k(f"s_lshl_b32 s{sA}, s{sHD}, 12")
    for i in range(4):
        k(f"v_pk_add_f32 {v(VV+4*i,2)}, {v(VV+4*i,2)}, {v(VV+4*i+2,2)}")
        k(f"v_add_f32 v{VV+4*i}, v{VV+4*i}, v{VV+4*i+1}")
    for i in range(4): k(f"buffer_atomic_add_f32 v{VV+4*i}, v{T2}, {s(SWS,4)}, s{sA} offen offset:{i*256} sc1")
    for x in qp[40:]: k(x)
    k("s_mov_b32 exec_lo, 0"); k(f"v_mov_b32 v{PQ+6}, 0"); k(f"v_mov_b32 v{PQ+7}, 0"); k("s_mov_b64 exec, -1")
    k(f"s_lshl_b32 s{sA}, s{sTB}, 2"); k(f"s_add_u32 s{sA}, s{sA}, s{sWV}"); k(f"s_lshl_b32 s{sA}, s{sA}, 4")
    k(f"s_add_u32 s{sA}, s{sA}, s{sHD}"); k(f"s_lshl_b32 s{sA}, s{sA}, 11"); k(f"s_add_u32 s{sA}, s{sA}, {WS_PQ}")
    k(f"buffer_store_dwordx4 {v(PQ,4)}, v{VL16}, {s(SWS,4)}, s{sA} offen sc1")
    k(f"buffer_store_dwordx4 {v(PQ+4,4)}, v{VL16}, {s(SWS,4)}, s{sA} offen offset:1024 sc1")
    stamp(k, 6)
    A0, A1, A2, A3 = 8, 9, 10, 11
    k(f"s_mul_i32 s{sA}, s{sWV}, 14336"); k(f"s_and_b32 s{sB}, s{sWV}, 1")
    k(f"v_bfe_u32 v{T1}, v{LANE}, 4, 1"); k(f"v_lshlrev_b32 v{T1}, 5, v{T1}")
    k(f"v_and_b32 v{T2}, 1, v{LANE}"); k(f"v_lshl_add_u32 v{T1}, v{T2}, 4, v{T1}")
    k(f"v_bfe_u32 v{T2}, v{LANE}, 1, 1"); k(f"v_lshl_add_u32 v{T1}, v{T2}, 3, v{T1}")
    k(f"v_add_u32 v{T1}, s{sA}, v{T1}")
    k(f"v_bfe_u32 v{T2}, v{LANE}, 2, 2"); k(f"v_lshrrev_b32 v{T3}, 5, v{LANE}")
    k(f"v_lshl_add_u32 v{A0}, v{T3}, 2, v{T2}"); k(f"v_lshl_add_u32 v{A0}, v{A0}, 7, v{T1}")
    k(f"v_bfe_u32 v{T2}, v{LANE}, 3, 1"); k(f"v_xor_b32 v{T2}, s{sB}, v{T2}")
    k(f"v_lshl_add_u32 v{A0}, v{T2}, 6, v{A0}"); k(f"v_xor_b32 v{A1}, 64, v{A0}")
    k(f"v_bfe_u32 v{T2}, v{LANE}, 2, 1"); k(f"v_lshl_add_u32 v{A2}, v{T3}, 1, v{T2}")
    k(f"v_lshl_add_u32 v{A2}, v{A2}, 7, v{T1}")
    k(f"v_xor_b32 v{T2}, s{sB}, v{T3}"); k(f"v_lshl_add_u32 v{A2}, v{T2}, 6, v{A2}")
    k(f"v_xor_b32 v{A3}, 64, v{A2}")
    k("s_waitcnt vmcnt(6)")
    for hd in range(4):
        for cg in range(2):
            ar, al = (A0, A2) if cg == 0 else (A1, A3)
            b = hd*3584; wf = 16*hd + 8*cg
            for j in range(3): k(f"ds_read_b64_tr_b16 {a(wf+2*j,2)}, v{ar} offset:{b+1024*j}")
            k(f"ds_read_b64_tr_b16 {a(wf+6,2)}, v{al} offset:{b+3072}")
    k("s_waitcnt vmcnt(0) lgkmcnt(0)"); k("s_barrier")
    k(f"s_cmp_lg_u32 s{sWV}, 0"); k("s_cbranch_scc1 L_p1_nc")
    k.cond_begin()
    k("s_mov_b64 exec, 1"); k(f"v_mov_b32 v{T0}, 1")
    k(f"s_lshl_b32 s{sA}, s{sHD}, 7"); k(f"s_add_u32 s{sA}, s{sA}, {FL1}")
    k(f"buffer_atomic_add v{T0}, off, {s(SWS,4)}, s{sA} sc1")
    k("s_mov_b64 exec, -1")
    k.cond_end()
    k("L_p1_nc:")
    stamp(k, 7)
    k(f"s_cmp_ge_u32 s{sJ}, 28"); k("s_cbranch_scc1 L_fin")
    def tail(k):
        k("L_p1_wo:")
        k(f"v_lshlrev_b32 v{T0}, 2, v{LANE}")
        k(f"buffer_load_dword v{FL}, v{T0}, {s(SD,4)}, 0 offen sc1")
        for i in range(7):
            k(f"s_add_u32 m0, s{sWOl}, {i*1024}")
            k(f"buffer_load_dwordx4 v{VWO}, {s(SWO,4)}, s{sWOo} offen lds")
            k(f"s_add_u32 s{sWOo}, s{sWOo}, {8*896}")
        k(f"s_add_u32 s{sWOl}, s{sWOl}, 7168")
        k("s_branch L_p1_body")
    return tail

VG, VU = 12, 13
def gu_setup(k):
    k(f"v_lshrrev_b32 v{T1}, 3, v{LANE}"); k(f"v_mul_u32_u24 v{VG}, 3584, v{T1}")
    k(f"v_bfe_u32 v{T1}, v{LANE}, 4, 1"); k(f"v_lshlrev_b32 v{T1}, 1, v{T1}")
    k(f"v_and_b32 v{T2}, 7, v{LANE}"); k(f"v_xor_b32 v{T1}, v{T1}, v{T2}")
    k(f"v_xor_b32 v{T2}, 4, v{T1}")
    k(f"v_lshl_add_u32 v{VU}, v{T2}, 4, v{VG}"); k(f"v_lshl_add_u32 v{VG}, v{T1}, 4, v{VG}")
    k(f"s_and_b32 s50, s{sJ}, 3"); k("s_lshl_b32 s50, s50, 1")
    k(f"s_mul_i32 s51, s{sWV}, {16*3584}"); k(f"s_lshl_b32 s52, s{sPN}, 7"); k("s_add_u32 s51, s51, s52")
    k(f"s_lshl_b32 s52, s{sWV}, 11")
def gu_issue(k, n):
    for _ in range(n):
        k(f"s_mul_i32 s53, s50, {64*3584}"); k("s_add_u32 s53, s53, s51"); k(f"s_add_u32 s54, s53, {8*3584}")
        k("s_lshl_b32 s55, s50, 13"); k("s_add_u32 s55, s55, s52")
        for m in range(2):
            for j in range(2):
                k(f"s_add_u32 m0, s55, {m*57344 + j*1024}")
                k(f"buffer_load_dwordx4 v{VU if m else VG}, {s(SU if m else SG,4)}, s{54 if j else 53} offen lds")
        k("s_add_u32 s50, s50, 1"); k("s_cmp_eq_u32 s50, 7"); k("s_cselect_b32 s50, 0, s50")

L_EX = 114688
def exchange(k, ACC, TMP):
    for i in range(1, 4):
        k(f"s_xor_b32 s48, s{sWV}, {i}"); k("s_mul_i32 s48, s48, 12288"); k(f"s_add_u32 s48, s48, {L_EX + (i-1)*4096}")
        k(f"v_add_u32 v{TMP+i}, s48, v{VL16}")
    k(f"s_mul_i32 s48, s{sWV}, 12288"); k(f"s_add_u32 s48, s48, {L_EX}")
    k(f"v_add_u32 v{TMP}, s48, v{VL16}")
def exchange_w(ACC, TMP, i):
    return [f"ds_write_b128 v{TMP+i}, {v(ACC+16*i+4*q,4)} offset:{q*1024}" for q in range(4)]
def exchange_r(k, ACC, TMP):
    k("s_waitcnt lgkmcnt(0)"); k("s_barrier")
    for i in range(1, 4):
        for q in range(4): k(f"ds_read_b128 {v(ACC+16*i+4*q,4)}, v{TMP} offset:{(i-1)*4096+q*1024}")
def add_packed(ACC, RES, TT):
    o = []
    for r in range(8):
        o += [f"v_lshlrev_b32 v{TT}, 16, v{RES+r}", f"v_and_b32 v{TT+1}, 0xffff0000, v{RES+r}",
              f"v_pk_add_f32 {v(ACC+2*r,2)}, {v(ACC+2*r,2)}, {v(TT,2)}"]
    return o
def sum_parts(k, ACC):
    for i in range(1, 4):
        for r in range(0, 16, 2): k(f"v_pk_add_f32 {v(ACC+r,2)}, {v(ACC+r,2)}, {v(ACC+16*i+r,2)}")
def flag_store(k, soff_reg):
    k("s_mov_b64 exec, 1"); k(f"v_mov_b32 v{T0}, 1")
    k(f"buffer_store_dword v{T0}, off, {s(SWS,4)}, s{soff_reg} sc1")
    k("s_mov_b64 exec, -1")

HR = 16
sTG = 100
def phase2(k):
    ACC, KVF, KVB, OD, OP, EXA = 24, 88, 152, 184, 216, 232
    PQ = 64
    gu_setup(k)
    k(f"s_lshr_b32 s48, s{sWV}, 1"); k(f"s_lshl_b32 s{sTG}, s{sTT}, 1"); k(f"s_add_u32 s{sTG}, s{sTG}, s48")
    k(f"v_and_b32 v{T1}, 31, v{LANE}"); k(f"v_mul_u32_u24 v{T1}, 896, v{T1}")
    k(f"v_lshrrev_b32 v{T2}, 5, v{LANE}"); k(f"v_lshl_add_u32 v14, v{T2}, 4, v{T1}")
    k(f"s_mul_i32 s101, s{sTG}, 28672"); k(f"s_lshl_b32 s48, s{sCT}, 7"); k("s_add_u32 s101, s101, s48")
    k(f"s_and_b32 s48, s{sWV}, 1"); k("s_lshl_b32 s48, s48, 6"); k("s_add_u32 s101, s101, s48")
    k(f"buffer_load_dwordx4 {v(HR,4)}, v14, {s(SX,4)}, s101 offen")
    k(f"buffer_load_dwordx4 {v(HR+4,4)}, v14, {s(SX,4)}, s101 offen offset:32")
    gu_issue(k, OPT["gu"][0])
    exchange(k, ACC, EXA)
    k(f"v_mov_b32 v{OP+7}, 0"); k(f"v_mov_b32 v{OP+15}, 0")
    k(f"s_lshl_b32 s56, s{sWV}, 14")
    k(f"s_lshl_b32 s59, s{sWV}, 13"); k(f"s_add_u32 s59, s59, {WS_PQ}")
    k(f"s_lshl_b32 s57, s{sTG}, 15"); k("s_add_u32 s57, s57, s59")
    k(f"s_xor_b32 s58, s{sTG}, 1"); k("s_lshl_b32 s58, s58, 15"); k("s_add_u32 s58, s58, s59")
    k(f"v_and_b32 v{T1}, 3, v{LANE}"); k(f"v_lshlrev_b32 v{T1}, 7, v{T1}")
    k(f"s_lshl_b32 s59, s{sWV}, 9"); k(f"s_add_u32 s59, s59, {FL1}")
    poll(k, "p2", T2, T1, "s59", 16, "15")
    stamp(k, 8)
    for hd in range(4):
        for q in range(4):
            k(f"buffer_load_dwordx4 {v(KVF+16*hd+4*q,4)}, v{VL16}, {s(SWS,4)}, s56 offen offset:{q*1024} sc1")
        k("s_add_u32 s56, s56, 4096")
        for t in range(2):
            for ks in range(2):
                k(f"buffer_load_dwordx4 {a(PQ+16*hd+8*t+4*ks,4)}, v{VL16}, {s(SWS,4)}, s{57+t} offen offset:{(hd&1)*2048+ks*1024} sc1")
        if hd == 1: k("s_add_u32 s57, s57, 4096"); k("s_add_u32 s58, s58, 4096")
    gu_issue(k, OPT["gu"][1])
    def cvt(hd): return [f"v_cvt_pk_bf16_f32 v{KVB+8*hd+r}, v{KVF+16*hd+2*r}, v{KVF+16*hd+2*r+1}" for r in range(8)]
    def mo(u):
        hd, t = u >> 1, u & 1; od = v(OD+16*(u&1),16)
        return [f"{MF32} {od}, {v(KVB+8*hd,4)}, {a(PQ+16*hd+8*t,4)}, 0", f"{MF32} {od}, {v(KVB+8*hd+4,4)}, {a(PQ+16*hd+8*t+4,4)}, {od}"]
    def vo(u):
        od = OD+16*(u&1); op = OP + 8*(u&1)
        o = [f"v_add_f32 v{T1}, {EPS6}, v{od+15}", f"v_rcp_f32 v{T1}, v{T1}"]
        for r in range(7):
            o += [f"v_mul_f32 v{od+2*r}, v{od+2*r}, v{T1}", f"v_mul_f32 v{od+2*r+1}, v{od+2*r+1}, v{T1}"]
        for r in range(7): o.append(f"v_cvt_pk_bf16_f32 v{op+r}, v{od+2*r}, v{od+2*r+1}")
        return o
    def mw(u):
        hd, t = u >> 1, u & 1; op = OP + 8*(u&1); o = []
        for ks in range(2):
            for cg in range(2):
                acc = v(ACC+16*(2*t+cg),16)
                o.append(f"{MF32} {acc}, {a(16*hd+8*cg+4*ks,4)}, {v(op+4*ks,4)}, {'0' if (hd == 0 and ks == 0) else acc}")
        return o
    for x in cvt(0): k(x)
    for x in mo(0) + mo(1): k(x)
    for x in cvt(1): k(x)
    for x in vo(0): k(x)
    for u in range(8):
        mf = mw(u) + (mo(u+2) if u + 2 < 8 else [])
        fl = (vo(u+1) if u + 1 < 8 else [])
        if u in (1, 3): fl = cvt((u+3)//2) + fl
        if u == 7: fl = exchange_w(ACC, EXA, 1) + add_packed(ACC, HR, 8)
        mix(k, mf, fl)
    stamp(k, 9)
    for x in exchange_w(ACC, EXA, 2) + exchange_w(ACC, EXA, 3): k(x)
    exchange_r(k, ACC, EXA)
    k(f"s_mul_i32 s56, s{sTG}, 28"); k(f"s_lshl_b32 s48, s{sCT}, 2"); k("s_add_u32 s56, s56, s48")
    k(f"s_and_b32 s49, s{sWV}, 1"); k("s_lshl_b32 s48, s49, 1"); k("s_add_u32 s56, s56, s48"); k("s_lshl_b32 s56, s56, 10")
    k(f"s_add_u32 s56, s56, {WS_H}")
    k(f"s_mul_i32 s57, s{sTG}, 14"); k(f"s_lshl_b32 s48, s{sCT}, 1"); k("s_add_u32 s57, s57, s48"); k("s_add_u32 s57, s57, s49")
    k("s_lshl_b32 s57, s57, 8"); k(f"s_add_u32 s57, s57, {WS_ST}")
    k(f"s_lshl_b32 s58, s{sTT}, 5"); k(f"s_lshl_b32 s48, s{sCT}, 2"); k("s_add_u32 s58, s58, s48"); k(f"s_add_u32 s58, s58, s{sWV}")
    k("s_lshl_b32 s58, s58, 2"); k(f"s_add_u32 s58, s58, {FL2}")
    sum_parts(k, ACC)
    for r in range(8): k(f"v_cvt_pk_bf16_f32 v{HR+r}, v{ACC+2*r}, v{ACC+2*r+1}")
    k(f"buffer_store_dwordx4 {v(HR,4)}, v{VL16}, {s(SWS,4)}, s56 offen sc1")
    k(f"buffer_store_dwordx4 {v(HR+4,4)}, v{VL16}, {s(SWS,4)}, s56 offen offset:1024 sc1")
    S1, S2 = 8, 9
    k(f"s_mov_b32 s48, {ONES}")
    k(f"v_mov_b32 v{S1}, 0"); k(f"v_mov_b32 v{S2}, 0")
    for r in range(8):
        k(f"v_dot2c_f32_bf16 v{S1}, s48, v{HR+r}"); k(f"v_dot2c_f32_bf16 v{S2}, v{HR+r}, v{HR+r}")
    k(f"v_mov_b32 v10, v{S1}"); k(f"v_mov_b32 v11, v{S2}")
    k(f"v_permlane32_swap_b32 v{S1}, v10"); k(f"v_permlane32_swap_b32 v{S2}, v11")
    k(f"v_add_f32 v{S1}, v{S1}, v10"); k(f"v_add_f32 v{S2}, v{S2}, v11")
    k(f"v_lshlrev_b32 v{T1}, 3, v{LANE}")
    k("s_mov_b32 exec_hi, 0")
    k(f"buffer_store_dwordx2 {v(S1,2)}, v{T1}, {s(SWS,4)}, s57 offen sc1")
    k("s_mov_b32 exec_hi, -1")
    k("s_waitcnt vmcnt(0)")
    flag_store(k, 58)
    stamp(k, 10)

def phase3(k):
    AD, SEL, CS, STT, MN, R2 = 24, 28, 44, 48, 8, 10
    WF, CQ, ACC = 80, 112, 128
    gu_issue(k, OPT["gu"][2])
    k(f"v_bfe_u32 v{T1}, v{LANE}, 4, 1"); k(f"v_mul_u32_u24 v{T0}, 57344, v{T1}")
    k(f"v_lshrrev_b32 v{T2}, 5, v{LANE}"); k(f"v_lshl_add_u32 v{T0}, v{T2}, 10, v{T0}")
    k(f"v_bfe_u32 v{T2}, v{LANE}, 2, 2"); k(f"v_lshl_add_u32 v{T0}, v{T2}, 7, v{T0}")
    k(f"v_and_b32 v{T2}, 1, v{LANE}"); k(f"v_lshl_add_u32 v{T0}, v{T2}, 4, v{T0}")
    k(f"v_bfe_u32 v{T2}, v{LANE}, 1, 1"); k(f"v_lshl_add_u32 v{T0}, v{T2}, 3, v{T0}")
    k(f"v_bfe_u32 v{T2}, v{LANE}, 3, 2"); k(f"v_lshl_add_u32 v{T0}, v{T2}, 5, v{T0}")
    for b in range(4):
        k(f"v_xor_b32 v{AD+b}, {b*32}, v{T0}"); k(f"v_add_u32 v{STT+b}, s52, v{AD+b}")
    k(f"v_and_b32 v{T1}, 15, v{LANE}"); k(f"v_bfe_u32 v{T2}, v{LANE}, 4, 1"); k(f"v_sub_u32 v{T1}, v{T1}, v{T2}")
    k(f"v_mov_b32 v{T2}, {ONES}"); k(f"v_mov_b32 v{T3}, 0")
    for b in range(4):
        k(f"v_cmp_eq_u32 vcc, {2*b}, v{T1}")
        for i in range(4): k(f"v_cndmask_b32 v{SEL+4*b+i}, v{T3}, v{T2}")
    k(f"s_lshl_b32 s53, s{sTB3}, 2"); k(f"s_add_u32 s53, s53, s{sWV}")
    k(f"s_mul_i32 s54, s53, {2*28672}"); k(f"s_add_u32 s54, s54, {WS_H}"); k("s_add_u32 s55, s54, 28672")
    k(f"s_mul_i32 s56, s53, {2*3584}"); k(f"s_add_u32 s56, s56, {WS_ST}"); k("s_add_u32 s57, s56, 3584")
    k(f"s_mul_i32 s58, s53, {2*112}"); k(f"s_lshl_b32 s48, s{sPN}, 2"); k("s_add_u32 s58, s58, s48"); k("s_lshl_b32 s58, s58, 10")
    k(f"s_add_u32 s58, s58, {WS_HH}"); k(f"s_add_u32 s59, s58, {112*1024}")
    k(f"s_lshl_b32 s51, s53, 7"); k(f"s_add_u32 s50, s51, {FL2}")
    k(f"s_lshl_b32 s48, s{sPN}, 2"); k("s_add_u32 s51, s51, s48"); k(f"s_add_u32 s51, s51, {FL3}")
    k("s_waitcnt vmcnt(0)")
    def cr(c): return [f"ds_read_b64_tr_b16 {v(ACC+16*c+4*b+2*hh,2)}, v{STT+b} offset:{c*8192+hh*512}" for b in range(4) for hh in range(2)]
    for x in cr(0): k(x)
    for c in range(7):
        for x in (cr(c+1) if c < 6 else []): k(x)
        for b in range(4): k(f"{MF16} {v(CS,4)}, {v(SEL+4*b,4)}, {v(ACC+16*c+4*b,4)}, {'0' if (c == 0 and b == 0) else v(CS,4)}")
    k(f"s_mul_i32 s48, s{sWV}, 12288"); k(f"s_add_u32 s48, s48, {L_EX}")
    k(f"v_lshrrev_b32 v{T2}, 4, v{LANE}"); k(f"v_lshlrev_b32 v{T2}, 8, v{T2}")
    k(f"v_and_b32 v{T3}, 15, v{LANE}"); k(f"v_lshl_add_u32 v{T2}, v{T3}, 2, v{T2}"); k(f"v_add_u32 v{T2}, s48, v{T2}")
    for r in range(4): k(f"ds_write_b32 v{T2}, v{CS+r} offset:{r*64}")
    k(f"v_lshlrev_b32 v{T3}, 3, v{LANE}"); k(f"v_add_u32 v{T2}, {L_EX}, v{T3}"); k(f"v_add_u32 v{T3}, s48, v{T3}")
    k("s_waitcnt lgkmcnt(0)"); k("s_barrier")
    for p in range(4): k(f"ds_read_b64 {v(SEL+2*p,2)}, v{T2} offset:{p*12288}")
    for p in range(1, 4): k(f"v_pk_add_f32 {v(SEL,2)}, {v(SEL,2)}, {v(SEL+2*p,2)}")
    k(f"ds_write_b64 v{T3}, {v(SEL,2)} offset:1024")
    ACQ = 15
    k(f"v_lshrrev_b32 v{T3}, 5, v{LANE}"); k(f"v_lshl_add_u32 v{ACQ}, v{T3}, 4, s48")
    VST = T4
    k(f"v_and_b32 v{T1}, 31, v{LANE}"); k(f"v_lshlrev_b32 v{VST}, 3, v{T1}")
    k(f"v_mul_u32_u24 v{T3}, 1792, v{T3}"); k(f"v_add_u32 v{VST}, v{VST}, v{T3}")
    k(f"v_lshlrev_b32 v{T1}, 2, v{T1}")
    kc = OPT["kc"]
    steps = [(ks, b) for ks in range(4*kc) for b in range(4)] + [(ks, b) for b in range(4) for ks in range(4*kc, 28)]
    RD = 8; AH = 6
    def rw(n):
        ks, b = steps[n]
        return [f"ds_read_b64_tr_b16 {v(WF+4*(n%RD)+2*hh,2)}, v{AD+b} offset:{ks*2048+hh*512}" for hh in range(2)]
    for n in range(AH):
        for x in rw(n): k(x)
    stamp(k, 11)
    poll(k, "p3", T2, T1, "s50", 1, "0x0fffffff")
    stamp(k, 12)
    if STAMP: k("s_waitcnt lgkmcnt(0)")
    loads = []
    for ks in range(28):
        for t in range(2):
            loads.append(f"buffer_load_dwordx4 {a(8*ks+4*t,4)}, v{VL16}, {s(SWS,4)}, s{54+t} offen offset:{(ks&3)*1024} sc1")
        if (ks & 3) == 3: loads[-1] += "\ns_add_u32 s54, s54, 4096\ns_add_u32 s55, s55, 4096"
    stl = [f"buffer_load_dwordx2 {v(STT+14*t+2*p,2)}, v{VST}, {s(SWS,4)}, s{56+t} offen offset:{p*256} sc1" for t in range(2) for p in range(7)]
    loads = loads + stl
    NI = 12
    for x in loads[:NI]: k(x)
    loads = loads[NI:]
    def stats():
        o = []
        for t in range(2):
            sb = STT + 14*t
            for p in range(1, 7): o += [f"v_add_f32 v{sb}, v{sb}, v{sb+2*p}", f"v_add_f32 v{sb+1}, v{sb+1}, v{sb+2*p+1}"]
            o += [f"v_mov_b32 v{sb+2}, v{sb}", f"v_mov_b32 v{sb+3}, v{sb+1}",
                  f"v_permlane32_swap_b32 v{sb}, v{sb+2}", f"v_permlane32_swap_b32 v{sb+1}, v{sb+3}",
                  f"v_add_f32 v{sb}, v{sb}, v{sb+2}", f"v_add_f32 v{sb+1}, v{sb+1}, v{sb+3}",
                  f"v_mul_f32 v{MN+t}, 0xbb124925, v{sb}", f"v_mul_f32 v{sb+1}, {INVD}, v{sb+1}",
                  f"v_fma_f32 v{sb+1}, -v{MN+t}, v{MN+t}, v{sb+1}", f"v_max_f32 v{sb+1}, 0, v{sb+1}",
                  f"v_add_f32 v{sb+1}, {EPS5}, v{sb+1}", f"v_rcp_f32 v{R2+2*t}, v{sb+1}"]
        return o
    def cqr(b): return [f"ds_read_b128 {v(CQ+4*q,4)}, v{ACQ} offset:{1024+b*128+q*32}" for q in range(4)]
    def corr(b): return [f"v_fmac_f32 v{ACC+64*t+16*b+r}, v{MN+t}, v{CQ+r}" for t in range(2) for r in range(16)]
    def fin(b, pk):
        o = []
        for t in range(2):
            ac = ACC + 64*t + 16*b
            if pk:
                for r in range(0, 8, 2): o.append(f"v_pk_mul_f32 {v(ac+r,2)}, {v(ac+r,2)}, {v(ac+8+r,2)}")
                for r in range(0, 8, 2): o.append(f"v_pk_mul_f32 {v(ac+r,2)}, {v(ac+r,2)}, {v(R2+2*t,2)} op_sel_hi:[1,0]")
            else:
                for r in range(8): o.append(f"v_mul_f32 v{ac+r}, v{ac+r}, v{ac+8+r}")
                for r in range(8): o.append(f"v_mul_f32 v{ac+r}, v{ac+r}, v{R2+2*t}")
            for r in range(4): o.append(f"v_cvt_pk_bf16_f32 v{ac+8+r}, v{ac+2*r}, v{ac+2*r+1}")
            o.append(f"buffer_store_dwordx4 {v(ac+8,4)}, v{VL16}, {s(SWS,4)}, s{58+t} offen offset:{b*1024} sc1")
        return o
    nk = 16*kc; per = 28 - 4*kc
    extra = {}
    extra[nk] = cqr(3) + stats() + corr(3)
    for b in range(1, 4): extra[nk + b*per] = cqr(b-1) + ["", "", "", ""] + corr(b-1) + fin(b-1, False)
    cur = []
    seen = set()
    for n, (ks, b) in enumerate(steps):
        if n in extra:
            assert not cur, "filler overflow"
            cur = list(extra[n])
        rd = rw(n+AH) if n + AH < len(steps) else []
        for t in range(2):
            acc = v(ACC+64*t+16*b,16)
            k(f"{MF32} {acc}, {v(WF+4*(n%RD),4)}, {a(8*ks+4*t,4)}, {'0' if (b,t) not in seen else acc}")
            seen.add((b, t))
            if rd: k(rd.pop(0))
            if loads and (t == 0 or n % 2 == 0): k(loads.pop(0))
            for _ in range(4 if not loads else 0):
                if cur:
                    x = cur.pop(0)
                    if x: k(x)
        if n == nk - 1: stamp(k, 13)
    assert not cur and not loads
    stamp(k, 14)
    for x in fin(3, True): k(x)
    k("s_barrier")
    k("s_waitcnt vmcnt(0)")
    flag_store(k, 51)
    stamp(k, 15)

def phase4(k):
    VWA, A0, A1, EXA, ACC, HH = 12, 8, 9, 88, 24, 96
    NS = 40
    k(f"v_lshrrev_b32 v{T1}, 3, v{LANE}"); k(f"v_mul_u32_u24 v{VWA}, 896, v{T1}")
    k(f"v_bfe_u32 v{T1}, v{LANE}, 4, 1"); k(f"v_lshlrev_b32 v{T1}, 2, v{T1}")
    k(f"v_and_b32 v{T2}, 7, v{LANE}"); k(f"v_xor_b32 v{T1}, v{T1}, v{T2}")
    k(f"v_lshl_add_u32 v{VWA}, v{T1}, 4, v{VWA}")
    k(f"s_mul_i32 s50, s{sWV}, {448*896}"); k(f"s_lshl_b32 s48, s{sCT}, 7"); k("s_add_u32 s50, s50, s48")
    k(f"s_mul_i32 s51, s{sWV}, 28672")
    def dma(i0, i1):
        for i in range(i0, i1):
            k(f"s_add_u32 m0, s51, {(i%28)*1024}")
            k(f"buffer_load_dwordx4 v{VWA}, {s(SDN,4)}, s50 offen lds")
            k(f"s_add_u32 s50, s50, {8*896}")
    dma(0, 28)
    k(f"s_and_b32 s49, s{sWV}, 1")
    k(f"v_bfe_u32 v{T1}, v{LANE}, 4, 1"); k(f"v_lshlrev_b32 v{T1}, 5, v{T1}")
    k(f"v_and_b32 v{T2}, 1, v{LANE}"); k(f"v_lshl_add_u32 v{T1}, v{T2}, 4, v{T1}")
    k(f"v_bfe_u32 v{T2}, v{LANE}, 1, 1"); k(f"v_lshl_add_u32 v{T1}, v{T2}, 3, v{T1}")
    k(f"v_add_u32 v{T1}, s51, v{T1}")
    k(f"v_bfe_u32 v{T2}, v{LANE}, 2, 2"); k(f"v_lshrrev_b32 v{T3}, 5, v{LANE}")
    k(f"v_lshl_add_u32 v{A0}, v{T3}, 3, v{T2}"); k(f"v_lshl_add_u32 v{A0}, v{A0}, 7, v{T1}")
    k(f"v_bfe_u32 v{T2}, v{LANE}, 3, 1"); k(f"v_xor_b32 v{T2}, s49, v{T2}")
    k(f"v_lshl_add_u32 v{A0}, v{T2}, 6, v{A0}"); k(f"v_xor_b32 v{A1}, 64, v{A0}")
    exchange(k, ACC, EXA)
    k(f"s_mul_i32 s54, s{sWV}, 28672"); k(f"s_add_u32 s54, s54, {WS_HH}")
    k(f"s_mul_i32 s52, s{sTG}, {112*1024}"); k("s_add_u32 s52, s52, s54")
    k(f"s_xor_b32 s53, s{sTG}, 1"); k(f"s_mul_i32 s53, s53, {112*1024}"); k("s_add_u32 s53, s53, s54")
    k(f"s_lshl_b32 s55, s{sTT}, 7"); k(f"s_mul_i32 s48, s{sWV}, 28"); k("s_add_u32 s55, s55, s48"); k(f"s_add_u32 s55, s55, {FL3}")
    def rd(ks):
        return [f"ds_read_b64_tr_b16 {a(8*ks+4*cg+2*hh,2)}, v{A1 if cg else A0} offset:{(ks%14)*2048+hh*512}" for cg in range(2) for hh in range(2)]
    for g in range(7):
        k(f"s_waitcnt vmcnt(24)")
        for x in rd(2*g) + rd(2*g+1): k(x)
        k("s_waitcnt lgkmcnt(0)")
        dma(28+4*g, 32+4*g)
    k(f"v_and_b32 v{T1}, 7, v{LANE}"); k(f"v_lshlrev_b32 v{T1}, 2, v{T1}")
    stamp(k, 16)
    poll(k, "p4", T2, T1, "s55", 1, "0x7f")
    stamp(k, 17)
    if STAMP: k("s_waitcnt lgkmcnt(0)")
    loads = []
    for ks in range(28):
        for t in range(2):
            f = 2*ks + t
            loads.append(f"buffer_load_dwordx4 {v(HH+4*(f%NS),4)}, v{VL16}, {s(SWS,4)}, s{52+t} offen offset:{(ks&3)*1024} sc1")
        if (ks & 3) == 3: loads[-1] += "\ns_add_u32 s52, s52, 4096\ns_add_u32 s53, s53, 4096"
    NI = 16
    rds = [x for ks in range(14, 28) for x in rd(ks)]
    for i, x in enumerate(loads[:NI]):
        k(x)
    loads = loads[NI:]
    for ks in range(28):
        order = [(1, 1), (1, 0), (0, 1), (0, 0)] if ks == 27 else [(0, 0), (0, 1), (1, 0), (1, 1)]
        for j, (t, cg) in enumerate(order):
            acc = v(ACC+16*(2*t+cg),16)
            k(f"{MF32} {acc}, {a(8*ks+4*cg,4)}, {v(HH+4*((2*ks+t)%NS),4)}, {'0' if ks == 0 else acc}")
            if loads and (j & 1): k(loads.pop(0))
            for _ in range(2):
                if rds: k(rds.pop(0))
    stamp(k, 18)
    for i in (3, 2, 1):
        for x in exchange_w(ACC, EXA, i): k(x)
    for x in add_packed(ACC, HR, 8): k(x)
    exchange_r(k, ACC, EXA)
    sum_parts(k, ACC)
    for r in range(8): k(f"v_cvt_pk_bf16_f32 v{HR+r}, v{ACC+2*r}, v{ACC+2*r+1}")
    k(f"buffer_store_dwordx4 {v(HR,4)}, v14, {s(SO,4)}, s101 offen {OPT.get('om','')}")
    k(f"buffer_store_dwordx4 {v(HR+4,4)}, v14, {s(SO,4)}, s101 offen offset:32 {OPT.get('om','')}")

def build(path, aslist=False):
    hdr = open("cdna_kernels/" + NAME + ".s.ref").read().split("; Override")[0]
    k = K()
    setup(k)
    tail = phase1(k)
    if OPT["stop"] > 1: phase2(k)
    if OPT["stop"] > 2: phase3(k)
    if OPT["stop"] > 3: phase4(k)
    k("L_fin:")
    stamp_out(k, 19)
    k("L_end:")
    k("s_endpgm")
    tail(k)
    lines = k.finalize()
    out = hdr
    kn = NAME + "_kernel"
    tiny = OPT.get("tiny")
    tl = "; @launch kernel=tiny_kernel grid=(1,1,1) block=(64,1,1) lds=0\n"
    if tiny in (1, 2): out += tl
    if aslist: out += f"; @launch kernel={kn} grid=(256,1,1) block=(256,1,1) lds=163840\n" + (tl if tiny == 3 else "")
    else: out += f"; @launch grid=(256,1,1) block=(256,1,1) lds=163840\n"
    out += '.amdgcn_target "amdgcn-amd-amdhsa--gfx950"\n'
    out += kernel(kn, lines, 256, 256)
    if tiny:
        k2 = K()
        k2("s_memrealtime s[60:61]")
        k2("s_cmp_ge_u32 s2, 1"); k2("s_cbranch_scc1 L_tend")
        k2(f"s_load_dwordx2 {s(SWS,2)}, s[0:1], 72")
        k2(f"s_mov_b32 {s(SWS+2)}, 268435456"); k2(f"s_mov_b32 {s(SWS+3)}, 0x00020000")
        k2("s_mov_b32 s58, 0x3000000")
        k2("s_waitcnt lgkmcnt(0)")
        k2("v_mov_b32 v1, s60")
        k2(f"buffer_store_dword v1, off, {s(SWS,4)}, s58 sc1")
        k2("L_tend:")
        out += kernel("tiny_kernel", k2.finalize(), 8, 0)
    open(path, "w").write(out)

if __name__ == "__main__":
    args = sys.argv[2:]
    for x in args:
        if x == "stamp": STAMP = True
        elif "=" in x:
            n, val = x.split("="); OPT[n] = eval(val)
    build(sys.argv[1], aslist=("list" in args))
```

```python
import re

def v(i, n=1): return f"v{i}" if n == 1 else f"v[{i}:{i+n-1}]"
def a(i, n=1): return f"a{i}" if n == 1 else f"a[{i}:{i+n-1}]"
def s(i, n=1): return f"s{i}" if n == 1 else f"s[{i}:{i+n-1}]"

_reg = re.compile(r"^(-?\|?)([vas])(\d+)\|?$")
_rng = re.compile(r"^(-?)([vas])\[(\d+):(\d+)\]$")
def regs_of(op):
    op = op.strip()
    m = _reg.match(op)
    if m: return {(m.group(2), int(m.group(3)))}
    m = _rng.match(op)
    if m: return {(m.group(2), i) for i in range(int(m.group(3)), int(m.group(4)) + 1)}
    if op in ("vcc", "vcc_lo", "vcc_hi"): return {("s", 106), ("s", 107)}
    if op in ("exec", "exec_lo", "exec_hi"): return {("s", 126), ("s", 127)}
    if op == "m0": return {("s", 124)}
    return set()

TRANS = ("v_exp_", "v_log_", "v_rcp_", "v_rsq_", "v_sqrt_", "v_sin_", "v_cos_")
class Ins:
    def __init__(self, text):
        self.text = text
        t = text.split(";")[0].strip()
        self.tag = text.split(";@")[1].strip() if ";@" in text else None
        self.text = t
        self.label = t.endswith(":")
        self.maybe = False
        self.defs, self.uses = set(), set()
        self.kind = "other"
        self.srcc = set(); self.passes = 0
        self.states = 1
        if self.label or not t:
            self.kind = "label"; self.states = 0; self.mn = ""; return
        parts = t.split(None, 1)
        mn = parts[0]; self.mn = mn
        rest = parts[1] if len(parts) > 1 else ""
        toks = [x for x in re.split(r",\s*|\s+", rest) if x]
        ops = [regs_of(x) for x in toks]
        self.toks = toks
        allr = set().union(*ops) if ops else set()
        if mn == "s_nop":
            self.kind = "nop"; self.states = int(toks[0], 0) + 1
        elif mn == "s_waitcnt": self.kind = "wait"
        elif mn.startswith("buffer_load") or mn.startswith("global_load"):
            self.kind = "vmem"
            if "lds" in toks: self.uses = allr | {("s", 124)}; self.dma = True
            else: self.defs = ops[0]; self.uses = set().union(*ops[1:])
        elif mn.startswith("buffer_store") or mn.startswith("global_store"):
            self.kind = "vmem"; self.uses = allr
            if mn.endswith("x3") or mn.endswith("x4"):
                self.wide = ops[0] if mn.startswith("buffer") else ops[1]
        elif mn.startswith("buffer_atomic") or mn.startswith("global_atomic"):
            self.kind = "vmem"; self.uses = allr
            if "sc0" in toks: self.defs = ops[0]
        elif mn.startswith("ds_read") or mn.startswith("ds_bpermute") or mn.startswith("ds_swizzle"):
            self.kind = "ds"; self.defs = ops[0]; self.uses = set().union(*ops[1:])
        elif mn.startswith("ds_"):
            self.kind = "ds"; self.uses = allr
        elif mn.startswith("v_mfma"):
            self.kind = "mfma"; self.defs = ops[0]; self.uses = ops[1] | ops[2] | ops[3]
            self.srcab = ops[1] | ops[2]; self.srcc = ops[3]
            self.passes = 8 if "32x32" in mn else 4
        elif mn.startswith("v_"):
            self.kind = "valu"
            if "permlane" in mn and "swap" in mn:
                self.defs = allr; self.uses = allr
            else:
                self.defs = set(ops[0]); self.uses = set().union(*ops[1:]) if len(ops) > 1 else set()
                if mn.startswith(("v_fmac", "v_mac", "v_dot2c", "v_writelane")): self.uses |= ops[0]
                if mn.startswith("v_cndmask") and len(toks) == 3: self.uses |= regs_of("vcc")
                if mn.startswith("v_cmpx"): self.defs |= regs_of("exec")
                if "_co_" in mn: self.defs |= ops[1]
        elif mn.startswith("s_load") or mn.startswith("s_memtime") or mn.startswith("s_memrealtime"):
            self.kind = "smem"; self.defs = ops[0]; self.uses = set().union(*ops[1:]) if len(ops) > 1 else set()
        elif mn.startswith("s_"):
            self.kind = "salu"
            if mn.startswith(("s_cmp", "s_cbranch", "s_branch", "s_barrier", "s_endpgm", "s_setprio", "s_sleep", "s_bitcmp")):
                self.uses = allr
            else:
                self.defs = set(ops[0]) if ops else set(); self.uses = set().union(*ops[1:]) if len(ops) > 1 else set()
                if "saveexec" in mn: self.defs |= regs_of("exec")
        self.dpp = ("dpp" in mn) or any(x.startswith(("row_", "quad_perm", "wave_")) for x in toks)

def need(p, c):
    n = 0
    vdef = {r for r in p.defs if r[0] in "va"}
    sdef = {r for r in p.defs if r[0] == "s"}
    if p.kind == "valu":
        isdot = p.mn.startswith("v_dot")
        if c.kind == "mfma" and vdef & c.uses: n = max(n, 3 if isdot else 2)
        if c.kind == "valu":
            if vdef & c.uses:
                if "permlane" in c.mn or c.dpp: n = max(n, 2)
                if c.mn.startswith(("v_readlane", "v_readfirstlane")): n = max(n, 1)
                if p.mn.startswith(TRANS): n = max(n, 1)
                if "op_sel" in p.text or "sdwa" in p.mn: n = max(n, 1)
            if sdef & c.uses: n = max(n, 4 if c.mn.startswith(("v_readlane", "v_writelane")) else 2)
            if regs_of("exec") & p.defs:
                if c.dpp: n = max(n, 5)
                if "permlane" in c.mn or c.mn.startswith(("v_readlane", "v_readfirstlane", "v_writelane")): n = max(n, 4)
        if isdot and c.kind in ("valu", "vmem", "ds") and vdef & (c.uses | c.defs):
            same_c = (c.mn == p.mn and not (vdef & (regs_of(c.toks[1]) | regs_of(c.toks[2]))))
            if not same_c: n = max(n, 3)
        if c.kind == "vmem" and sdef & c.uses: n = max(n, 5)
        if c.kind == "mfma" and regs_of("exec") & p.defs: n = max(n, 4)
    if p.kind == "salu" and ("s", 124) in p.defs and getattr(c, "dma", False): n = max(n, 1)
    if getattr(p, "wide", None) and p.wide & c.defs: n = max(n, 2)
    if p.kind == "mfma":
        big = 12 if p.passes == 8 else 8
        if c.kind == "mfma":
            if p.defs & c.srcab: n = max(n, big)
            if p.defs & c.srcc and not (p.defs == c.srcc and p.passes == c.passes): n = max(n, big - 2)
            if p.defs & c.defs and not p.defs & c.srcc: n = max(n, big)
        elif c.kind in ("valu", "vmem", "ds") and p.defs & (c.uses | c.defs): n = max(n, big)
        if c.kind == "valu" and p.srcc & c.defs: n = max(n, 7 if p.passes == 8 else 3)
    return n

class K:
    def __init__(self): self.items = []
    def __call__(self, text):
        for ln in text.split("\n"):
            ln = ln.strip()
            if ln: self.items.append(ln)
    def cond_begin(self): self.items.append("@cond_begin")
    def cond_end(self): self.items.append("@cond_end")
    def finalize(self):
        out = []; vm = []; lg = []; smem = []
        cond_stack = []
        def emit(i):
            best = 0; dist = 0
            for p in reversed(out):
                if dist >= 20: break
                if p.kind not in ("label",):
                    req = need(p, i) - dist
                    if req > best: best = req
                if not p.maybe: dist += p.states
            if best > 0: out.append(Ins(f"s_nop {best-1}"))
            out.append(i)
        for it in self.items:
            if it == "@cond_begin": cond_stack.append(len(out)); continue
            if it == "@cond_end":
                st = cond_stack.pop()
                for p in out[st:]: p.maybe = True
                continue
            if it.startswith("@wait "):
                parts = it.split()
                idx = -1
                for j, p in enumerate(vm):
                    if p.tag == parts[1]: idx = j
                extra = " ".join(parts[2:])
                if idx < 0:
                    if not extra: continue
                    it = "s_waitcnt " + extra
                else:
                    n = min(63, sum(1 for p in vm[idx+1:] if not p.maybe))
                    it = f"s_waitcnt vmcnt({n}) " + extra
            if it.startswith("@lwait "):
                tg = it.split()[1]
                idx = -1
                for j, p in enumerate(lg):
                    if p.tag == tg: idx = j
                if idx < 0: continue
                n = 0 if smem else min(15, sum(1 for p in lg[idx+1:] if not p.maybe))
                it = f"s_waitcnt lgkmcnt({n})"
            if it.startswith("."):
                d = Ins("s_nop 0"); d.text = it; d.kind = "label"; d.states = 0; out.append(d); continue
            i = Ins(it)
            if i.kind == "wait":
                m = re.search(r"vmcnt\((\d+)\)", it)
                if m and not cond_stack:
                    n = int(m.group(1)); keep = []; cnt = 0
                    for p in reversed(vm):
                        if cnt < n: keep.append(p)
                        else: break
                        if not p.maybe: cnt += 1
                    vm[:] = list(reversed(keep))
                m = re.search(r"lgkmcnt\((\d+)\)", it)
                if m and not cond_stack:
                    n = int(m.group(1))
                    if n == 0: lg.clear(); smem.clear()
                    elif not smem:
                        keep = []; cnt = 0
                        for p in reversed(lg):
                            if cnt < n: keep.append(p)
                            else: break
                            if not p.maybe: cnt += 1
                        lg[:] = list(reversed(keep))
                emit(i); continue
            touch = i.uses | i.defs
            w = []
            for q, name, mx in ((vm, "vmcnt", 63), (lg, "lgkmcnt", 15)):
                idx = -1
                for j, p in enumerate(q):
                    if p.defs & touch: idx = j
                if idx >= 0:
                    n = sum(1 for p in q[idx+1:] if not p.maybe)
                    if name == "lgkmcnt" and smem: n = 0
                    n = min(n, mx)
                    w.append(f"{name}({n})")
                    if not cond_stack:
                        del q[:idx+1]
                        if name == "lgkmcnt" and n == 0: q.clear(); smem.clear()
            for p in smem:
                if p.defs & touch:
                    raise Exception("smem result used without wait: " + it)
            if w: emit(Ins("s_waitcnt " + " ".join(w)))
            emit(i)
            if i.kind == "vmem": vm.append(i)
            elif i.kind == "ds": lg.append(i)
            elif i.kind == "smem": smem.append(i)
        return [p.text for p in out]

def kernel(name, lines, vgprs=256, agprs=0, pre=""):
    acc = (vgprs + 3) // 4 * 4
    nf = acc + agprs if agprs else vgprs
    body = "\n".join(("" if x.endswith(":") else "  ") + x for x in lines)
    return f""".text
{pre}.globl {name}
.p2align 8
.type {name},@function
{name}:
{body}
  s_endpgm
.section .rodata,"a"
.p2align 6
.amdhsa_kernel {name}
  .amdhsa_next_free_vgpr {max(nf, acc)}
  .amdhsa_next_free_sgpr 102
  .amdhsa_accum_offset {acc}
  .amdhsa_group_segment_fixed_size 0
  .amdhsa_kernarg_size 80
  .amdhsa_user_sgpr_count 2
  .amdhsa_user_sgpr_kernarg_segment_ptr 1
  .amdhsa_system_sgpr_workgroup_id_x 1
.end_amdhsa_kernel
"""

def sizes_of(lines):
    import subprocess, tempfile, os
    d = tempfile.mkdtemp()
    src = os.path.join(d, "a.s"); obj = os.path.join(d, "a.o")
    open(src, "w").write('.amdgcn_target "amdgcn-amd-amdhsa--gfx950"\n.text\n' + "\n".join(lines) + "\ns_endpgm\n")
    subprocess.run(["clang", "-x", "assembler", "-target", "amdgcn-amd-amdhsa", "-mcpu=gfx950", "-c", src, "-o", obj], check=True)
    out = subprocess.run(["llvm-objdump", "-d", obj], capture_output=True, text=True).stdout
    ad = [int(m.group(1), 16) for m in re.finditer(r"// ([0-9A-F]{12}):", out)]
    sz = [b - a for a, b in zip(ad, ad[1:])]
    res = []; j = 0
    for x in lines:
        if x.endswith(":"): res.append(0)
        else: res.append(sz[j]); j += 1
    assert j == len(sz), (j, len(sz))
    return res

PAGE_PRE = ".p2align 12\n.fill 832, 4, 0xbf800000\n"
def paginate(lines, target, win=160):
    probe = [x for x in lines if "L_pg" not in x]
    it = iter(sizes_of(probe))
    sz = [4 if "L_pg" in x else next(it) for x in lines]
    cuts = []; off = 0; i = 0; best = None
    n = len(lines)
    while i < n:
        end = (off // 4096 + 1) * 4096
        if off + sz[i] + 4 > end:
            c, o = best if best else (i, off)
            cuts.append(c); i = c; off = end + 4; best = None
            continue
        if end - off <= win and i > 0 and lines[i-1].startswith("v_mfma") and (not cuts or i > cuts[-1]): best = (i, off)
        off += sz[i]; i += 1
    out = []; npg = len(cuts)
    for i, x in enumerate(lines):
        if i in cuts:
            p = cuts.index(i) + 1
            out += [f"s_branch L_ov{p}", ".p2align 12", f"L_pg{p}:", f"s_branch {target(p, npg)}", f"L_ov{p}:"]
        m = re.search(r"L_pg(\d+)", x)
        if m and int(m.group(1)) > npg: x = "s_nop 0"
        out.append(x)
    return out, npg
```

```python
import sys
sys.path.insert(0, "dev")
from asmlib import *

NAME = "sequential_preLN__linear_attn_block__glu_gated_bilinear__prompt"
WS_INB, WS_KVF, WS_PQ, WS_H, WS_ST, WS_HH = 0x0, 0x100000, 0x200000, 0x400000, 0x600000, 0x800000
FLQ, FL2, FL3 = WS_KVF + 0x8000, WS_KVF + 0x9000, WS_KVF + 0xa000
ONES = 0x3f803f80
EPS6 = "0x358637bd"; EPS5 = "0x3727c5ac"; INVD = "0x3b124925"; LOG2E = "0x3fb8aa3b"
MF32 = "v_mfma_f32_32x32x16_bf16"
MF16 = "v_mfma_f32_16x16x32_bf16"
SX, SW1, SWS, SD, SWO, SG, SU, SDN, SO = 4, 8, 12, 16, 20, 24, 28, 32, 36
sWV, sTB, sHD, sTT, sCT, sTB3, sPN, sJ = 40, 41, 42, 43, 44, 45, 46, 47
LANE, VL16 = 1, 2
T0, T1, T2, T3, T4 = 3, 4, 5, 6, 7
POLLMAX = 0x40000
OPT = dict(gu=(3, 2, 2), stop=9, map=1, fast=1, wdpre=0, ni3=12, ni4=16, dens=0.5, lat=20)
SP, SC = SW1, SWO
sROT, sXC = 0, 1
sWD, sWDB, sWDE, sRING = 16, 17, 18, 19

STAMP = False
WS_TS = 0x2000000
def stamp(k, i):
    if STAMP: k(f"{'s_memtime' if OPT.get('cyc') else 's_memrealtime'} {s(60+2*i,2)}")
def stamp_out(k, n):
    if not STAMP: return
    k("s_waitcnt vmcnt(0) lgkmcnt(0)")
    stamp(k, n)
    k("s_waitcnt lgkmcnt(0)")
    if OPT.get("pad") is not None:
        i = OPT["pad"]
        k(f"s_cmp_ge_u32 s{sJ}, 28"); k("s_cbranch_scc1 L_end")
        if OPT.get("tiny") == 2:
            k(f"s_mov_b32 s58, 0x3000000")
            k(f"buffer_load_dword v1, off, {s(SWS,4)}, s58 sc1")
            k("s_waitcnt vmcnt(0)")
            k("v_readfirstlane_b32 s58, v1"); k("s_add_u32 s58, s58, 5000")
            k("s_sub_u32 s59, s58, s60"); k("s_cmp_gt_u32 s59, 5000"); k("s_cbranch_scc1 L_end")
        else: k(f"s_add_u32 s58, s{60+2*i}, 5000")
        k("L_padw:")
        k("s_memrealtime s[56:57]"); k("s_waitcnt lgkmcnt(0)")
        k("s_sub_u32 s59, s56, s58"); k("s_cmp_lt_i32 s59, 0"); k("s_cbranch_scc1 L_padw")
        return
    k("s_mov_b64 exec, 1")
    if OPT.get("dbg") is not None:
        k(f"s_lshl_b32 s58, s2, 2"); k(f"s_add_u32 s58, s58, s{sWV}")
        k(f"s_cmp_lg_u32 s58, {OPT['dbg']}"); k("s_cbranch_scc1 L_end")
        for j, i in enumerate([1,2,3,4,6,7,8,9,10,12,14,15,16,17,18,19]):
            k(f"s_sub_u32 s58, s{60+2*i}, s60"); k(f"v_mov_b32 v1, s58")
            k(f"buffer_store_dword v1, off, {s(SD,4)}, 0 offset:{4*j}")
        return
    k(f"s_lshl_b32 s58, s2, 2"); k(f"s_add_u32 s58, s58, s{sWV}"); k("s_lshl_b32 s58, s58, 7")
    k(f"s_add_u32 s58, s58, {WS_TS}")
    for i in range(n+1):
        k(f"v_mov_b32 v1, s{60+2*i}")
        k(f"buffer_store_dword v1, off, {s(SWS,4)}, s58 offset:{4*i}")

def mix(k, mf, fill, per=None, lead=0):
    fill = list(fill); n = len(mf)
    for _ in range(lead):
        if fill: k(fill.pop(0))
    for i, m in enumerate(mf):
        k(m)
        cnt = per if per is not None else -(-len(fill) // (n - i))
        for _ in range(cnt):
            if fill: k(fill.pop(0))
    for f in fill: k(f)

def poll(k, tag, vdst, vaddr, soff, cmp_val, mask_lo, first=True):
    k(f"s_mov_b32 s48, {POLLMAX}")
    k(f"L_poll_{tag}:")
    k(f"buffer_load_dword v{vdst}, v{vaddr}, {s(SWS,4)}, {soff} offen sc1")
    k("s_sub_u32 s48, s48, 1")
    k("s_waitcnt vmcnt(0)")
    k(f"v_cmp_eq_u32 vcc, {cmp_val}, v{vdst}")
    k(f"s_cbranch_scc1 L_pollx_{tag}")
    k(f"s_andn2_b32 s49, {mask_lo}, vcc_lo")
    k(f"s_cbranch_scc1 L_poll_{tag}")
    k(f"L_pollx_{tag}:")

def visit(k, r):
    for w in range(4):
        k(f"s_cmp_eq_u32 s{sWV}, {w}"); k(f"s_cbranch_scc1 L_pg{4*(r-1)+w+1}")
    k(f"L_bk{r}:")

def setup(k):
    k("s_cmp_ge_u32 s2, 256"); k("s_cbranch_scc1 L_end")
    stamp(k, 0)
    for sr, off in ((SX, 0), (SW1, 8), (SWS, 72), (SD, 64), (SWO, 16), (SG, 32), (SU, 40), (SDN, 48), (SO, 56)):
        k(f"s_load_dwordx2 {s(sr,2)}, s[0:1], {off}")
    k(f"v_and_b32 v{LANE}, 63, v0"); k(f"v_lshrrev_b32 v{T0}, 6, v0")
    k(f"v_readfirstlane_b32 s{sWV}, v{T0}")
    k(f"v_lshlrev_b32 v{VL16}, 4, v{LANE}")
    k("s_and_b32 s3, s2, 7"); k(f"s_lshr_b32 s{sJ}, s2, 3")
    k(f"s_and_b32 s48, s{sJ}, 3"); k(f"s_lshr_b32 s49, s{sJ}, 2")
    k(f"s_and_b32 s{sTB}, s3, 3"); k(f"s_lshl_b32 s{sTB}, s{sTB}, 2"); k(f"s_add_u32 s{sTB}, s{sTB}, s48")
    k(f"s_lshr_b32 s{sHD}, s3, 2"); k(f"s_lshl_b32 s{sHD}, s{sHD}, 3"); k(f"s_add_u32 s{sHD}, s{sHD}, s49")
    k(f"s_lshl_b32 s{sTT}, s3, 2"); k(f"s_add_u32 s{sTT}, s{sTT}, s48")
    k(f"s_min_u32 s{sCT}, s49, 6")
    if OPT["map"]:
        k(f"s_mov_b32 s{sTB3}, s3"); k(f"s_min_u32 s{sPN}, s{sJ}, 27")
    else:
        k(f"s_and_b32 s{sTB3}, s3, 1"); k(f"s_lshl_b32 s{sTB3}, s{sTB3}, 2"); k(f"s_add_u32 s{sTB3}, s{sTB3}, s48")
        k(f"s_lshr_b32 s{sPN}, s3, 1"); k(f"s_mul_i32 s{sPN}, s{sPN}, 7"); k(f"s_add_u32 s{sPN}, s{sPN}, s{sCT}")
    for sr, size in ((SX, 2048*896), (SW1, 448*2688), (SWS, 268435456), (SD, 256), (SWO, 448*896), (SG, 448*3584),
                     (SU, 448*3584), (SDN, 1792*896), (SO, 2048*896)):
        k(f"s_mov_b32 {s(sr+2)}, {size}"); k(f"s_mov_b32 {s(sr+3)}, 0x00020000")

L_W, L_ONE, L_CS, L_ST, L_RING = 1024, 87040, 87552, 91648, 98304
def phase1(k):
    VX, VW, VWO, QINC, FL = 8, 12, 13, 14, 15
    AQ, AK, AXL, AX = 16, 20, 24, 28
    Q, KK, VV, G, CS, SEL, WF, XF = 32, 48, 64, 80, 96, 100, 112, 160
    sG, sXB, sWB, sLW, sRB, sDX, sRX, sIT, sA, sB, sWOo, sWOl = 50, 51, 52, 53, 54, 55, 56, 57, 58, 59, 100, 101
    k(f"v_lshrrev_b32 v{T1}, 2, v{LANE}"); k(f"v_mul_u32_u24 v{VW}, 2688, v{T1}")
    k(f"v_and_b32 v{T1}, 3, v{LANE}"); k(f"v_lshl_add_u32 v{VW}, v{T1}, 4, v{VW}")
    k(f"v_lshrrev_b32 v{T1}, 3, v{LANE}"); k(f"v_mul_u32_u24 v{T2}, 896, v{T1}")
    k(f"v_and_b32 v{T3}, 7, v{LANE}"); k(f"v_xor_b32 v{T3}, v{T3}, v{T1}")
    k(f"v_lshl_add_u32 v{VX}, v{T3}, 4, v{T2}")
    k(f"v_xor_b32 v{VX+1}, 16, v{VX}"); k(f"v_add_u32 v{VX+1}, 6144, v{VX+1}")
    k(f"v_add_u32 v{VX+2}, 12288, v{VX}"); k(f"v_add_u32 v{VX+3}, 12288, v{VX+1}")
    k(f"s_lshl_b32 s{sG}, s48, 1"); k(f"s_add_u32 s{sG}, s{sG}, s49")
    k(f"s_sub_u32 s{sA}, s{sG}, 7"); k(f"s_cselect_b32 s{sG}, s{sG}, s{sA}")
    if OPT.get("rot") == 0: k(f"s_mov_b32 s{sG}, 0")
    if OPT.get("rot") == 1: k(f"s_and_b32 s{sG}, s3, 3")
    if OPT.get("rot") == 2: k(f"s_and_b32 s{sG}, s{sJ}, 1"); k(f"s_mul_i32 s{sG}, s{sG}, 3")
    k(f"s_lshl_b32 s{sXB}, s{sTB}, 2"); k(f"s_add_u32 s{sXB}, s{sXB}, s{sWV}"); k(f"s_mul_i32 s{sXB}, s{sXB}, 28672")
    k(f"s_mul_i32 s{sWB}, s{sWV}, {16*2688}"); k(f"s_mul_i32 s{sA}, s{sHD}, 56"); k(f"s_add_u32 s{sWB}, s{sWB}, s{sA}")
    k(f"s_lshl_b32 s{sLW}, s{sWV}, 10"); k(f"s_add_u32 s{sLW}, s{sLW}, {L_W}")
    k(f"s_lshl_b32 s{sRB}, s{sWV}, 14"); k(f"s_add_u32 s{sRB}, s{sRB}, {L_RING}")
    k(f"s_mov_b32 s{sDX}, 0")
    for i in range(4): k(f"v_mov_b32 v{CS+i}, 0")
    if OPT.get("pg") == 1: visit(k, 1)
    k("s_waitcnt lgkmcnt(0)")
    stamp(k, 1)
    k(f"v_lshlrev_b32 v{T3}, 4, v0"); k(f"s_lshl_b32 s{sA}, s{sHD}, 4"); k(f"s_add_u32 s{sA}, s{sA}, s{sTB}"); k(f"s_lshl_b32 s{sA}, s{sA}, 12")
    k(f"buffer_store_dwordx4 {v(CS,4)}, v{T3}, {s(SWS,4)}, s{sA} offen sc1")
    k(f"s_lshl_b32 s{sA}, s2, 8"); k(f"s_add_u32 s{sA}, s{sA}, {WS_KVF}"); k(f"s_lshl_b32 s{sB}, s{sWV}, 6"); k(f"s_add_u32 s{sA}, s{sA}, s{sB}")
    k("s_mov_b64 exec, 15")
    k(f"buffer_store_dwordx4 {v(CS,4)}, v{VL16}, {s(SWS,4)}, s{sA} offen sc1")
    k("s_mov_b64 exec, -1")
    def issue():
        k(f"s_mul_i32 s{sB}, s{sG}, {64*2688}"); k(f"s_add_u32 s{sB}, s{sB}, s{sWB}")
        k(f"s_lshl_b32 s{sA}, s{sG}, 7"); k(f"s_add_u32 s{sA}, s{sA}, s{sXB}")
        for m in range(3):
            k(f"s_add_u32 m0, s{sLW}, {m*4096 - m*896}")
            k(f"buffer_load_dwordx4 v{VW}, {s(SW1,4)}, s{sB} offen offset:{m*896} lds")
        k(f"s_add_u32 m0, s{sRB}, s{sDX}")
        k(f"s_add_u32 s{sG}, s{sG}, 1")
        for r in range(4):
            k(f"buffer_load_dwordx4 v{VX+r}, {s(SX,4)}, s{sA} offen offset:{r*1024} lds")
        k(f"s_cmp_eq_u32 s{sG}, 7"); k(f"s_cselect_b32 s{sG}, 0, s{sG}")
        k(f"s_add_u32 s{sLW}, s{sLW}, 12288")
        k(f"s_add_u32 s{sDX}, s{sDX}, 4096"); k(f"s_and_b32 s{sDX}, s{sDX}, 0x3fff")
    for c in range(3):
        issue()
        if c == 0 and OPT.get("pg"):
            if OPT["pg"] == 2: visit(k, 1)
            visit(k, 2)
    stamp(k, 2)
    k(f"v_mov_b32 v{T1}, {ONES}"); k(f"v_lshlrev_b32 v{T2}, 2, v{LANE}"); k(f"v_add_u32 v{T2}, {L_ONE}, v{T2}")
    k(f"ds_write2st64_b32 v{T2}, v{T1}, v{T1} offset0:0 offset1:1")
    k(f"v_lshrrev_b32 v{T0}, 5, v{LANE}"); k(f"v_lshlrev_b32 v{T0}, 9, v{T0}")
    k(f"v_bfe_u32 v{T2}, v{LANE}, 2, 2"); k(f"v_lshlrev_b32 v{T2}, 6, v{T2}")
    k(f"v_bfe_u32 v{T3}, v{LANE}, 4, 1"); k(f"v_lshl_add_u32 v{T2}, v{T3}, 5, v{T2}")
    k(f"v_and_b32 v{T3}, 3, v{LANE}"); k(f"v_lshl_add_u32 v{T2}, v{T3}, 3, v{T2}")
    k(f"v_add_u32 v{T0}, v{T0}, v{T2}"); k(f"v_add_u32 v{T2}, {L_ONE}, v{T2}")
    k(f"v_and_b32 v{T3}, 19, v{LANE}"); k(f"v_cmp_eq_u32 vcc, 19, v{T3}")
    k(f"v_mov_b32 v{QINC}, 12288"); k(f"v_cndmask_b32 v{QINC}, v{QINC}, v{CS}")
    k(f"v_and_b32 v{T3}, 31, v{LANE}"); k(f"v_lshlrev_b32 v{T4}, 7, v{T3}")
    k(f"v_bfe_u32 v{T3}, v{LANE}, 3, 1"); k(f"v_lshrrev_b32 v{AX}, 5, v{LANE}"); k(f"v_xor_b32 v{T3}, v{T3}, v{AX}")
    k(f"v_and_b32 v{AX}, 7, v{LANE}"); k(f"v_xor_b32 v{T3}, v{T3}, v{AX}")
    k(f"v_lshl_add_u32 v{T4}, v{T3}, 4, v{T4}")
    for i in range(4):
        k(f"s_xor_b32 s{sA}, s{sWV}, {i}"); k(f"s_lshl_b32 s{sB}, s{sA}, 5"); k(f"s_lshl_b32 s{sA}, s{sA}, 10")
        k(f"s_add_u32 s{sA}, s{sA}, {L_W}")
        k(f"v_add_u32 v{AK+i}, s{sA}, v{T0}"); k(f"v_cndmask_b32 v{AQ+i}, v{AK+i}, v{T2}")
        k(f"v_xor_b32 v{AXL+i}, s{sB}, v{T4}"); k(f"v_add_u32 v{AX+i}, s{sRB}, v{AXL+i}")
    k(f"v_and_b32 v{T2}, 15, v{LANE}"); k(f"v_bfe_u32 v{T3}, v{LANE}, 4, 1"); k(f"v_sub_u32 v{T2}, v{T2}, v{T3}")
    for m in range(3):
        k(f"v_cmp_eq_u32 vcc, {2*m}, v{T2}")
        for i in range(4): k(f"v_cndmask_b32 v{SEL+4*m+i}, v{CS}, v{T1}")
    for i in range(64): k(f"v_mov_b32 v{Q+i}, 0")
    k(f"v_lshrrev_b32 v{T1}, 3, v{LANE}"); k(f"v_mul_u32_u24 v{VWO}, 896, v{T1}")
    k(f"v_bfe_u32 v{T1}, v{LANE}, 4, 1"); k(f"v_lshlrev_b32 v{T1}, 2, v{T1}")
    k(f"v_and_b32 v{T2}, 7, v{LANE}"); k(f"v_xor_b32 v{T1}, v{T1}, v{T2}")
    k(f"v_lshl_add_u32 v{VWO}, v{T1}, 4, v{VWO}")
    k(f"s_mul_i32 s{sWOo}, s{sWV}, {112*896}"); k(f"s_lshl_b32 s{sA}, s{sCT}, 7"); k(f"s_add_u32 s{sWOo}, s{sWOo}, s{sA}")
    k(f"s_mul_i32 s{sWOl}, s{sWV}, 14336")
    if OPT.get("touch"):
        TC, TC2 = 224, 225
        k(f"s_lshl_b32 s{sA}, s{sTB3}, 2"); k(f"s_add_u32 s{sA}, s{sA}, s{sWV}"); k(f"s_mul_i32 s{sA}, s{sA}, {2*112}")
        k(f"s_lshl_b32 s{sB}, s{sPN}, 2"); k(f"s_add_u32 s{sA}, s{sA}, s{sB}"); k(f"s_lshl_b32 s{sA}, s{sA}, 10"); k(f"s_add_u32 s{sA}, s{sA}, {WS_HH}")
        k(f"v_lshrrev_b32 v{T3}, 5, v{LANE}"); k(f"v_mul_u32_u24 v{TC}, {112*1024}, v{T3}")
        k(f"v_and_b32 v{T1}, 31, v{LANE}"); k(f"v_lshl_add_u32 v{TC}, v{T1}, 7, v{TC}"); k(f"v_add_u32 v{TC}, s{sA}, v{TC}")
        k(f"s_lshr_b32 s{sA}, s{sWV}, 1"); k(f"s_lshl_b32 s{sB}, s{sTT}, 1"); k(f"s_add_u32 s{sA}, s{sA}, s{sB}"); k(f"s_mul_i32 s{sA}, s{sA}, 14")
        k(f"s_lshl_b32 s{sB}, s{sCT}, 1"); k(f"s_add_u32 s{sA}, s{sA}, s{sB}"); k(f"s_and_b32 s{sB}, s{sWV}, 1"); k(f"s_add_u32 s{sA}, s{sA}, s{sB}")
        k(f"s_lshl_b32 s{sB}, s{sA}, 8"); k(f"s_add_u32 s{sB}, s{sB}, {WS_ST}"); k(f"s_lshl_b32 s{sA}, s{sA}, 11"); k(f"s_add_u32 s{sA}, s{sA}, {WS_H}")
        k(f"v_and_b32 v{T1}, 15, v{LANE}"); k(f"v_lshl_add_u32 v{TC2}, v{T1}, 7, s{sA}")
        k(f"v_and_b32 v{T1}, 1, v{LANE}"); k(f"v_lshl_add_u32 v{T1}, v{T1}, 7, s{sB}")
        k(f"v_cmp_gt_u32 vcc, 16, v{LANE}"); k(f"v_cndmask_b32 v{TC2}, v{T1}, v{TC2}")
    k(f"s_mov_b32 s{sRX}, 0"); k(f"s_mov_b32 s{sIT}, 0")
    k("s_waitcnt vmcnt(14) lgkmcnt(0)"); k("s_barrier")
    stamp(k, 3)
    k(f"s_getreg_b32 s{sXC}, hwreg(HW_REG_XCC_ID)"); k(f"s_and_b32 s{sXC}, s{sXC}, 15"); k(f"s_or_b32 s{sXC}, s{sXC}, 0x80")
    k(f"s_lshl_b32 s{sROT}, s48, 1"); k(f"s_add_u32 s{sROT}, s{sROT}, s{sCT}"); k(f"s_add_u32 s{sROT}, s{sROT}, s3")
    for _ in range(2): k(f"s_sub_u32 s{sA}, s{sROT}, 7"); k(f"s_cselect_b32 s{sROT}, s{sROT}, s{sA}")
    k(f"s_cmp_lg_u32 s{sWV}, 0"); k("s_cbranch_scc1 L_p1_nf")
    k.cond_begin()
    k("s_mov_b64 exec, 1"); k(f"s_lshl_b32 s{sA}, s3, 5"); k(f"s_add_u32 s{sA}, s{sA}, s{sJ}"); k(f"v_mov_b32 v{T0}, s{sXC}")
    k(f"buffer_store_byte v{T0}, off, {s(SD,4)}, s{sA} sc1")
    k("s_mov_b64 exec, -1")
    k.cond_end()
    k("L_p1_nf:")
    if STAMP: k("s_waitcnt lgkmcnt(0)")
    def rdw(i, m):
        ar = (AQ if m == 0 else AK) + i
        return [f"ds_read_b64_tr_b16 {v(WF+12*i+4*m+2*hh,2)}, v{ar} offset:{m*4096+hh*256}" for hh in range(2)]
    def rdx(i): return [f"ds_read_b128 {v(XF+4*i,4)}, v{AX+i}"]
    def adv(i): return [f"v_add_u32 v{AQ+i}, v{QINC}, v{AQ+i}", f"v_add_u32 v{AK+i}, 12288, v{AK+i}", f"v_add_u32 v{AX+i}, s{sRX+0}, v{AXL+i}"]
    def nextrx():
        k(f"s_add_u32 s{sRX}, s{sRX}, 4096"); k(f"s_and_b32 s{sRX}, s{sRX}, 0x3fff"); k(f"s_or_b32 s{sRX}, s{sRX}, s{sRB}")
    mK = lambda i: f"{MF32} {v(KK,16)}, {v(XF+4*i,4)}, {v(WF+12*i+4,4)}, {v(KK,16)}"
    mV = lambda i: f"{MF32} {v(VV,16)}, {v(XF+4*i,4)}, {v(WF+12*i+8,4)}, {v(VV,16)}"
    mQ = lambda i: f"{MF32} {v(Q,16)}, {v(WF+12*i,4)}, {v(XF+4*i,4)}, {v(Q,16)}"
    mG = lambda i: f"{MF32} {v(G,16)}, {v(XF+4*i,4)}, {v(XF+4*i,4)}, {v(G,16)}"
    mC = lambda m: f"{MF16} {v(CS,4)}, {v(SEL+4*m,4)}, {v(WF+4*m,4)}, {v(CS,4)}"
    nextrx()
    for i in range(4):
        for x in rdw(i, 1) + rdw(i, 2) + rdw(i, 0) + rdx(i) + adv(i): k(x)
    k("L_p1_loop:")
    k("s_waitcnt vmcnt(7)"); k("s_barrier")
    k(f"s_cmp_ge_u32 s{sIT}, 4"); k("s_cbranch_scc1 L_p1_wo")
    k.cond_begin()
    issue()
    k.cond_end()
    k("L_p1_body:")
    nextrx()
    k(f"s_add_u32 s{sIT}, s{sIT}, 1")
    for m in range(3): k(mC(m))
    for i in range(4):
        k(mK(i)); [k(x) for x in rdw(i, 1)]
        k(mV(i)); [k(x) for x in rdw(i, 2)]
        k(mQ(i)); [k(x) for x in rdw(i, 0)]
        k(mG(i)); [k(x) for x in rdx(i) + adv(i)]
    k(f"s_cmp_lt_u32 s{sIT}, 6"); k("s_cbranch_scc1 L_p1_loop")
    stamp(k, 4)
    CK, CV, CQL, MEAN, RSTD, SXX = 176, 180, 184, 188, 190, 192
    CQ, MR, RR, TM = 112, 128, 144, 160
    for m in range(3): k(mC(m))
    k(mG(0)); k(f"v_lshrrev_b32 v{T1}, 4, v{LANE}"); k(f"v_lshlrev_b32 v{T1}, 6, v{T1}"); k(f"v_and_b32 v{T2}, 15, v{LANE}")
    k(mQ(0)); k(f"v_add_u32 v{T1}, v{T1}, v{T2}"); k(f"s_lshl_b32 s{sA}, s{sWV}, 2"); k(f"s_add_u32 s{sA}, s{sA}, {L_CS}")
    k(f"v_lshl_add_u32 v{T1}, v{T1}, 4, s{sA}")
    k(mG(1))
    for r in range(4): k(f"ds_write_b32 v{T1}, v{CS+r} offset:{r*256}")
    k(mQ(1))
    k(f"v_and_b32 v{T2}, 31, v{LANE}"); k(f"v_lshlrev_b32 v{T3}, 4, v{T2}"); k(f"v_add_u32 v{T3}, {L_CS}, v{T3}")
    k(f"s_lshl_b32 s{sB}, s{sWV}, 9"); k(f"s_add_u32 s{sB}, s{sB}, {L_ST}")
    k(mG(2)); k(mQ(2))
    k("s_waitcnt lgkmcnt(0)"); k("s_barrier")
    k(f"ds_read_b128 {v(CQL,4)}, v{T3}"); k(f"ds_read_b128 {v(CK,4)}, v{T3} offset:512"); k(f"ds_read_b128 {v(CV,4)}, v{T3} offset:1024")
    k(mG(3)); k(mQ(3))
    k(f"v_lshl_add_u32 v{T2}, v{T2}, 2, s{sB}")
    k(f"v_lshl_add_u32 v{T4}, v{LANE}, 2, s{sB}")
    k(f"v_lshrrev_b32 v{T3}, 5, v{LANE}"); k(f"v_lshl_add_u32 v{T3}, v{T3}, 4, s{sB}")
    k(mK(0))
    for x in (CQL, CK, CV):
        k(f"v_add_f32 v{x}, v{x}, v{x+1}"); k(f"v_add_f32 v{x+2}, v{x+2}, v{x+3}"); k(f"v_add_f32 v{x}, v{x}, v{x+2}")
        if x == CQL: k(f"ds_write_b32 v{T2}, v{CQL}"); k(mV(0))
    sel = []
    for lvl, (msk, stp) in enumerate(((0xaaaaaaaa, 1), (0xcccccccc, 2), (0xff00ff00, 4), (0xffff0000, 8))):
        sel.append(f"s_mov_b32 vcc_lo, {msk:#x}"); sel.append(f"s_mov_b32 vcc_hi, {msk:#x}")
        for r in range(0, 16, 2*stp): sel.append(f"v_cndmask_b32 v{G+r}, v{G+r}, v{G+r+stp}")
    mix(k, [mK(1), mV(1), mK(2)], sel)
    st = [f"v_mov_b32 v{G+1}, v{G}", f"v_mov_b32 v{MEAN}, v{Q+12}", f"v_mov_b32 v{RSTD}, v{Q+12}",
          "s_mov_b32 vcc_lo, 0xf0f0f0f0", "s_mov_b32 vcc_hi, 0xf0f0f0f0",
          f"v_permlane32_swap_b32 v{G}, v{G+1}", f"v_permlane32_swap_b32 v{RSTD}, v{MEAN}",
          f"v_cndmask_b32 v{SXX}, v{G}, v{G+1}",
          f"v_mul_f32 v{MEAN}, 0xbb124925, v{MEAN}",
          f"v_mul_f32 v{SXX}, {INVD}, v{SXX}",
          f"v_fma_f32 v{RSTD}, -v{MEAN}, v{MEAN}, v{SXX}",
          f"v_max_f32 v{RSTD}, 0, v{RSTD}", f"v_add_f32 v{RSTD}, {EPS5}, v{RSTD}", f"v_rsq_f32 v{RSTD}, v{RSTD}",
          "s_mov_b32 vcc_lo, 0", "s_mov_b32 vcc_hi, -1",
          f"v_cndmask_b32 v{SXX}, v{MEAN}, v{RSTD}",
          f"ds_write_b32 v{T4}, v{SXX} offset:128"]
    mix(k, [mV(2), mK(3), mV(3)], st)
    for q in range(4): k(f"ds_read_b128 {v(MR+4*q,4)}, v{T3} offset:{128+q*32}"); k(f"ds_read_b128 {v(RR+4*q,4)}, v{T3} offset:{256+q*32}")
    for q in range(4): k(f"ds_read_b128 {v(CQ+4*q,4)}, v{T3} offset:{q*32}")
    stamp(k, 5)
    EP, LG = 194, 196
    k(f"v_mov_b32 v{EP}, {EPS6}"); k(f"v_mov_b32 v{LG}, {LOG2E}")
    PK, PV, PQ = 200, 208, 216
    def phi(acc, dst, mean, cs, rstd, bt):
        o = []
        for r in range(0, 16, 2):
            A = v(acc+r,2)
            if bt:
                o.append(f"v_pk_fma_f32 {A}, {v(mean,2)}, {v(cs+r,2)}, {A} op_sel_hi:[0,1,1]")
                o.append(f"v_pk_fma_f32 {A}, {A}, {v(rstd,2)}, {v(EP,2)} op_sel_hi:[1,0,0]")
            else:
                o.append(f"v_pk_fma_f32 {A}, {v(mean+r,2)}, {v(cs,2)}, {A} op_sel_hi:[1,0,1]")
                o.append(f"v_pk_fma_f32 {A}, {A}, {v(rstd+r,2)}, {v(EP,2)} op_sel_hi:[1,1,0]")
        for r in range(0, 16, 2): o.append(f"v_pk_mul_f32 {v(TM+r,2)}, {v(acc+r,2)}, {v(LG,2)} op_sel_hi:[1,0]")
        for r in range(16):
            o.append(f"v_exp_f32_e64 v{TM+r}, v{TM+r} clamp"); o.append(f"v_max_f32 v{acc+r}, v{acc+r}, v{EP}")
        for r in range(0, 16, 2): o.append(f"v_pk_add_f32 {v(acc+r,2)}, {v(acc+r,2)}, {v(TM+r,2)}")
        for r in range(8): o.append(f"v_cvt_pk_bf16_f32 v{dst+r}, v{acc+2*r}, v{acc+2*r+1}")
        return o
    for x in phi(KK, PK, MR, CK, RR, False): k(x)
    for r in range(0, 16, 2): k(f"v_pk_fma_f32 {v(VV+r,2)}, {v(MR+r,2)}, {v(CV,2)}, {v(VV+r,2)} op_sel_hi:[1,0,1]")
    for r in range(0, 16, 2): k(f"v_pk_mul_f32 {v(VV+r,2)}, {v(VV+r,2)}, {v(RR+r,2)}")
    k("s_mov_b32 vcc_lo, 0x30000000"); k("s_mov_b32 vcc_hi, 0x30000000"); k(f"v_mov_b32 v{T0}, {ONES}")
    for r in range(8): k(f"v_cvt_pk_bf16_f32 v{PV+r}, v{VV+2*r}, v{VV+2*r+1}")
    for r in range(8): k(f"v_cndmask_b32 v{PV+r}, v{PV+r}, v{T0}")
    k(f"{MF32} {v(KK,16)}, {v(PK,4)}, {v(PV,4)}, 0")
    k(f"{MF32} {v(KK,16)}, {v(PK+4,4)}, {v(PV+4,4)}, {v(KK,16)}")
    k(f"v_and_b32 v{T1}, 31, v{LANE}")
    k(f"v_subrev_u32 v{T2}, 24, v{T1}"); k(f"v_lshlrev_b32 v{T2}, 2, v{T2}")
    k(f"v_mov_b32 v{T3}, 0x62735410")
    k(f"v_lshrrev_b32 v{T3}, v{T2}, v{T3}"); k(f"v_and_b32 v{T3}, 7, v{T3}"); k(f"v_add_u32 v{T3}, 24, v{T3}")
    k(f"v_cmp_le_u32 vcc, 24, v{T1}")
    k(f"v_cndmask_b32 v{T1}, v{T1}, v{T3}")
    k(f"v_and_b32 v{T2}, 32, v{LANE}"); k(f"v_add_u32 v{T1}, v{T1}, v{T2}")
    k(f"v_lshl_add_u32 v{T1}, v{T1}, 4, s{sRB}")
    qp = phi(Q, PQ, MEAN, CQ, RSTD, True)
    for x in qp[:8]: k(x)
    for q in range(4): k(f"ds_write_b128 v{T1}, {v(KK+4*q,4)} offset:{q*1024}")
    k(f"s_and_b32 s{sA}, s{sWV}, 1"); k(f"s_lshl_b32 s{sA}, s{sA}, 9"); k(f"s_lshr_b32 s{sB}, s{sWV}, 1"); k(f"s_lshl_b32 s{sB}, s{sB}, 11")
    k(f"s_add_u32 s{sA}, s{sA}, s{sB}"); k(f"s_add_u32 s{sA}, s{sA}, {L_RING}")
    k(f"v_lshrrev_b32 v{T2}, 1, v{LANE}"); k(f"v_lshl_add_u32 v{T3}, v{T2}, 4, s{sA}")
    k(f"v_and_b32 v{T2}, 1, v{LANE}"); k(f"v_lshl_add_u32 v{T3}, v{T2}, 10, v{T3}")
    k(f"v_lshrrev_b32 v{T2}, 4, v{LANE}"); k(f"v_lshlrev_b32 v{T2}, 12, v{T2}")
    k(f"v_and_b32 v{T4}, 15, v{LANE}"); k(f"v_lshl_add_u32 v{T2}, v{T4}, 4, v{T2}")
    for x in qp[8:24]: k(x)
    k("s_waitcnt lgkmcnt(0)"); k("s_barrier")
    for i in range(4): k(f"ds_read_b128 {v(VV+4*i,4)}, v{T3} offset:{i*16384}")
    for x in qp[24:40]: k(x)
    k(f"s_mov_b32 s48, {POLLMAX}")
    k("s_waitcnt vmcnt(7)")
    k("L_p1_poll:")
    k(f"v_and_b32 v{T0}, 0x80808080, v{FL}")
    k(f"v_cmp_ne_u32 vcc, 0x80808080, v{T0}")
    k("s_sub_u32 s48, s48, 1"); k("s_cbranch_scc1 L_p1_go")
    k("s_cbranch_vccz L_p1_go")
    k(f"v_lshlrev_b32 v{T0}, 2, v{LANE}")
    k(f"buffer_load_dword v{FL}, v{T0}, {s(SD,4)}, 0 offen sc1")
    k("s_waitcnt vmcnt(0)")
    k("s_branch L_p1_poll")
    k("L_p1_go:")
    k(f"s_lshl_b32 s{sA}, s{sHD}, 16"); k(f"s_lshl_b32 s{sB}, s{sWV}, 14"); k(f"s_add_u32 s{sA}, s{sA}, s{sB}")
    k(f"s_lshl_b32 s{sB}, s{sTB}, 8"); k(f"s_add_u32 s{sA}, s{sA}, s{sB}")
    for i in range(2):
        for r in (0, 2): k(f"v_pk_add_f32 {v(VV+8*i+r,2)}, {v(VV+8*i+r,2)}, {v(VV+8*i+4+r,2)}")
    for r in (0, 2): k(f"v_pk_add_f32 {v(VV+r,2)}, {v(VV+r,2)}, {v(VV+8+r,2)}")
    for r in range(4): k(f"v_max_u32 v{VV+r}, 1, v{VV+r}")
    k(f"buffer_store_dwordx4 {v(VV,4)}, v{T2}, {s(SWS,4)}, s{sA} offen sc1")
    k(f"s_mul_i32 s{sXC}, s{sXC}, 0x01010101"); k(f"v_cmp_eq_u32 vcc, s{sXC}, v{FL}")
    k(f"s_lshl_b32 s{sA}, s3, 3"); k(f"s_lshr_b64 vcc, vcc, s{sA}"); k(f"s_and_b32 s{sXC}, vcc_lo, 0x7f")
    for x in qp[40:]: k(x)
    k("s_mov_b32 exec_lo, 0"); k(f"v_mov_b32 v{PQ+6}, 0"); k(f"v_mov_b32 v{PQ+7}, 0"); k("s_mov_b64 exec, -1")
    k(f"s_lshl_b32 s{sA}, s{sTB}, 2"); k(f"s_add_u32 s{sA}, s{sA}, s{sWV}"); k(f"s_lshl_b32 s{sA}, s{sA}, 4")
    k(f"s_add_u32 s{sA}, s{sA}, s{sHD}"); k(f"s_lshl_b32 s{sA}, s{sA}, 11"); k(f"s_add_u32 s{sA}, s{sA}, {WS_PQ}")
    k(f"buffer_store_dwordx4 {v(PQ,4)}, v{VL16}, {s(SWS,4)}, s{sA} offen sc1")
    k(f"buffer_store_dwordx4 {v(PQ+4,4)}, v{VL16}, {s(SWS,4)}, s{sA} offen offset:1024 sc1")
    stamp(k, 6)
    A0, A1, A2, A3 = 8, 9, 10, 11
    k(f"s_mul_i32 s{sA}, s{sWV}, 14336"); k(f"s_and_b32 s{sB}, s{sWV}, 1")
    k(f"v_bfe_u32 v{T1}, v{LANE}, 4, 1"); k(f"v_lshlrev_b32 v{T1}, 5, v{T1}")
    k(f"v_and_b32 v{T2}, 1, v{LANE}"); k(f"v_lshl_add_u32 v{T1}, v{T2}, 4, v{T1}")
    k(f"v_bfe_u32 v{T2}, v{LANE}, 1, 1"); k(f"v_lshl_add_u32 v{T1}, v{T2}, 3, v{T1}")
    k(f"v_add_u32 v{T1}, s{sA}, v{T1}")
    k(f"v_bfe_u32 v{T2}, v{LANE}, 2, 2"); k(f"v_lshrrev_b32 v{T3}, 5, v{LANE}")
    k(f"v_lshl_add_u32 v{A0}, v{T3}, 2, v{T2}"); k(f"v_lshl_add_u32 v{A0}, v{A0}, 7, v{T1}")
    k(f"v_bfe_u32 v{T2}, v{LANE}, 3, 1"); k(f"v_xor_b32 v{T2}, s{sB}, v{T2}")
    k(f"v_lshl_add_u32 v{A0}, v{T2}, 6, v{A0}"); k(f"v_xor_b32 v{A1}, 64, v{A0}")
    k(f"v_bfe_u32 v{T2}, v{LANE}, 2, 1"); k(f"v_lshl_add_u32 v{A2}, v{T3}, 1, v{T2}")
    k(f"v_lshl_add_u32 v{A2}, v{A2}, 7, v{T1}")
    k(f"v_xor_b32 v{T2}, s{sB}, v{T3}"); k(f"v_lshl_add_u32 v{A2}, v{T2}, 6, v{A2}")
    k(f"v_xor_b32 v{A3}, 64, v{A2}")
    k("s_waitcnt vmcnt(3)")
    for hd in range(4):
        for cg in range(2):
            ar, al = (A0, A2) if cg == 0 else (A1, A3)
            b = hd*3584; wf = 16*hd + 8*cg
            for j in range(3): k(f"ds_read_b64_tr_b16 {a(wf+2*j,2)}, v{ar} offset:{b+1024*j}")
            k(f"ds_read_b64_tr_b16 {a(wf+6,2)}, v{al} offset:{b+3072}")
    k(f"s_cmp_eq_u32 s{sXC}, {0x7f if (OPT['fast'] and OPT['map']) else 0x100}")
    for sr in (SP, SC): k(f"s_mov_b64 {s(sr,2)}, {s(SWS,2)}")
    k(f"s_cselect_b32 s{SP+2}, s{SWS+2}, 0"); k(f"s_cselect_b32 s{SC+2}, 0, s{SWS+2}")
    k(f"s_lshl_b32 s{sA}, s{sTB}, 2"); k(f"s_add_u32 s{sA}, s{sA}, s{sWV}"); k(f"s_lshl_b32 s{sA}, s{sA}, 4")
    k(f"s_add_u32 s{sA}, s{sA}, s{sHD}"); k(f"s_lshl_b32 s{sA}, s{sA}, 2"); k(f"s_add_u32 s{sA}, s{sA}, {FLQ}")
    k("s_waitcnt lgkmcnt(0)"); k("s_barrier")
    k("s_waitcnt vmcnt(0)")
    k("s_mov_b64 exec, 1"); k(f"v_mov_b32 v{T0}, 1")
    k(f"buffer_store_dword v{T0}, off, {s(SWS,4)}, s{sA} sc1")
    k("s_mov_b64 exec, -1")
    k(f"s_cmp_lg_u32 s{sWV}, 0"); k("s_cbranch_scc1 L_p1_nc")
    k.cond_begin()
    R = 24
    k(f"s_lshl_b32 s{sA}, s{sHD}, 4"); k(f"s_add_u32 s{sA}, s{sA}, s{sTB}"); k(f"s_lshl_b32 s{sB}, s{sA}, 7"); k(f"s_lshl_b32 s{sA}, s{sA}, 12")
    k(f"s_add_u32 s{sB}, s{sB}, {WS_KVF}")
    k(f"v_and_b32 v{T1}, 15, v{LANE}"); k(f"v_lshrrev_b32 v{T2}, 4, v{LANE}"); k(f"v_lshl_add_u32 v{T1}, v{T1}, 1, v{T2}"); k(f"v_lshlrev_b32 v{T1}, 2, v{T1}")
    k(f"s_mov_b32 s48, {POLLMAX}")
    k("L_red:")
    for i in range(4): k(f"buffer_load_dwordx4 {v(R+4*i,4)}, v{VL16}, {s(SWS,4)}, s{sA} offen offset:{i*1024} sc1")
    k("s_sub_u32 s48, s48, 1")
    k(f"v_min3_u32 v{T0}, v{R}, v{R+1}, v{R+2}")
    for r in range(3, 15, 2): k(f"v_min3_u32 v{T0}, v{T0}, v{R+r}, v{R+r+1}")
    k(f"v_min_u32 v{T0}, v{T0}, v{R+15}")
    k(f"v_cmp_eq_u32 vcc, 0, v{T0}")
    k("s_cbranch_scc1 L_redx")
    k("s_cbranch_vccnz L_red")
    k("L_redx:")
    for i in range(2):
        for r in (0, 2): k(f"v_pk_add_f32 {v(R+8*i+r,2)}, {v(R+8*i+r,2)}, {v(R+8*i+4+r,2)}")
    for r in (0, 2): k(f"v_pk_add_f32 {v(R+r,2)}, {v(R+r,2)}, {v(R+8+r,2)}")
    k(f"v_permlane32_swap_b32 v{R}, v{R+1}"); k(f"v_permlane32_swap_b32 v{R+2}, v{R+3}")
    k(f"v_add_f32 v{R}, v{R}, v{R+1}"); k(f"v_add_f32 v{R+2}, v{R+2}, v{R+3}")
    k(f"v_permlane16_swap_b32 v{R}, v{R+2}")
    k(f"v_add_f32 v{R}, v{R}, v{R+2}")
    k(f"v_mov_b32 v{R+1}, v{R}")
    k(f"v_permlane32_swap_b32 v{R}, v{R+1}")
    k(f"v_cvt_pk_bf16_f32 v{R}, v{R}, v{R+1}"); k(f"v_max_u32 v{R}, 1, v{R}")
    k("s_mov_b32 exec_hi, 0")
    k(f"buffer_store_dword v{R}, v{T1}, {s(SWS,4)}, s{sB} offen sc1")
    k("s_mov_b32 exec_hi, -1")
    k.cond_end()
    k("L_p1_nc:")
    stamp(k, 7)
    k(f"s_cmp_ge_u32 s{sJ}, 28"); k("s_cbranch_scc1 L_fin")
    def tail(k):
        k("L_p1_wo:")
        if OPT.get("touch"):
            k(f"buffer_load_dword v226, v224, {s(SWS,4)}, 0 offen sc1"); k("v_mov_b32 v224, v225")
        k(f"v_lshlrev_b32 v{T0}, 2, v{LANE}")
        k(f"buffer_load_dword v{FL}, v{T0}, {s(SD,4)}, 0 offen sc1")
        for i in range(7):
            k(f"s_add_u32 m0, s{sWOl}, {i*1024}")
            k(f"buffer_load_dwordx4 v{VWO}, {s(SWO,4)}, s{sWOo} offen lds")
            k(f"s_add_u32 s{sWOo}, s{sWOo}, {8*896}")
        k(f"s_add_u32 s{sWOl}, s{sWOl}, 7168")
        k("s_branch L_p1_body")
    return tail

VG, VU = 12, 13
def gu_setup(k):
    k(f"v_lshrrev_b32 v{T1}, 3, v{LANE}"); k(f"v_mul_u32_u24 v{VG}, 3584, v{T1}")
    k(f"v_bfe_u32 v{T1}, v{LANE}, 4, 1"); k(f"v_lshlrev_b32 v{T1}, 1, v{T1}")
    k(f"v_and_b32 v{T2}, 7, v{LANE}"); k(f"v_xor_b32 v{T1}, v{T1}, v{T2}")
    k(f"v_xor_b32 v{T2}, 4, v{T1}")
    k(f"v_lshl_add_u32 v{VU}, v{T2}, 4, v{VG}"); k(f"v_lshl_add_u32 v{VG}, v{T1}, 4, v{VG}")
    k(f"s_mov_b32 s50, s{sROT}")
    k(f"s_mul_i32 s51, s{sWV}, {16*3584}"); k(f"s_lshl_b32 s52, s{sPN}, 7"); k("s_add_u32 s51, s51, s52")
    k(f"s_lshl_b32 s52, s{sWV}, 11")
GUN = [0]
def gu_issue(k, n):
    for _ in range(n):
        c = GUN[0]; GUN[0] += 1
        k(f"s_mul_i32 s53, s50, {64*3584}"); k("s_add_u32 s53, s53, s51"); k(f"s_add_u32 s54, s53, {8*3584}")
        for m in range(2):
            for j in range(2):
                k(f"s_add_u32 m0, s52, {c*8192 + m*57344 + j*1024}")
                k(f"buffer_load_dwordx4 v{VU if m else VG}, {s(SU if m else SG,4)}, s{54 if j else 53} offen {OPT.get('gm','')} lds ;@gu")
        k("s_add_u32 s50, s50, 1"); k("s_cmp_eq_u32 s50, 7"); k("s_cselect_b32 s50, 0, s50")

L_EX = 114688
EXA = 72
VWA, VWB, WA0, WA1 = 76, 77, 78, 79
CA = 112
def exchange(k):
    for i in range(1, 4):
        k(f"s_xor_b32 s48, s{sWV}, {i}"); k("s_mul_i32 s48, s48, 12288"); k(f"s_add_u32 s48, s48, {L_EX + (i-1)*4096}")
        k(f"v_add_u32 v{EXA+i}, s48, v{VL16}")
    k(f"v_add_u32 v{EXA}, s{sRING}, v{VL16}")
def exchange_w(ACC, i):
    return [f"ds_write_b128 v{EXA+i}, {v(ACC+16*i+4*q,4)} offset:{q*1024}" for q in range(4)]
def exchange_r(k, ACC):
    k("s_waitcnt lgkmcnt(0)"); k("s_barrier")
    for i in range(1, 4):
        for q in range(4): k(f"ds_read_b128 {v(ACC+16*i+4*q,4)}, v{EXA} offset:{(i-1)*4096+q*1024}")
def unpack(ACC, RES):
    o = []
    for r in range(8): o += [f"v_lshlrev_b32 v{ACC+2*r}, 16, v{RES+r}", f"v_and_b32 v{ACC+2*r+1}, 0xffff0000, v{RES+r}"]
    return o
def sum_parts(k, ACC):
    for i in range(1, 4):
        for r in range(0, 16, 2): k(f"v_pk_add_f32 {v(ACC+r,2)}, {v(ACC+r,2)}, {v(ACC+16*i+r,2)}")
def st2(op, data, addr, soff, mods=""):
    return [f"{op} {data}, {addr}, {s(SP,4)}, {soff} {mods} {OPT.get('sm','')}", f"{op} {data}, {addr}, {s(SC,4)}, {soff} {mods} sc1"]
def flag_store(k, soff_reg):
    k("s_mov_b64 exec, 1"); k(f"v_mov_b32 v{T0}, 1")
    for x in st2("buffer_store_dword", f"v{T0}", "off", f"s{soff_reg}"): k(x)
    k("s_mov_b64 exec, -1")

def wd_setup(k):
    k(f"v_lshrrev_b32 v{T1}, 3, v{LANE}"); k(f"v_mul_u32_u24 v{VWA}, 896, v{T1}")
    k(f"v_bfe_u32 v{T1}, v{LANE}, 4, 1"); k(f"v_lshlrev_b32 v{T1}, 2, v{T1}")
    k(f"v_and_b32 v{T2}, 7, v{LANE}"); k(f"v_xor_b32 v{T1}, v{T1}, v{T2}")
    k(f"v_lshl_add_u32 v{VWA}, v{T1}, 4, v{VWA}"); k(f"v_add_u32 v{VWB}, {8*896-1024}, v{VWA}")
    k(f"s_mul_i32 s{sWDB}, s{sWV}, {448*896}"); k(f"s_lshl_b32 s48, s{sCT}, 7"); k(f"s_add_u32 s{sWDB}, s{sWDB}, s48")
    k(f"s_add_u32 s{sWDE}, s{sWDB}, {448*896}")
    k(f"s_mul_i32 s{sWD}, s{sROT}, {64*896}"); k(f"s_add_u32 s{sWD}, s{sWD}, s{sWDB}")
    k(f"s_mul_i32 s{sRING}, s{sWV}, 12288"); k(f"s_add_u32 s{sRING}, s{sRING}, {L_EX}")
    k(f"s_and_b32 s49, s{sWV}, 1")
    k(f"v_bfe_u32 v{T1}, v{LANE}, 4, 1"); k(f"v_lshlrev_b32 v{T1}, 5, v{T1}")
    k(f"v_and_b32 v{T2}, 1, v{LANE}"); k(f"v_lshl_add_u32 v{T1}, v{T2}, 4, v{T1}")
    k(f"v_bfe_u32 v{T2}, v{LANE}, 1, 1"); k(f"v_lshl_add_u32 v{T1}, v{T2}, 3, v{T1}")
    k(f"v_add_u32 v{T1}, s{sRING}, v{T1}")
    k(f"v_bfe_u32 v{T2}, v{LANE}, 2, 2"); k(f"v_lshrrev_b32 v{T3}, 5, v{LANE}")
    k(f"v_lshl_add_u32 v{WA0}, v{T3}, 3, v{T2}"); k(f"v_lshl_add_u32 v{WA0}, v{WA0}, 7, v{T1}")
    k(f"v_bfe_u32 v{T2}, v{LANE}, 3, 1"); k(f"v_xor_b32 v{T2}, s49, v{T2}")
    k(f"v_lshl_add_u32 v{WA0}, v{T2}, 6, v{WA0}"); k(f"v_xor_b32 v{WA1}, 64, v{WA0}")
RING = 5
def wd_reg(j): return 96 + 8*j if j < 20 else (32 + 8*(j-20) if j < 24 else 64 + 8*(j-24))
def wd_dma(j):
    pre = (f"@lwait wr{j-RING}\n" if j >= RING else "") + f"s_add_u32 m0, s{sRING}, {(j%RING)*2048}\n"
    post = f"\ns_add_u32 s{sWD}, s{sWD}, {16*896}"
    if (j & 3) == 3: post += f"\ns_cmp_eq_u32 s{sWD}, s{sWDE}\ns_cselect_b32 s{sWD}, s{sWDB}, s{sWD}"
    return [pre + f"buffer_load_dwordx4 v{VWA}, {s(SDN,4)}, s{sWD} offen lds ;@wd{j}",
            f"buffer_load_dwordx4 v{VWB}, {s(SDN,4)}, s{sWD} offen offset:1024 lds ;@wd{j}" + post]
def wd_rd(j):
    o = [f"ds_read_b64_tr_b16 {a(wd_reg(j)+4*cg+2*hh,2)}, v{WA1 if cg else WA0} offset:{(j%RING)*2048+hh*512} ;@wr{j}" for cg in range(2) for hh in range(2)]
    o[0] = f"@wait wd{j}\n" + o[0]
    return o

HR = 16
sTG = 100
def phase2(k):
    ACC, PQ, KVB, OD, OP = 128, 192, 80, 24, 56
    gu_setup(k)
    k(f"s_lshr_b32 s48, s{sWV}, 1"); k(f"s_lshl_b32 s{sTG}, s{sTT}, 1"); k(f"s_add_u32 s{sTG}, s{sTG}, s48")
    k(f"v_and_b32 v{T1}, 31, v{LANE}"); k(f"v_mul_u32_u24 v{T1}, 896, v{T1}")
    k(f"v_lshrrev_b32 v{T2}, 5, v{LANE}"); k(f"v_lshl_add_u32 v14, v{T2}, 4, v{T1}")
    k(f"s_mul_i32 s101, s{sTG}, 28672"); k(f"s_lshl_b32 s48, s{sCT}, 7"); k("s_add_u32 s101, s101, s48")
    k(f"s_and_b32 s48, s{sWV}, 1"); k("s_lshl_b32 s48, s48, 6"); k("s_add_u32 s101, s101, s48")
    k(f"buffer_load_dwordx4 {v(HR,4)}, v14, {s(SX,4)}, s101 offen")
    k(f"buffer_load_dwordx4 {v(HR+4,4)}, v14, {s(SX,4)}, s101 offen offset:32")
    gu_issue(k, OPT["gu"][0])
    wd_setup(k)
    exchange(k)
    k(f"v_mov_b32 v{OP+7}, 0"); k(f"v_mov_b32 v{OP+15}, 0")
    k(f"s_lshl_b32 s56, s{sWV}, 13"); k(f"s_add_u32 s59, s56, {WS_PQ}"); k(f"s_add_u32 s56, s56, {WS_KVF}"); k("s_add_u32 s55, s56, 4096")
    k(f"s_lshl_b32 s57, s{sTG}, 15"); k("s_add_u32 s57, s57, s59")
    k(f"s_xor_b32 s58, s{sTG}, 1"); k("s_lshl_b32 s58, s58, 15"); k("s_add_u32 s58, s58, s59")
    k(f"v_and_b32 v{T1}, 3, v{LANE}"); k(f"v_bfe_u32 v{T2}, v{LANE}, 2, 1"); k(f"v_lshl_add_u32 v{T1}, v{T2}, 4, v{T1}"); k(f"v_lshlrev_b32 v{T1}, 2, v{T1}")
    k(f"s_lshl_b32 s59, s{sTT}, 7"); k(f"s_lshl_b32 s48, s{sWV}, 4"); k("s_add_u32 s59, s59, s48"); k(f"s_add_u32 s59, s59, {FLQ}")
    poll(k, "pq", T2, T1, "s59", 1, "0xff")
    for hd in range(4):
        for t in range(2):
            for ks in range(2):
                k(f"buffer_load_dwordx4 {v(PQ+16*hd+8*t+4*ks,4)}, v{VL16}, {s(SWS,4)}, s{57+t} offen offset:{(hd&1)*2048+ks*1024} sc1")
        if hd == 1: k("s_add_u32 s57, s57, 4096"); k("s_add_u32 s58, s58, 4096")
    for x in unpack(ACC, HR): k(x)
    stamp(k, 8)
    if OPT.get("kvl"):
        k(f"s_mov_b32 s48, {POLLMAX}")
        k("L_kvl:")
        if OPT["kvl"] == 1: k(f"buffer_load_dwordx4 {v(KVB,4)}, v{VL16}, {s(SWS,4)}, s56 offen sc1")
        else: k(f"buffer_load_dword v{KVB}, off, {s(SWS,4)}, s56 sc1")
        k("s_sub_u32 s48, s48, 1")
        k(f"v_cmp_eq_u32 vcc, 0, v{KVB}")
        k("s_cbranch_scc1 L_kvlx")
        k("s_cbranch_vccnz L_kvl")
        k("L_kvlx:")
    k(f"s_mov_b32 s48, {POLLMAX}")
    k("L_kvf:")
    for hd in range(4):
        for ks in range(2):
            k(f"buffer_load_dwordx4 {v(KVB+8*hd+4*ks,4)}, v{VL16}, {s(SWS,4)}, s{56 if hd < 2 else 55} offen offset:{(hd&1)*2048+ks*1024} sc1")
    k("s_sub_u32 s48, s48, 1")
    k(f"v_min3_u32 v{T0}, v{KVB}, v{KVB+1}, v{KVB+2}")
    for r in range(3, 31, 2): k(f"v_min3_u32 v{T0}, v{T0}, v{KVB+r}, v{KVB+r+1}")
    k(f"v_min_u32 v{T0}, v{T0}, v{KVB+31}")
    k(f"v_cmp_eq_u32 vcc, 0, v{T0}")
    k("s_cbranch_scc1 L_kvfx")
    k("s_cbranch_vccnz L_kvf")
    k("L_kvfx:")
    stamp(k, 9)
    def mo(u):
        hd, t = u >> 1, u & 1; od = v(OD+16*(u&1),16)
        return [f"{MF32} {od}, {v(KVB+8*hd,4)}, {v(PQ+16*hd+8*t,4)}, 0", f"{MF32} {od}, {v(KVB+8*hd+4,4)}, {v(PQ+16*hd+8*t+4,4)}, {od}"]
    def vo(u):
        od = OD+16*(u&1); op = OP + 8*(u&1)
        o = [f"v_add_f32 v{T1}, {EPS6}, v{od+15}", f"v_rcp_f32 v{T1}, v{T1}"]
        for r in range(7):
            o += [f"v_mul_f32 v{od+2*r}, v{od+2*r}, v{T1}", f"v_mul_f32 v{od+2*r+1}, v{od+2*r+1}, v{T1}"]
        for r in range(7): o.append(f"v_cvt_pk_bf16_f32 v{op+r}, v{od+2*r}, v{od+2*r+1}")
        return o
    def mw(u):
        hd, t = u >> 1, u & 1; op = OP + 8*(u&1); o = []
        for ks in range(2):
            for cg in range(2):
                acc = v(ACC+16*(2*t+cg),16)
                o.append(f"{MF32} {acc}, {a(16*hd+8*cg+4*ks,4)}, {v(op+4*ks,4)}, {'0' if (hd == 0 and ks == 0 and t+cg > 0) else acc}")
        return o
    for x in mo(0) + mo(1): k(x)
    gu_issue(k, OPT["gu"][1])
    for x in vo(0): k(x)
    for u in range(8):
        mf = mw(u) + (mo(u+2) if u + 2 < 8 else [])
        fl = (vo(u+1) if u + 1 < 8 else [])
        if u == 7: fl = ["", "", ""] + exchange_w(ACC, 1)
        mix(k, mf, fl)
    stamp(k, 10)
    for x in exchange_w(ACC, 2) + exchange_w(ACC, 3): k(x)
    exchange_r(k, ACC)
    k(f"s_mul_i32 s56, s{sTG}, 28"); k(f"s_lshl_b32 s48, s{sCT}, 2"); k("s_add_u32 s56, s56, s48")
    k(f"s_and_b32 s49, s{sWV}, 1"); k("s_lshl_b32 s48, s49, 1"); k("s_add_u32 s56, s56, s48"); k("s_lshl_b32 s56, s56, 10")
    k(f"s_add_u32 s56, s56, {WS_H}")
    k(f"s_mul_i32 s57, s{sTG}, 14"); k(f"s_lshl_b32 s48, s{sCT}, 1"); k("s_add_u32 s57, s57, s48"); k("s_add_u32 s57, s57, s49")
    k("s_lshl_b32 s57, s57, 8"); k(f"s_add_u32 s57, s57, {WS_ST}")
    k(f"s_lshl_b32 s58, s{sTT}, 5"); k(f"s_lshl_b32 s48, s{sCT}, 2"); k("s_add_u32 s58, s58, s48"); k(f"s_add_u32 s58, s58, s{sWV}")
    k("s_lshl_b32 s58, s58, 2"); k(f"s_add_u32 s58, s58, {FL2}")
    sum_parts(k, ACC)
    for r in range(8): k(f"v_cvt_pk_bf16_f32 v{HR+r}, v{ACC+2*r}, v{ACC+2*r+1}")
    for x in st2("buffer_store_dwordx4", v(HR,4), f"v{VL16}", "s56", "offen") + st2("buffer_store_dwordx4", v(HR+4,4), f"v{VL16}", "s56", "offen offset:1024"): k(x)
    S1, S2 = 8, 9
    k(f"s_mov_b32 s48, {ONES}")
    k(f"v_mov_b32 v{S1}, 0"); k(f"v_mov_b32 v{S2}, 0")
    for r in range(8):
        k(f"v_dot2c_f32_bf16 v{S1}, s48, v{HR+r}"); k(f"v_dot2c_f32_bf16 v{S2}, v{HR+r}, v{HR+r}")
    k(f"v_mov_b32 v10, v{S1}"); k(f"v_mov_b32 v11, v{S2}")
    k(f"v_permlane32_swap_b32 v{S1}, v10"); k(f"v_permlane32_swap_b32 v{S2}, v11")
    k(f"v_add_f32 v{S1}, v{S1}, v10"); k(f"v_add_f32 v{S2}, v{S2}, v11")
    k(f"v_lshlrev_b32 v{T1}, 3, v{LANE}")
    k("s_mov_b32 exec_hi, 0")
    for x in st2("buffer_store_dwordx2", v(S1,2), f"v{T1}", "s57", "offen"): k(x)
    k("s_mov_b32 exec_hi, -1")
    k("s_waitcnt vmcnt(0)")
    flag_store(k, 58)
    stamp(k, 11)

def colsum(k):
    AD, SEL, CS, TA, BUF = 24, 28, 44, 48, 128
    for b in range(4): k(f"v_add_u32 v{TA+b}, s52, v{AD+b}")
    k(f"v_and_b32 v{T1}, 15, v{LANE}"); k(f"v_bfe_u32 v{T2}, v{LANE}, 4, 1"); k(f"v_sub_u32 v{T1}, v{T1}, v{T2}")
    k(f"v_mov_b32 v{T2}, {ONES}"); k(f"v_mov_b32 v{T3}, 0")
    for b in range(4):
        k(f"v_cmp_eq_u32 vcc, {2*b}, v{T1}")
        for i in range(4): k(f"v_cndmask_b32 v{SEL+4*b+i}, v{T3}, v{T2}")
    k("@wait gu")
    def cr(c): return [f"ds_read_b64_tr_b16 {v(BUF+16*c+4*b+2*hh,2)}, v{TA+b} offset:{c*8192+hh*512}" for b in range(4) for hh in range(2)]
    for x in cr(0): k(x)
    for c in range(7):
        for x in (cr(c+1) if c < 6 else []): k(x)
        for b in range(4): k(f"{MF16} {v(CS,4)}, {v(SEL+4*b,4)}, {v(BUF+16*c+4*b,4)}, {'0' if (c == 0 and b == 0) else v(CS,4)}")
    k(f"v_and_b32 v{T2}, 15, v{LANE}"); k(f"v_lshlrev_b32 v{T2}, 4, v{T2}")
    k(f"v_bfe_u32 v{T3}, v{LANE}, 4, 1"); k(f"v_lshl_add_u32 v{T2}, v{T3}, 3, v{T2}")
    k(f"v_lshrrev_b32 v{T3}, 5, v{LANE}"); k(f"v_lshl_add_u32 v{T2}, v{T3}, 9, v{T2}")
    k(f"s_add_u32 s48, s{sRING}, 10240"); k(f"v_add_u32 v{T2}, s48, v{T2}")
    k(f"ds_write2_b32 v{T2}, v{CS}, v{CS+2} offset0:0 offset1:1")
    k(f"ds_write2_b32 v{T2}, v{CS+1}, v{CS+3} offset0:64 offset1:65")
    k(f"v_and_b32 v{T3}, 31, v{LANE}"); k(f"v_lshlrev_b32 v{T3}, 4, v{T3}"); k(f"v_add_u32 v{T3}, {L_EX+10240}, v{T3}")
    k("s_waitcnt lgkmcnt(0)"); k("s_barrier")
    for p in range(4): k(f"ds_read_b128 {v(SEL+4*p,4)}, v{T3} offset:{p*12288}")
    for p in range(1, 4):
        for r in (0, 2): k(f"v_pk_add_f32 {v(SEL+r,2)}, {v(SEL+r,2)}, {v(SEL+4*p+r,2)}")
    for b in range(4): k(f"v_cvt_pk_bf16_f32 v{SEL+4+b}, v{SEL+b}, v{SEL+b}")
    for b in range(4): k(f"v_lshlrev_b32 v{SEL+4+b}, 16, v{SEL+4+b}")
    for b in range(4): k(f"v_sub_f32 v{SEL+4+b}, v{SEL+b}, v{SEL+4+b}")
    for b in range(4):
        for i in range(2): k(f"v_cvt_pk_bf16_f32 v{CA+2*b+i}, v{SEL+b}, v{SEL+4+b}")
    k(f"v_mov_b32 v{CA+8}, 0"); k(f"v_mov_b32 v{CA+9}, 0")

def phase3(k):
    AD, STT, MB, R2, VH1 = 24, 28, 56, 8, 15
    WF, ACC = 80, 128
    gu_issue(k, OPT["gu"][2])
    nw0 = OPT["wdpre"]
    for j in range(nw0, nw0 + RING):
        for x in wd_dma(j): k(x)
    k(f"v_bfe_u32 v{T1}, v{LANE}, 4, 1"); k(f"v_mul_u32_u24 v{T0}, 57344, v{T1}")
    k(f"v_lshrrev_b32 v{T2}, 5, v{LANE}"); k(f"v_lshl_add_u32 v{T0}, v{T2}, 10, v{T0}")
    k(f"v_bfe_u32 v{T2}, v{LANE}, 2, 2"); k(f"v_lshl_add_u32 v{T0}, v{T2}, 7, v{T0}")
    k(f"v_and_b32 v{T2}, 1, v{LANE}"); k(f"v_lshl_add_u32 v{T0}, v{T2}, 4, v{T0}")
    k(f"v_bfe_u32 v{T2}, v{LANE}, 1, 1"); k(f"v_lshl_add_u32 v{T0}, v{T2}, 3, v{T0}")
    k(f"v_bfe_u32 v{T2}, v{LANE}, 3, 2"); k(f"v_lshl_add_u32 v{T0}, v{T2}, 5, v{T0}")
    for b in range(4): k(f"v_xor_b32 v{AD+b}, {b*32}, v{T0}")
    colsum(k)
    k(f"s_lshl_b32 s53, s{sTB3}, 2"); k(f"s_add_u32 s53, s53, s{sWV}")
    k(f"s_mul_i32 s55, s53, {2*28672}"); k(f"s_add_u32 s55, s55, {WS_H}")
    k(f"s_lshl_b32 s54, s{sROT}, 12"); k("s_add_u32 s54, s54, s55"); k("s_add_u32 s52, s55, 28672")
    k(f"v_add_u32 v{VH1}, 28672, v{VL16}")
    k(f"s_mul_i32 s56, s53, {2*3584}"); k(f"s_add_u32 s56, s56, {WS_ST}"); k("s_add_u32 s57, s56, 3584")
    k(f"s_mul_i32 s58, s53, {2*112}"); k(f"s_lshl_b32 s48, s{sPN}, 2"); k("s_add_u32 s58, s58, s48"); k("s_lshl_b32 s58, s58, 10")
    k(f"s_add_u32 s58, s58, {WS_HH}"); k(f"s_add_u32 s59, s58, {112*1024}")
    k(f"s_lshl_b32 s51, s53, 7"); k(f"s_add_u32 s50, s51, {FL2}")
    k(f"s_lshl_b32 s48, s{sPN}, 2"); k("s_add_u32 s51, s51, s48"); k(f"s_add_u32 s51, s51, {FL3}")
    VST = T4
    k(f"v_lshrrev_b32 v{T3}, 5, v{LANE}")
    if OPT.get("touch") == 2:
        k(f"v_mul_u32_u24 v{T2}, {112*1024}, v{T3}"); k(f"v_and_b32 v{T1}, 31, v{LANE}"); k(f"v_lshl_add_u32 v{T2}, v{T1}, 7, v{T2}")
        k(f"buffer_load_dword v{T2}, v{T2}, {s(SWS,4)}, s58 offen sc1")
    k(f"v_and_b32 v{T1}, 31, v{LANE}"); k(f"v_lshlrev_b32 v{VST}, 3, v{T1}")
    k(f"v_mul_u32_u24 v{T3}, 1792, v{T3}"); k(f"v_add_u32 v{VST}, v{VST}, v{T3}")
    k(f"v_lshlrev_b32 v{T1}, 2, v{T1}")
    for i in range(8): k(f"v_mov_b32 v{MB+i}, 0")
    KO = 20
    steps = [(ks, b) for ks in range(KO) for b in range(4)] + [(ks, b) for b in range(4) for ks in range(KO, 28)]
    RD = 8; AH = 6
    def rw(n):
        ks, b = steps[n]
        return [f"ds_read_b64_tr_b16 {v(WF+4*(n%RD)+2*hh,2)}, v{AD+b} offset:{ks*2048+hh*512}" for hh in range(2)]
    for n in range(AH):
        for x in rw(n): k(x)
    stamp(k, 12)
    poll(k, "p3", T2, T1, "s50", 1, "0x0fffffff")
    stamp(k, 13)
    if STAMP: k("s_waitcnt lgkmcnt(0)")
    hreg = lambda ks, t: 32*((ks//4) % 3) + 8*(ks & 3) + 4*t
    mf = []; seen = set(); last = {}; bstart = {}
    for n, (ks, b) in enumerate(steps):
        rd = rw(n+AH) if n + AH < len(steps) else ["", ""]
        if ks == KO: bstart[b] = len(mf)
        for t in range(2):
            acc = v(ACC+64*t+16*b,16)
            last[(ks, t)] = len(mf)
            mf.append((f"{MF32} {acc}, {v(WF+4*(n%RD),4)}, {a(hreg(ks,t),4)}, {'0' if (b,t) not in seen else acc}", rd[t]))
            seen.add((b, t))
        if ks == KO + 3:
            for t in range(2):
                acc = v(ACC+64*t+16*b,16)
                mf.append((f"{MF32} {acc}, {v(CA+2*b,4)}, {v(MB+4*t,4)}, {acc}", ""))
    hl = []
    for ks in range(28):
        for t in range(2):
            x = f"buffer_load_dwordx4 {a(hreg(ks,t),4)}, v{VH1 if t else VL16}, {s(SWS,4)}, s54 offen offset:{(ks&3)*1024} {OPT.get('lm','sc1')}"
            if (ks & 3) == 3 and t == 1: x += "\ns_add_u32 s54, s54, 4096\ns_cmp_eq_u32 s54, s52\ns_cselect_b32 s54, s55, s54"
            hl.append((last[(ks-12, t)] if ks >= 12 else -1, x))
    stl = [f"buffer_load_dwordx2 {v(STT+14*t+2*p,2)}, v{VST}, {s(SWS,4)}, s{56+t} offen offset:{p*256} sc1" for t in range(2) for p in range(7)]
    def stats():
        o = []
        for t in range(2):
            sb = STT + 14*t; mb = MB + 4*t
            for p in range(1, 7): o += [f"v_add_f32 v{sb}, v{sb}, v{sb+2*p}", f"v_add_f32 v{sb+1}, v{sb+1}, v{sb+2*p+1}"]
            o += [f"v_mov_b32 v{sb+2}, v{sb}", f"v_mov_b32 v{sb+3}, v{sb+1}",
                  f"v_permlane32_swap_b32 v{sb}, v{sb+2}", f"v_permlane32_swap_b32 v{sb+1}, v{sb+3}",
                  f"v_add_f32 v{sb}, v{sb}, v{sb+2}", f"v_add_f32 v{sb+1}, v{sb+1}, v{sb+3}",
                  f"v_mul_f32 v{sb}, 0xbb124925, v{sb}", f"v_mul_f32 v{sb+1}, {INVD}, v{sb+1}",
                  f"v_fma_f32 v{sb+1}, -v{sb}, v{sb}, v{sb+1}", f"v_max_f32 v{sb+1}, 0, v{sb+1}",
                  f"v_add_f32 v{sb+1}, {EPS5}, v{sb+1}", f"v_rcp_f32 v{R2+2*t}, v{sb+1}",
                  f"v_cvt_pk_bf16_f32 v{sb+2}, v{sb}, v{sb}", f"v_lshlrev_b32 v{sb+3}, 16, v{sb+2}",
                  f"v_sub_f32 v{sb+3}, v{sb}, v{sb+3}", f"v_cvt_pk_bf16_f32 v{sb+3}, v{sb+3}, v{sb+3}",
                  f"v_permlane32_swap_b32 v{sb+2}, v{mb}", f"v_permlane32_swap_b32 v{sb+3}, v{mb+1}"]
        return o
    def fin(b, pk):
        o = []
        for t in range(2):
            ac = ACC + 64*t + 16*b
            if pk:
                for r in range(0, 8, 2): o.append(f"v_pk_mul_f32 {v(ac+r,2)}, {v(ac+r,2)}, {v(ac+8+r,2)}")
                for r in range(0, 8, 2): o.append(f"v_pk_mul_f32 {v(ac+r,2)}, {v(ac+r,2)}, {v(R2+2*t,2)} op_sel_hi:[1,0]")
            else:
                for r in range(8): o.append(f"v_mul_f32 v{ac+r}, v{ac+r}, v{ac+8+r}")
                for r in range(8): o.append(f"v_mul_f32 v{ac+r}, v{ac+r}, v{R2+2*t}")
            for r in range(4): o.append(f"v_cvt_pk_bf16_f32 v{ac+8+r}, v{ac+2*r}, v{ac+2*r+1}")
            o += st2("buffer_store_dwordx4", v(ac+8,4), f"v{VL16}", f"s{58+t}", f"offen offset:{b*1024}")
        return o
    for _ in range(OPT["ni3"]): k(hl.pop(0)[1])
    extra = {140: stats()}
    for b in range(1, 4): extra[bstart[b] + 2] = fin(b-1, False)
    cur = []; credit = 0.0
    jd = nw0 + RING; jr = nw0
    dpos = {j: -99 for j in range(jd)}; rpos = {j: -99 for j in range(nw0)}
    dq = []; rq = []
    STL_AT = OPT.get("stl", 70)
    for n, (m, rd) in enumerate(mf):
        if n in extra:
            assert not cur, "filler overflow"
            cur = list(extra[n])
        k(m)
        if rd: k(rd)
        credit = min(credit + OPT["dens"], 1.5)
        if credit >= 1:
            if dq: k(dq.pop(0)); credit -= 1
            elif hl and hl[0][0] <= n: k(hl.pop(0)[1]); credit -= 1
            elif stl and n >= STL_AT: k(stl.pop(0)); credit -= 0.5
            elif jd < 28 and (jd - RING) in rpos and rpos[jd - RING] + 3 <= n:
                dq = wd_dma(jd); k(dq.pop(0)); credit -= 1; dpos[jd] = n; jd += 1
        if not rq and jr < 24 and jr in dpos and dpos[jr] + OPT["lat"] <= n and (jr < 20 or last[(jr-4, 1)] <= n):
            rq = wd_rd(jr)
        if rq:
            k(rq.pop(0))
            if not rq: rpos[jr] = n; jr += 1
        for _ in range(3):
            if cur: k(cur.pop(0))
        if n == 159: stamp(k, 14)
    assert not cur and not hl and not stl and not dq and not rq
    print("p3 sched: wd dma done", jd, "read", jr, "dpos", [dpos.get(j) for j in range(28)], file=sys.stderr)
    stamp(k, 15)
    for x in fin(3, True): k(x)
    k("s_waitcnt vmcnt(0)")
    flag_store(k, 51)
    stamp(k, 16)
    return jd, jr

def phase4(k, jd, jr):
    ACC, VH1 = 128, 15
    hregs = [v(192+4*i,4) for i in range(16)] + [v(24+4*i,4) for i in range(12)] + [v(80+4*i,4) for i in range(12)] + [a(4*i,4) for i in range(8)]
    NS = len(hregs)
    while jr < 28:
        for x in wd_rd(jr): k(x)
        if jd < 28:
            for x in wd_dma(jd): k(x)
            jd += 1
        jr += 1
    k(f"s_mul_i32 s54, s{sWV}, 28672"); k(f"s_add_u32 s54, s54, {WS_HH}")
    k(f"s_mul_i32 s53, s{sTT}, {2*112*1024}"); k("s_add_u32 s53, s53, s54"); k("s_add_u32 s54, s53, 28672")
    k(f"s_lshl_b32 s52, s{sROT}, 12"); k("s_add_u32 s52, s52, s53")
    k(f"s_and_b32 s48, s{sTG}, 1"); k(f"s_mul_i32 s48, s48, {112*1024}"); k(f"v_add_u32 v{T3}, s48, v{VL16}")
    k(f"s_xor_b32 s48, s48, {112*1024}"); k(f"v_add_u32 v{VH1}, s48, v{VL16}")
    k(f"s_lshl_b32 s55, s{sTT}, 7"); k(f"s_mul_i32 s48, s{sWV}, 28"); k("s_add_u32 s55, s55, s48"); k(f"s_add_u32 s55, s55, {FL3}")
    for x in unpack(ACC, HR): k(x)
    k(f"v_and_b32 v{T1}, 7, v{LANE}"); k(f"v_lshlrev_b32 v{T1}, 2, v{T1}")
    k("s_waitcnt lgkmcnt(0)"); k("s_barrier")
    poll(k, "p4", T2, T1, "s55", 1, "0x7f")
    stamp(k, 17)
    loads = []
    for ks in range(28):
        for t in range(2):
            loads.append(f"buffer_load_dwordx4 {hregs[(2*ks+t)%NS]}, v{VH1 if t else T3}, {s(SWS,4)}, s52 offen offset:{(ks&3)*1024} {OPT.get('lm','sc1')}")
        if (ks & 3) == 3: loads[-1] += "\ns_add_u32 s52, s52, 4096\ns_cmp_eq_u32 s52, s54\ns_cselect_b32 s52, s53, s52"
    NI = OPT["ni4"]
    for x in loads[:NI]: k(x)
    loads = loads[NI:]
    for ks in range(28):
        order = [(1, 1), (1, 0), (0, 1), (0, 0)] if ks == 27 else [(0, 0), (0, 1), (1, 0), (1, 1)]
        for j, (t, cg) in enumerate(order):
            acc = v(ACC+16*(2*t+cg),16)
            k(f"{MF32} {acc}, {a(wd_reg(ks)+4*cg,4)}, {hregs[(2*ks+t)%NS]}, {'0' if (ks == 0 and t+cg > 0) else acc}")
            if loads and (j & 1): k(loads.pop(0))
    stamp(k, 18)
    for i in (3, 2, 1):
        for x in exchange_w(ACC, i): k(x)
    exchange_r(k, ACC)
    sum_parts(k, ACC)
    for r in range(8): k(f"v_cvt_pk_bf16_f32 v{HR+r}, v{ACC+2*r}, v{ACC+2*r+1}")
    k(f"buffer_store_dwordx4 {v(HR,4)}, v14, {s(SO,4)}, s101 offen {OPT.get('om','')}")
    k(f"buffer_store_dwordx4 {v(HR+4,4)}, v14, {s(SO,4)}, s101 offen offset:32 {OPT.get('om','')}")

def build(path, aslist=False):
    hdr = open("cdna_kernels/" + NAME + ".s.ref").read().split("; Override")[0]
    k = K()
    setup(k)
    tail = phase1(k)
    if OPT["stop"] > 1: phase2(k)
    if OPT["stop"] > 2: jd, jr = phase3(k)
    if OPT["stop"] > 3: phase4(k, jd, jr)
    k("L_fin:")
    stamp_out(k, 19)
    k("L_end:")
    k("s_endpgm")
    tail(k)
    lines = k.finalize()
    pre = ""
    if OPT.get("pg"):
        lines, npg = paginate(lines, lambda p, n: "L_bk1" if p <= 4 else "L_bk2")
        pre = PAGE_PRE
        print("pages", npg, file=sys.stderr)
    out = hdr
    kn = NAME + "_kernel"
    tiny = OPT.get("tiny")
    tl = "; @launch kernel=tiny_kernel grid=(1,1,1) block=(64,1,1) lds=0\n"
    if tiny in (1, 2): out += tl
    if aslist: out += f"; @launch kernel={kn} grid=(256,1,1) block=(256,1,1) lds=163840\n" + (tl if tiny == 3 else "")
    else: out += f"; @launch grid=(256,1,1) block=(256,1,1) lds=163840\n"
    out += '.amdgcn_target "amdgcn-amd-amdhsa--gfx950"\n'
    out += kernel(kn, lines, 256, 256, pre=pre)
    if tiny:
        k2 = K()
        k2("s_memrealtime s[60:61]")
        k2("s_cmp_ge_u32 s2, 1"); k2("s_cbranch_scc1 L_tend")
        k2(f"s_load_dwordx2 {s(SWS,2)}, s[0:1], 72")
        k2(f"s_mov_b32 {s(SWS+2)}, 268435456"); k2(f"s_mov_b32 {s(SWS+3)}, 0x00020000")
        k2("s_mov_b32 s58, 0x3000000")
        k2("s_waitcnt lgkmcnt(0)")
        k2("v_mov_b32 v1, s60")
        k2(f"buffer_store_dword v1, off, {s(SWS,4)}, s58 sc1")
        k2("L_tend:")
        out += kernel("tiny_kernel", k2.finalize(), 8, 0)
    open(path, "w").write(out)

if __name__ == "__main__":
    args = sys.argv[2:]
    for x in args:
        if x == "stamp": STAMP = True
        elif "=" in x:
            n, val = x.split("="); OPT[n] = eval(val)
    build(sys.argv[1], aslist=("list" in args))
```
